```python
import torch

def _softmax(x, axis=-1):
    return torch.softmax(x, dim=axis)
def _gelu(x):
    return torch.nn.functional.gelu(x, approximate="tanh")
def _silu(x):
    return torch.nn.functional.silu(x)
def _sigmoid(x):
    return torch.sigmoid(x)
def _layernorm(x, axis=-1, eps=1e-5):
    m = x.mean(dim=axis, keepdim=True)
    v = x.var(dim=axis, keepdim=True, unbiased=False)
    return (x - m) / torch.sqrt(v + eps)
def _scatter_add(tgt, idx, src, axis=0):
    return tgt.clone().index_add_(axis, idx, src)
def _segment_sum(src, seg, n):
    out = torch.zeros((n,) + src.shape[1:], dtype=src.dtype)
    return out.index_add_(0, seg, src)
def _pad(x, pw):
    flat = tuple(v for pair in reversed(pw) for v in pair)
    return torch.nn.functional.pad(x, flat)

kernel_name = 'recurrent_scan__mha_block_cached__dense_activation_silu__decode'

def setup_inputs():

    _w = (lambda a: (lambda t: t.to(torch.bfloat16) if t.is_floating_point() else t)(torch.as_tensor(a)))
    def _A_setup():
        B, Sq, D = 1, 1, 448
        H, Sk, Dh = 16, 65536, 256
        return {
            "x": _w((lambda *s: torch.randn(*s, dtype=torch.bfloat16) * 0.4)(B, Sq, D)),
            "k_cache": _w((lambda *s: torch.randn(*s, dtype=torch.bfloat16) * 1.6)(B, H, Sk, Dh)),
            "v_cache": _w((lambda *s: torch.randn(*s, dtype=torch.bfloat16) * 1.6)(B, H, Sk, Dh)),
            "wq": _w((lambda *s: torch.randn(*s, dtype=torch.bfloat16) * 1.6)(D, H * Dh) * (D ** -0.5)),
            "wo": _w((lambda *s: torch.randn(*s, dtype=torch.bfloat16) * 1.6)(H * Dh, D) * ((H * Dh) ** -0.5)),
        }
    _A_in = _A_setup()

    def _B_setup():
        B, S, D, F = 1, 1, 448, 1792
        return {
            "x": _w((lambda *s: torch.randn(*s, dtype=torch.bfloat16) * 0.4)(B, S, D)),
            "w1": _w((lambda *s: torch.randn(*s, dtype=torch.bfloat16) * 1.6)(D, F) * (D ** -0.5)),
            "w2": _w((lambda *s: torch.randn(*s, dtype=torch.bfloat16) * 1.6)(F, D) * (F ** -0.5)),
        }
    _B_in = _B_setup()

    return {
        "A_x": _A_in["x"],
        "A_k_cache": _A_in["k_cache"],
        "A_v_cache": _A_in["v_cache"],
        "A_wq": _A_in["wq"],
        "A_wo": _A_in["wo"],
        "B_x": _B_in["x"],
        "B_w1": _B_in["w1"],
        "B_w2": _B_in["w2"],
    }

def reference(A_x, A_k_cache, A_v_cache, A_wq, A_wo, B_x, B_w1, B_w2):
    def _A_ref(x, k_cache, v_cache, wq, wo):
        B, Sq, D = x.shape
        H, Dh = 16, 256
        q = (lambda x, *d: x.permute(*d))((x @ wq).reshape(B, Sq, H, Dh), 0, 2, 1, 3)
        scores = torch.einsum("bhqd,bhkd->bhqk", q, k_cache) * (Dh ** -0.5)
        p = _softmax(scores, axis=-1)
        o = torch.einsum("bhqk,bhkd->bhqd", p, v_cache)
        return (lambda x, *d: x.permute(*d))(o, 0, 2, 1, 3).reshape(B, Sq, H * Dh) @ wo

    def _B_ref(x, w1, w2):
        h = torch.einsum("bsd,df->bsf", x, w1)
        h = _silu(h)
        out = torch.einsum("bsf,fd->bsd", h, w2)
        return out

    x = A_x
    xn = _layernorm(x, axis=-1)
    s = _A_ref(xn, A_k_cache, A_v_cache, A_wq, A_wo)
    g = _silu(_B_ref(xn, B_w1, B_w2))
    return x + s * g
```

```python
import re

TRANS = ("v_exp_f32", "v_log_f32", "v_rcp_f32", "v_rsq_f32", "v_sqrt_f32", "v_sin_f32", "v_cos_f32")

def regs_of(op):
    op = op.strip()
    op = re.sub(r"^-", "", op)
    m = re.match(r"^abs\((.*)\)$", op) or re.match(r"^\|(.*)\|$", op)
    if m: op = m.group(1)
    m = re.match(r"^([vsa])(\d+)$", op)
    if m: return {(m.group(1), int(m.group(2)))}
    m = re.match(r"^([vsa])\[(\d+):(\d+)\]$", op)
    if m: return {(m.group(1), i) for i in range(int(m.group(2)), int(m.group(3)) + 1)}
    if op == "vcc": return {("vcc", 0)}
    if op == "exec": return {("exec", 0)}
    if op == "m0": return {("m0", 0)}
    return set()

class Ins:
    def __init__(self, text):
        self.text = text
        t = text.split(";")[0].strip()
        self.label = t.endswith(":")
        self.directive = t.startswith(".")
        self.mn = ""
        self.w = set(); self.r = set()
        self.valu = self.vmem = self.dpp = self.trans = self.dot = self.perml = self.rdlane = False
        self.store4 = set()
        self.states = 0
        self.branch = None
        if self.label or self.directive or not t: return
        parts = t.split(None, 1)
        mn = parts[0]; self.mn = mn
        rest = parts[1] if len(parts) > 1 else ""
        ops = [o.strip() for o in rest.split(",")] if rest else []
        mods = ""
        if ops:
            m = re.search(r"\s(quad_perm|row_|op_sel|neg_lo|offen|offset|sc0|sc1|nt|glc|lds|off\b|bank_mask|bound_ctrl|wave_|clamp|dst_sel|src0_sel|bitop3)", " " + rest)
            if m:
                cut = m.start()
                mods = rest[cut:]
                rest2 = rest[:cut]
                ops = [o.strip() for o in rest2.split(",") if o.strip()]
        self.ops = ops; self.mods = mods
        self.states = 1
        if mn == "s_nop": self.states = int(ops[0], 0) + 1
        if mn.startswith("s_cbranch") or mn == "s_branch": self.branch = ops[0]
        if mn.startswith("v_"):
            self.valu = True
            self.dpp = bool(re.search(r"quad_perm|row_|wave_", mods))
            base = re.sub(r"_(e32|e64|dpp|sdwa)$", "", mn)
            self.base = base
            self.trans = base in TRANS
            self.dot = base.startswith("v_dot")
            self.perml = base.startswith("v_permlane")
            self.rdlane = base in ("v_readlane_b32", "v_readfirstlane_b32")
            self.w = regs_of(ops[0])
            for o in ops[1:]: self.r |= regs_of(o)
            if self.perml:
                self.w |= regs_of(ops[1]); self.r |= regs_of(ops[0])
            if base.startswith("v_dot2c") or base.startswith("v_fmac") or base == "v_writelane_b32" or self.dpp:
                self.r |= regs_of(ops[0])
            if base == "v_cndmask_b32" and len(ops) == 3: self.r |= {("vcc", 0)}
            if base.startswith("v_cmpx"): self.w |= {("exec", 0)}
        elif mn.startswith("buffer_") or mn.startswith("global_") or mn.startswith("ds_"):
            self.vmem = True
            isload = "load" in mn or "read" in mn or "permute" in mn
            for i, o in enumerate(ops):
                if i == 0 and isload: self.w = regs_of(o)
                else: self.r |= regs_of(o)
            if re.match(r"(buffer|global)_store_dwordx[34]", mn):
                self.store4 = regs_of(ops[0]) if mn.startswith("buffer") else regs_of(ops[1])
        elif mn.startswith("s_"):
            if ops and not mn.startswith("s_cmp") and not mn.startswith("s_cbranch") and mn not in ("s_branch", "s_waitcnt", "s_nop", "s_sleep", "s_setprio", "s_barrier", "s_endpgm", "s_bitcmp1_b32", "s_bitcmp0_b32"):
                self.w = regs_of(ops[0])
                for o in ops[1:]: self.r |= regs_of(o)
            else:
                for o in ops: self.r |= regs_of(o)

def need(p, c):
    n = 0
    vw = {x for x in p.w if x[0] in "va"}
    sw = {x for x in p.w if x[0] in ("s", "vcc")}
    if p.valu:
        if c.valu and c.dpp and (vw & c.r): n = max(n, 2)
        if c.valu and c.perml and (vw & c.r): n = max(n, 2)
        if c.valu and c.rdlane and (vw & c.r): n = max(n, 1)
        if p.trans and c.valu and not c.trans and (vw & c.r): n = max(n, 1)
        if p.trans and c.vmem and (vw & c.r): n = max(n, 1)
        if p.dot:
            if c.valu and (vw & (c.r | c.w)):
                same = c.dot and c.base == p.base
                if same:
                    ab = set()
                    for o in c.ops[1:3]: ab |= regs_of(o)
                    if vw & ab: n = max(n, 3)
                else: n = max(n, 3)
            if c.vmem and (vw & c.r): n = max(n, 3)
        if sw:
            if c.valu and (sw & c.r): n = max(n, 4 if c.base in ("v_readlane_b32", "v_writelane_b32") and (sw & regs_of(c.ops[2])) else 2)
            if c.vmem and (sw & c.r): n = max(n, 5)
            if (not c.valu) and (not c.vmem) and (sw & c.r): n = max(n, 1)
        if ("exec", 0) in p.w and c.valu: n = max(n, 5)
    if p.store4 and (p.store4 & c.w): n = max(n, 2)
    if ("m0", 0) in p.w and (c.vmem or c.mn == "v_writelane_b32"): n = max(n, 1)
    return n

class Asm:
    def __init__(self):
        self.lines = []
    def __call__(self, s):
        for part in s.split("\n"):
            part = part.strip()
            if part: self.lines.append(part)
    def finish(self, verbose=False):
        ins = [Ins(l) for l in self.lines]
        out = []
        W = 6
        def deficit(hist, c):
            d = 0; dist = 0
            for p in reversed(hist):
                if dist >= W: break
                if p.states == 0: continue
                d = max(d, need(p, c) - dist)
                dist += p.states
            return d
        for c in ins:
            if c.states:
                d = deficit(out, c)
                if d > 0:
                    out.append(Ins(f"s_nop {d-1}"))
            out.append(c)
        labels = {i.text.split(":")[0].strip(): k for k, i in enumerate(out) if i.label}
        for k, i in enumerate(out):
            if i.branch and i.branch in labels:
                hist = out[:k+1]
                t = labels[i.branch]; n = 0; h2 = list(hist[-8:])
                for c in out[t:]:
                    if c.states == 0: continue
                    d = deficit(h2, c)
                    if d > 0: raise RuntimeError(f"hazard across branch {i.text} -> {c.text} deficit {d}")
                    h2.append(c); n += c.states
                    if n >= W or c.mn == "s_branch" or c.mn == "s_endpgm": break
        return "\n".join(("" if (i.label or i.directive) else "    ") + i.text for i in out) + "\n"
```

```python
import sys, math, struct
from asmlib import Asm
KN = "recurrent_scan__mha_block_cached__dense_activation_silu__decode_kernel"

QS, ML, OS, YS, ZS, TK, DG = 0x0, 0x4000, 0x100000, 0x200000, 0x280000, 0x300000, 0x380000
WS_BYTES = 0x400000
def f2u(x): return struct.unpack("<I", struct.pack("<f", x))[0]
LOG2E = 1.4426950408889634
CSC = f2u(LOG2E / 16.0)

HEADER = """; Kernarg layout for this problem (88 bytes, ptrs only, base s[0:1]):
; One workgroup per CU: waves 0-3 stream K/V of one head (online softmax), wave 4 does LayerNorm, the q slice,
"""

def gen(S=100, C=2, NST=4, diag=0, spin=200000, codepf=1):
    A = Asm()
    NT = 8192
    lab = [0]
    def L(p):
        lab[0] += 1; return f"L_{p}{lab[0]}"
    nst = [0]
    def stamp(k):
        if diag: A(f"s_memrealtime s[{64+2*k}:{65+2*k}]")
    def dump_stamps(n):
        if not diag: return
        A("s_waitcnt lgkmcnt(0)")
        A("s_mov_b64 exec, -1")
        A("v_mov_b32 v200, 0")
        for k in range(n): A(f"v_writelane_b32 v200, s{64+2*k}, {k}")
        A("s_getreg_b32 s62, hwreg(HW_REG_XCC_ID)"); A("v_writelane_b32 v200, s62, 15")
        A("s_mul_i32 s62, s2, 5"); A("s_add_u32 s62, s62, s3"); A("s_lshl_b32 s62, s62, 6"); A(f"s_add_u32 s62, s62, {DG}")
        A("v_lshlrev_b32 v201, 2, v0")
        A("s_mov_b64 exec, 0xffff")
        A("buffer_store_dword v200, v201, s[56:59], s62 offen")
    DPPM = "row_mask:0xf bank_mask:0xf"
    ROWSTEPS = ["quad_perm:[1,0,3,2]", "quad_perm:[2,3,0,1]", "row_half_mirror", "row_mirror"]
    def row_reduce(regs, op="v_add_f32", steps=ROWSTEPS):
        for st in steps:
            for r in regs: A(f"{op}_dpp v{r}, v{r}, v{r} {st} {DPPM}")
    def xrow_allreduce(pairs, op="v_add_f32"):
        for sw in ("v_permlane16_swap_b32", "v_permlane32_swap_b32"):
            for r, t in pairs: A(f"v_mov_b32 v{t}, v{r}")
            for r, t in pairs: A(f"{sw} v{r}, v{t}")
            for r, t in pairs: A(f"{op} v{r}, v{r}, v{t}")
    def rnd(r):
        A(f"v_cvt_pk_bf16_f32 v{r}, v{r}, v{r}"); A(f"v_and_b32 v{r}, 0xffff0000, v{r}")
    def srd(b, p, n):
        A(f"s_mov_b32 s{b}, s{p}"); A(f"s_mov_b32 s{b+1}, s{p+1}"); A(f"s_mov_b32 s{b+2}, {n}"); A(f"s_mov_b32 s{b+3}, 0x20000")

    A(f".amdgcn_target \"amdgcn-amd-amdhsa--gfx950\"")
    A(".text"); A(f".globl {KN}"); A(".p2align 8"); A(f".type {KN},@function"); A(f"{KN}:")
    A("s_cmp_ge_u32 s2, 256"); A("s_cbranch_scc1 L_end")
    stamp(0)
    A("s_load_dwordx16 s[4:19], s[0:1], 0")
    A("s_load_dwordx4 s[20:23], s[0:1], 64")
    A("s_load_dwordx2 s[24:25], s[0:1], 80")
    A("v_lshrrev_b32 v1, 6, v0"); A("v_and_b32 v0, 63, v0")
    A("v_readfirstlane_b32 s3, v1")
    A("s_lshr_b32 s26, s2, 4"); A("s_and_b32 s27, s2, 15")
    A("v_lshrrev_b32 v3, 4, v0"); A("v_and_b32 v4, 15, v0")
    A("s_cmp_eq_u32 s3, 4"); A("s_cbranch_scc1 L_helper")

    sHB, sCUR, sLEFT, sTK, sTKO, sDYN, sT, sC = 40, 41, 42, 43, 44, 45, 46, 47
    sOFF = [48 + i for i in range(NST)]
    vM, vNM, vL, vA, vB, vT, vU1, vU2, vU3 = 3, 4, 5, 6, 7, 8, 9, 10, 11
    vQ, vACC, vBUF = 12, 20, 36
    A("v_lshlrev_b32 v1, 9, v3"); A("v_lshl_add_u32 v1, v4, 4, v1")
    A(f"s_lshl_b32 s{sHB}, s26, 25")
    A(f"s_mul_i32 s{sCUR}, s27, {4*S}"); A(f"s_add_u32 s{sCUR}, s{sCUR}, s3")
    A(f"s_lshl_b32 s{sT}, s{sCUR}, 12"); A(f"s_add_u32 s{sOFF[0]}, s{sT}, s{sHB}")
    for st in range(1, NST): A(f"s_add_u32 s{sOFF[st]}, s{sOFF[0]}, {st*4*4096}")
    A("s_waitcnt lgkmcnt(0)")
    srd(28, 6, 1 << 29); srd(32, 8, 1 << 29)
    IOFF = [0, 256, 2048, 2304]
    def kv(st, isv, i): return vBUF + st*32 + isv*16 + i*4
    def load(st, isv, i):
        b = kv(st, isv, i)
        A(f"buffer_load_dwordx4 v[{b}:{b+3}], v1, s[{28+4*isv}:{31+4*isv}], s{sOFF[st]} offen offset:{IOFF[i]} nt")
    for st in range(NST):
        for isv in range(2):
            for i in range(4): load(st, isv, i)
    stamp(1)
    srd(56, 24, WS_BYTES)
    A(f"s_add_u32 s{sCUR}, s{sCUR}, {4*NST}"); A(f"s_mov_b32 s{sLEFT}, {S-NST}")
    A(f"s_add_u32 s{sDYN}, s3, {16*S*4}")
    A(f"s_lshl_b32 s{sTKO}, s26, 2"); A(f"s_add_u32 s{sTKO}, s{sTKO}, s3"); A(f"s_lshl_b32 s{sTKO}, s{sTKO}, 12"); A(f"s_add_u32 s{sTKO}, s{sTKO}, {TK}")
    A(f"s_mov_b32 s{sC}, {CSC}")
    def pub_voff(dst, t1, t2):
        A(f"v_lshrrev_b32 v{t1}, 1, v3"); A(f"v_lshlrev_b32 v{t1}, 3, v{t1}"); A(f"v_lshrrev_b32 v{t2}, 1, v4"); A(f"v_add_u32 v{t1}, v{t1}, v{t2}")
        A(f"v_lshlrev_b32 v{dst}, 12, v{t1}")
        A(f"v_and_b32 v{t1}, 1, v4"); A(f"v_lshlrev_b32 v{t1}, 5, v{t1}"); A(f"v_and_b32 v{t2}, 1, v3"); A(f"v_lshlrev_b32 v{t2}, 4, v{t2}")
        A(f"v_or3_b32 v{dst}, v{dst}, v{t1}, v{t2}")
    pub_voff(2, 6, 7)
    A("v_lshlrev_b32 v8, 4, v4")
    A("s_lshl_b32 s54, s27, 2"); A("s_add_u32 s54, s54, s3")
    A("s_lshl_b32 s52, s26, 16"); A("s_lshl_b32 s55, s54, 6"); A("s_add_u32 s52, s52, s55"); A(f"s_add_u32 s52, s52, {OS}")
    A("s_lshl_b32 s53, s26, 9"); A("s_lshl_b32 s55, s54, 3"); A("s_add_u32 s53, s53, s55"); A(f"s_add_u32 s53, s53, {ML}")
    for i in range(16): A(f"v_mov_b32 v{vACC+i}, 0")
    A(f"v_mov_b32 v{vM}, 0xff7fffff"); A(f"v_mov_b32 v{vL}, 0")
    A(f"v_mul_f32 v{vNM}, s{sC}, v{vM}"); A(f"v_sub_f32 v{vNM}, 0, v{vNM}")
    A("s_barrier")
    A(f"ds_read_b128 v[{vQ}:{vQ+3}], v8"); A(f"ds_read_b128 v[{vQ+4}:{vQ+7}], v8 offset:256")
    A("s_waitcnt lgkmcnt(0)")
    stamp(2)
    A(".p2align 6")
    A("L_loop:")
    rare = []
    VW = (2*NST - 1) * 4
    for st in range(NST):
        A(f"s_cmp_ge_u32 s{sOFF[st]}, 0x80000000"); A("s_cbranch_scc1 L_sdone")
        lj, ln = L("j"), L("n")
        A(f"s_cmp_gt_i32 s{sLEFT}, 0"); A(f"s_cbranch_scc1 {lj}")
        A("s_waitcnt lgkmcnt(0)")
        A(f"s_mul_i32 s{sCUR}, s{sTK}, {4*C}"); A(f"s_add_u32 s{sCUR}, s{sCUR}, s{sDYN}"); A(f"s_mov_b32 s{sLEFT}, {C}")
        A(f"{lj}:")
        A(f"s_cmp_lg_u32 s{sLEFT}, {C}"); A(f"s_cbranch_scc1 {ln}")
        A(f"s_mov_b32 s{sTK}, 1"); A(f"s_atomic_add s{sTK}, s[24:25], s{sTKO} glc")
        A(f"{ln}:")
        A(f"s_lshl_b32 s{sT}, s{sCUR}, 12"); A(f"s_add_u32 s{sT}, s{sT}, s{sHB}")
        A(f"s_cmp_lt_u32 s{sCUR}, {NT}"); A(f"s_cselect_b32 s{sOFF[st]}, s{sT}, 0x80000000")
        A(f"s_add_u32 s{sCUR}, s{sCUR}, 4"); A(f"s_sub_i32 s{sLEFT}, s{sLEFT}, 1")
        A(f"s_waitcnt vmcnt({VW})")
        for half in range(2):
            for d in range(4):
                for (acc, i) in ((vA, half), (vB, 2 + half)):
                    c = "0" if (half == 0 and d == 0) else f"v{acc}"
                    A(f"v_dot2_f32_bf16 v{acc}, v{kv(st,0,i)+d}, v{vQ+half*4+d}, {c}")
        load(st, 0, 0); load(st, 0, 1); load(st, 0, 2)
        for k, stp in enumerate(ROWSTEPS):
            A(f"v_add_f32_dpp v{vA}, v{vA}, v{vA} {stp} {DPPM}")
            A(f"v_add_f32_dpp v{vB}, v{vB}, v{vB} {stp} {DPPM}")
            if k == 0: load(st, 0, 3)
        A(f"v_cvt_pk_bf16_f32 v{vT}, v{vA}, v{vB}")
        A(f"v_lshlrev_b32 v{vA}, 16, v{vT}"); A(f"v_and_b32 v{vB}, 0xffff0000, v{vT}")
        A(f"v_max_f32 v{vT}, v{vA}, v{vB}")
        A(f"v_cmp_gt_f32 vcc, v{vT}, v{vM}")
        lr, lb = L("rare"), L("back")
        A(f"s_cbranch_vccnz {lr}")
        A(f"{lb}:")
        rare.append((lr, lb))
        A(f"v_fma_f32 v{vA}, v{vA}, s{sC}, v{vNM}"); A(f"v_fma_f32 v{vB}, v{vB}, s{sC}, v{vNM}")
        A(f"v_exp_f32 v{vA}, v{vA}"); A(f"v_exp_f32 v{vB}, v{vB}")
        A(f"s_waitcnt vmcnt({VW})")
        A(f"v_cvt_pk_bf16_f32 v{vT}, v{vA}, 0"); A(f"v_cvt_pk_bf16_f32 v{vU1}, 0, v{vA}")
        A(f"v_cvt_pk_bf16_f32 v{vU2}, v{vB}, 0"); A(f"v_cvt_pk_bf16_f32 v{vU3}, 0, v{vB}")
        A(f"v_add_f32 v{vL}, v{vL}, v{vA}"); A(f"v_add_f32 v{vL}, v{vL}, v{vB}")
        for i in range(4):
            lo, hi = (vT, vU1) if i < 2 else (vU2, vU3)
            ab = vACC + (i & 1) * 8
            for d in range(4):
                A(f"v_dot2c_f32_bf16 v{ab+2*d}, v{kv(st,1,i)+d}, v{lo}")
                A(f"v_dot2c_f32_bf16 v{ab+2*d+1}, v{kv(st,1,i)+d}, v{hi}")
            load(st, 1, i)
    A("s_branch L_loop")
    for lr, lb in rare:
        A(f"{lr}:")
        xrow_allreduce([(vT, vU1)], "v_max_f32")
        A(f"v_max_f32 v{vT}, v{vT}, v{vM}")
        A(f"v_mul_f32 v{vNM}, s{sC}, v{vT}"); A(f"v_sub_f32 v{vNM}, 0, v{vNM}")
        A(f"v_fma_f32 v{vU1}, v{vM}, s{sC}, v{vNM}"); A(f"v_exp_f32 v{vU1}, v{vU1}")
        A(f"v_mov_b32 v{vM}, v{vT}")
        A(f"v_mul_f32 v{vL}, v{vL}, v{vU1}")
        for i in range(16): A(f"v_mul_f32 v{vACC+i}, v{vACC+i}, v{vU1}")
        A(f"s_branch {lb}")
    A("L_sdone:")
    stamp(3)
    for i in range(8): A(f"v_permlane32_swap_b32 v{vACC+i}, v{vACC+8+i}")
    A(f"v_mov_b32 v{vT}, v{vL}")
    for i in range(8): A(f"v_add_f32 v{vACC+i}, v{vACC+i}, v{vACC+8+i}")
    A(f"v_permlane16_swap_b32 v{vL}, v{vT}")
    for i in range(4): A(f"v_permlane16_swap_b32 v{vACC+i}, v{vACC+4+i}")
    A(f"v_add_f32 v{vL}, v{vL}, v{vT}")
    for i in range(4): A(f"v_add_f32 v{vACC+i}, v{vACC+i}, v{vACC+4+i}")
    A(f"v_mov_b32 v{vT}, v{vL}")
    for i in range(4): A(f"v_min_u32 v{vACC+i}, -2, v{vACC+i}")
    A(f"buffer_store_dwordx4 v[{vACC}:{vACC+3}], v2, s[56:59], s52 offen sc1")
    A(f"v_permlane32_swap_b32 v{vL}, v{vT}")
    A(f"v_min_u32 v{vA}, -2, v{vM}")
    A(f"v_add_f32 v{vB}, v{vL}, v{vT}")
    A(f"v_min_u32 v{vB}, -2, v{vB}")
    A("s_mov_b64 exec, 1")
    A(f"buffer_store_dwordx2 v[{vA}:{vB}], off, s[56:59], s53 sc1")
    A("s_barrier")
    stamp(4)
    dump_stamps(5)
    A("s_endpgm")

    A("L_helper:")
    A("s_setprio 3")
    X = 8
    XLO, XHI = 16, 24
    ACC = 32
    W = 48
    WO = 112
    vM1 = 144
    vOv, vYv, vZv, vQv, vL4, vL8, vL16 = 148, 149, 150, 151, 152, 153, 154
    T = [155, 156, 157, 158, 159, 160, 161, 162]
    for i in range(4): A(f"v_mov_b32 v{vM1+i}, -1")
    A(f"v_lshlrev_b32 v{vQv}, 3, v3")
    A(f"v_lshlrev_b32 v{T[0]}, 12, v0")
    A(f"v_mov_b32 v{T[1]}, 0")
    A(f"v_lshlrev_b32 v{T[2]}, 1, v0")
    A(f"v_lshlrev_b32 v{T[3]}, 13, v0")
    A("s_lshl_b32 s60, s2, 5")
    A("s_lshl_b32 s61, s26, 14"); A(f"s_add_u32 s61, s61, {TK}")
    A("s_waitcnt lgkmcnt(0)")
    srd(56, 24, WS_BYTES)
    A("s_mov_b32 exec_lo, 0x00010001"); A("s_mov_b32 exec_hi, 0x00010001")
    A(f"buffer_store_dwordx2 v[{vM1}:{vM1+1}], v{vQv}, s[56:59], s60 offen sc1")
    A("s_mov_b64 exec, 15")
    A(f"buffer_store_dword v{T[1]}, v{T[0]}, s[56:59], s61 offen sc1")
    A("s_mov_b64 exec, -1")
    srd(28, 4, 896); srd(32, 10, 448*4096*2)
    for i in range(7): A(f"buffer_load_ushort v{X+i}, v{T[2]}, s[28:31], 0 offen offset:{128*i}")
    def slice_loads(sr, voff, rowb):
        A("s_mov_b32 s62, s60")
        for i in range(7):
            A(f"buffer_load_dwordx4 v[{W+8*i}:{W+8*i+3}], v{voff}, s[{sr}:{sr+3}], s62 offen")
            A(f"buffer_load_dwordx4 v[{W+8*i+4}:{W+8*i+7}], v{voff}, s[{sr}:{sr+3}], s62 offen offset:16")
            if i < 6: A(f"s_add_u32 s62, s62, {64*rowb}")
    slice_loads(32, T[3], 8192)
    pub_voff(vOv, T[4], T[5])
    A(f"v_lshlrev_b32 v{vYv}, 13, v0"); A(f"v_lshlrev_b32 v{vZv}, 12, v0")
    A(f"v_lshlrev_b32 v{vL4}, 2, v0"); A(f"v_lshlrev_b32 v{vL8}, 3, v0"); A(f"v_lshlrev_b32 v{vL16}, 4, v0")
    A("s_lshl_b32 s62, s26, 16"); A("s_lshl_b32 s63, s27, 8"); A("s_add_u32 s62, s62, s63"); A(f"s_add_u32 s62, s62, {OS}")
    for w in range(4): A(f"buffer_store_dwordx4 v[{vM1}:{vM1+3}], v{vOv}, s[56:59], s62 offen offset:{64*w} sc1")
    A(f"s_add_u32 s62, s60, {ML}")
    A("s_mov_b64 exec, 15")
    A(f"buffer_store_dwordx2 v[{vM1}:{vM1+1}], v{vL8}, s[56:59], s62 offen sc1")
    A("s_mov_b32 exec_lo, -1"); A("s_mov_b32 exec_hi, 0x00ffffff")
    A("s_lshl_b32 s96, s2, 4"); A(f"s_add_u32 s97, s96, {YS+4096}"); A(f"s_add_u32 s98, s96, {ZS}"); A(f"s_add_u32 s96, s96, {YS}")
    A(f"buffer_store_dwordx4 v[{vM1}:{vM1+3}], v{vYv}, s[56:59], s96 offen sc1")
    A(f"buffer_store_dwordx4 v[{vM1}:{vM1+3}], v{vYv}, s[56:59], s97 offen sc1")
    NCLR = 7
    lz = L("noz")
    A("s_mov_b64 exec, -1")
    srd(52, 22, 256)
    if codepf:
        A("s_getpc_b64 s[94:95]")
        A("L_pc:")
        A(f"s_sub_u32 s94, s94, L_pc-{KN}"); A("s_subb_u32 s95, s95, 0")
        A(f"v_lshlrev_b32 v{T[4]}, 7, v0")
        A(f"global_load_dword v{T[5]}, v{T[4]}, s[94:95]")
        A(f"v_add_u32 v{T[4]}, 8192, v{T[4]}"); A(f"v_min_u32 v{T[4]}, L_end-{KN}, v{T[4]}")
        A(f"global_load_dword v{T[5]}, v{T[4]}, s[94:95]")
        NCLR += 2
    A(f"s_waitcnt vmcnt({14+NCLR})")
    stamp(1)
    A(f"v_mov_b32 v{T[0]}, 1"); A("s_mov_b64 exec, 1")
    A(f"buffer_store_byte v{T[0]}, off, s[52:55], s2 sc1")
    A("s_mov_b64 exec, -1")
    NCLR += 1
    for i in range(7): A(f"v_lshlrev_b32 v{X+i}, 16, v{X+i}")
    s_, t_, u_ = T[0], T[1], T[2]
    A(f"v_add_f32 v{s_}, v{X}, v{X+1}"); A(f"v_add_f32 v{t_}, v{X+2}, v{X+3}"); A(f"v_add_f32 v{u_}, v{X+4}, v{X+5}")
    A(f"v_add_f32 v{s_}, v{s_}, v{t_}"); A(f"v_add_f32 v{u_}, v{u_}, v{X+6}"); A(f"v_add_f32 v{s_}, v{s_}, v{u_}")
    row_reduce([s_]); xrow_allreduce([(s_, t_)])
    A(f"s_mov_b32 s62, {f2u(1.0/448.0)}"); A(f"s_mov_b32 s63, {f2u(448.0)}")
    def div448(r, t):
        A(f"v_mul_f32 v{t}, s62, v{r}"); A(f"v_fma_f32 v{r}, -v{t}, s63, v{r}"); A(f"v_fma_f32 v{r}, v{r}, s62, v{t}")
    div448(s_, t_)
    q_ = T[3]
    for i in range(7):
        A(f"v_sub_f32 v{XLO+i}, v{X+i}, v{s_}")
    A(f"v_mul_f32 v{q_}, v{XLO}, v{XLO}")
    for i in range(1, 7): A(f"v_fmac_f32 v{q_}, v{XLO+i}, v{XLO+i}")
    rnd(s_)
    row_reduce([q_]); xrow_allreduce([(q_, t_)])
    div448(q_, t_); rnd(q_)
    A(f"v_add_f32 v{q_}, {f2u(1e-5)}, v{q_}"); rnd(q_)
    A(f"v_sqrt_f32 v{q_}, v{q_}"); rnd(q_)
    A(f"v_rcp_f32 v{u_}, v{q_}")
    for i in range(7):
        A(f"v_sub_f32 v{X+i}, v{X+i}, v{s_}")
    for i in range(7): rnd(X+i)
    for i in range(7):
        A(f"v_mul_f32 v{XLO+i}, v{X+i}, v{u_}")
    for i in range(7):
        A(f"v_fma_f32 v{X+i}, -v{XLO+i}, v{q_}, v{X+i}")
    for i in range(7):
        A(f"v_fma_f32 v{X+i}, v{X+i}, v{u_}, v{XLO+i}")
    for i in range(7):
        A(f"v_cvt_pk_bf16_f32 v{XLO+i}, v{X+i}, 0"); A(f"v_cvt_pk_bf16_f32 v{XHI+i}, 0, v{X+i}")
    def slice_dot(first_wait):
        for i in range(16): A(f"v_mov_b32 v{ACC+i}, 0")
        for i in range(7):
            if first_wait is not None: A(f"s_waitcnt vmcnt({first_wait + 2*(6-i)})")
            for c in range(8):
                A(f"v_dot2c_f32_bf16 v{ACC+2*c}, v{W+8*i+c}, v{XLO+i}")
                A(f"v_dot2c_f32_bf16 v{ACC+2*c+1}, v{W+8*i+c}, v{XHI+i}")
        for i in range(8): A(f"v_permlane32_swap_b32 v{ACC+i}, v{ACC+8+i}")
        for i in range(8): A(f"v_add_f32 v{ACC+i}, v{ACC+i}, v{ACC+8+i}")
        for i in range(4): A(f"v_permlane16_swap_b32 v{ACC+i}, v{ACC+4+i}")
        for i in range(4): A(f"v_add_f32 v{ACC+i}, v{ACC+i}, v{ACC+4+i}")
        row_reduce([ACC, ACC+1, ACC+2, ACC+3])
    slice_dot(NCLR)
    A(f"v_cvt_pk_bf16_f32 v{ACC}, v{ACC}, v{ACC+1}"); A(f"v_cvt_pk_bf16_f32 v{ACC+1}, v{ACC+2}, v{ACC+3}")
    A(f"v_min_u32 v{ACC}, -2, v{ACC}"); A(f"v_min_u32 v{ACC+1}, -2, v{ACC+1}")
    A("s_mov_b32 exec_lo, 0x00010001"); A("s_mov_b32 exec_hi, 0x00010001")
    A(f"buffer_store_dwordx2 v[{ACC}:{ACC+1}], v{vQv}, s[56:59], s60 offen sc1")
    A("s_mov_b64 exec, -1")
    stamp(2)
    A(f"s_mov_b32 s99, {spin}")
    A("s_lshl_b32 s63, s26, 2")
    def poll_flags(bit, scope, sleep):
        lp, lo = L("pf"), L("pfo")
        A(f"{lp}:")
        A(f"buffer_load_dword v{T[0]}, v{vL4}, s[52:55], 0 offen sc1")
        A(f"s_mov_b32 s62, {0x01010101*bit}")
        A("s_waitcnt vmcnt(0)")
        A(f"v_and_b32 v{T[0]}, s62, v{T[0]}")
        A(f"v_cmp_eq_u32 vcc, s62, v{T[0]}")
        if scope == "head":
            A("s_lshr_b64 s[92:93], vcc, s63"); A("s_and_b32 s92, s92, 15"); A("s_cmp_eq_u32 s92, 15")
        else:
            A("s_cmp_eq_u64 vcc, -1")
        A(f"s_cbranch_scc1 {lo}")
        if sleep: A(f"s_sleep {sleep}")
        A("s_sub_u32 s99, s99, 1"); A(f"s_cbranch_scc0 {lp}"); A("s_branch L_end")
        A(f"{lo}:")
    poll_flags(1, "head", 0)
    lp, lo = L("pq"), L("pqo")
    A("s_lshl_b32 s62, s26, 9")
    A(f"{lp}:")
    A(f"buffer_load_dwordx2 v[{T[1]}:{T[2]}], v{vL8}, s[56:59], s62 offen sc1")
    A("s_waitcnt vmcnt(0)")
    A(f"v_max_u32 v{T[0]}, v{T[1]}, v{T[2]}")
    A(f"v_cmp_eq_u32 vcc, -1, v{T[0]}")
    A(f"s_cbranch_vccz {lo}")
    A("s_sub_u32 s99, s99, 1"); A(f"s_cbranch_scc0 {lp}"); A("s_branch L_end")
    A(f"{lo}:")
    A(f"ds_write_b64 v{vL8}, v[{T[1]}:{T[2]}]")
    A("s_waitcnt lgkmcnt(0)")
    A("s_barrier")
    stamp(3)
    srd(36, 12, 4096*448*2); srd(40, 16, 448*1792*2); srd(44, 18, 1792*448*2); srd(48, 20, 896)
    A(f"s_mov_b32 s90, 0x05040100"); A(f"s_mov_b32 s91, 0x07060302")
    def row_loads(sr):
        A(f"s_mul_i32 s62, s2, {16*896}")
        for r in range(16):
            A(f"buffer_load_dwordx4 v[{W+4*r}:{W+4*r+3}], v{vL16}, s[{sr}:{sr+3}], s62 offen offset:{(r%4)*896}")
            if r % 4 == 3 and r < 15: A(f"s_add_u32 s62, s62, {4*896}")
    def row_perm():
        for k in range(8):
            for c in range(4):
                a, b = W + 8*k + c, W + 8*k + 4 + c
                A(f"v_perm_b32 v{T[0]}, v{b}, v{a}, s90"); A(f"v_perm_b32 v{b}, v{b}, v{a}, s91"); A(f"v_mov_b32 v{a}, v{T[0]}")
    SP = 4
    def row_dot():
        for k in range(8):
            for c in range(4):
                cc = ["0", "0"] if k == 0 else [f"v{ACC+2*c}", f"v{ACC+2*c+1}"]
                A(f"v_dot2_f32_bf16 v{ACC+2*c}, v{W+8*k+c}, s{SP+k}, {cc[0]}")
                A(f"v_dot2_f32_bf16 v{ACC+2*c+1}, v{W+8*k+4+c}, s{SP+k}, {cc[1]}")
        for i in range(8): A(f"v_min_u32 v{ACC+i}, -2, v{ACC+i}")
    def silu(regs, tmps):
        A(f"s_mov_b32 s62, {f2u(-LOG2E)}")
        for r, t in zip(regs, tmps): A(f"v_mul_f32 v{t}, s62, v{r}")
        for r, t in zip(regs, tmps): A(f"v_exp_f32 v{t}, v{t}")
        for r, t in zip(regs, tmps): A(f"v_add_f32 v{t}, 1.0, v{t}")
        for r, t in zip(regs, tmps): A(f"v_rcp_f32 v{t}, v{t}")
        for r, t in zip(regs, tmps): A(f"v_mul_f32 v{r}, v{r}, v{t}")
    A("s_cmp_ge_u32 s2, 112"); A(f"s_cbranch_scc1 {lz}")
    A("s_mov_b32 exec_hi, 0x00ffffff")
    A(f"buffer_store_dwordx4 v[{vM1}:{vM1+3}], v{vZv}, s[56:59], s98 offen sc1")
    A(f"buffer_store_dwordx4 v[{vM1}:{vM1+3}], v{vZv}, s[56:59], s98 offen offset:2048 sc1")
    A("s_mov_b64 exec, -1")
    A(f"s_mov_b32 s62, 3584"); A(f"v_mul_lo_u32 v{T[3]}, v0, s62")
    slice_loads(40, T[3], 3584)
    A("s_waitcnt vmcnt(0)")
    A(f"{lz}:")
    A(f"v_mov_b32 v{T[0]}, 3"); A("s_mov_b64 exec, 1")
    A(f"buffer_store_byte v{T[0]}, off, s[52:55], s2 sc1")
    A("s_mov_b64 exec, -1")
    lz2 = L("noz")
    A("s_cmp_ge_u32 s2, 112"); A(f"s_cbranch_scc1 {lz2}")
    slice_dot(None)
    row_loads(44)
    for i in range(4): rnd(ACC+i)
    silu([ACC+i for i in range(4)], T[:4])
    A(f"v_cvt_pk_bf16_f32 v{ACC}, v{ACC}, v{ACC+1}"); A(f"v_cvt_pk_bf16_f32 v{ACC+1}, v{ACC+2}, v{ACC+3}")
    for r in range(4):
        A(f"v_readlane_b32 s{SP+2*r}, v{ACC}, {16*r}"); A(f"v_readlane_b32 s{SP+2*r+1}, v{ACC+1}, {16*r}")
    A("s_waitcnt vmcnt(0)")
    row_perm(); row_dot()
    A("s_mov_b32 exec_hi, 0x00ffffff")
    A(f"buffer_store_dwordx4 v[{ACC}:{ACC+3}], v{vZv}, s[56:59], s98 offen sc1")
    A(f"buffer_store_dwordx4 v[{ACC+4}:{ACC+7}], v{vZv}, s[56:59], s98 offen offset:2048 sc1")
    A("s_mov_b64 exec, -1")
    A(f"{lz2}:")
    row_loads(36)
    A("s_waitcnt vmcnt(0)")
    row_perm()
    poll_flags(2, "all", 8)
    vG, vXo = 8, 9
    R = 112
    def reduce4(a):
        A(f"v_permlane32_swap_b32 v{a}, v{a+2}"); A(f"v_permlane32_swap_b32 v{a+1}, v{a+3}")
        A(f"v_add_f32 v{a}, v{a}, v{a+2}"); A(f"v_add_f32 v{a+1}, v{a+1}, v{a+3}")
        A(f"v_permlane16_swap_b32 v{a}, v{a+1}")
        A(f"v_add_f32 v{a}, v{a}, v{a+1}")
    def anyinv(regs, t):
        regs = list(regs)
        A(f"v_max3_u32 v{t}, v{regs[0]}, v{regs[1]}, v{regs[2]}")
        rest = regs[3:]
        t2 = t + 1
        if len(rest) >= 3:
            A(f"v_max3_u32 v{t2}, v{rest[0]}, v{rest[1]}, v{rest[2]}"); rest = rest[3:]
            cur = [t, t2]; k = 0
            while rest:
                if len(rest) >= 2: A(f"v_max3_u32 v{cur[k]}, v{cur[k]}, v{rest[0]}, v{rest[1]}"); rest = rest[2:]
                else: A(f"v_max_u32 v{cur[k]}, v{cur[k]}, v{rest[0]}"); rest = []
                k ^= 1
            A(f"v_max_u32 v{t}, v{t}, v{t2}")
        else:
            for r in rest: A(f"v_max_u32 v{t}, v{t}, v{r}")
        A(f"v_cmp_eq_u32 vcc, -1, v{t}")
    lz3 = L("noz")
    A("s_cmp_ge_u32 s2, 112"); A(f"s_cbranch_scc1 {lz3}")
    A(f"v_lshlrev_b32 v{T[4]}, 1, v3")
    A("s_lshl_b32 s89, s2, 3")
    A(f"buffer_load_ushort v{vXo}, v{T[4]}, s[28:31], s89 offen")
    A("s_lshl_b32 s62, s2, 11"); A(f"s_add_u32 s62, s62, {ZS}")
    for i in range(4): A(f"v_mov_b32 v{R+4+i}, 0")
    lp, lo = L("pz"), L("pzo")
    A(f"{lp}:")
    A(f"buffer_load_dwordx4 v[{R}:{R+3}], v{vL16}, s[56:59], s62 offen sc1")
    A("s_mov_b32 exec_hi, 0x0000ffff")
    A(f"buffer_load_dwordx4 v[{R+4}:{R+7}], v{vL16}, s[56:59], s62 offen offset:1024 sc1")
    A("s_mov_b64 exec, -1")
    A("s_waitcnt vmcnt(0)")
    anyinv(range(R, R+8), T[0])
    A(f"s_cbranch_vccz {lo}")
    A("s_sleep 8")
    A("s_sub_u32 s99, s99, 1"); A(f"s_cbranch_scc0 {lp}"); A("s_branch L_end")
    A(f"{lo}:")
    for i in range(4): A(f"v_add_f32 v{R+i}, v{R+i}, v{R+4+i}")
    reduce4(R); row_reduce([R])
    rnd(R); silu([R], [T[0]]); rnd(R)
    A(f"v_mov_b32 v{vG}, v{R}")
    A(f"v_lshlrev_b32 v{vXo}, 16, v{vXo}")
    A(f"{lz3}:")
    A("s_lshl_b32 s62, s26, 16"); A("s_lshl_b32 s63, s27, 12"); A("s_add_u32 s62, s62, s63"); A(f"s_add_u32 s62, s62, {OS}")
    A("s_lshl_b32 s63, s26, 9"); A(f"s_add_u32 s63, s63, {ML}")
    A(f"v_lshrrev_b32 v{T[5]}, 2, v0"); A(f"v_lshlrev_b32 v{T[5]}, 3, v{T[5]}")
    A("s_lshl_b32 s88, s2, 12"); A(f"s_add_u32 s88, s88, {YS}")
    A(f"s_mov_b32 s61, {CSC}")
    stamp(4)
    A("s_barrier")
    stamp(5)
    MLr = R + 16
    lp, lo = L("po"), L("poo")
    A(f"{lp}:")
    for i in range(4): A(f"buffer_load_dwordx2 v[{MLr+2*i}:{MLr+2*i+1}], v{T[5]}, s[56:59], s63 offen offset:{128*i} sc1")
    for i in range(4): A(f"buffer_load_dwordx4 v[{R+4*i}:{R+4*i+3}], v{vL16}, s[56:59], s62 offen offset:{1024*i} sc1")
    A("s_waitcnt vmcnt(0)")
    anyinv(range(R, R+24), T[0])
    A(f"s_cbranch_vccz {lo}")
    A("s_sub_u32 s99, s99, 1"); A(f"s_cbranch_scc0 {lp}"); A("s_branch L_end")
    A(f"{lo}:")
    stamp(6)
    GSTEPS = ["row_ror:4", "row_ror:8"]
    mx, tt = T[0], T[1]
    A(f"v_max3_f32 v{mx}, v{MLr}, v{MLr+2}, v{MLr+4}"); A(f"v_max_f32 v{mx}, v{mx}, v{MLr+6}")
    row_reduce([mx], "v_max_f32", GSTEPS); xrow_allreduce([(mx, tt)], "v_max_f32")
    A(f"v_mul_f32 v{mx}, s61, v{mx}")
    for i in range(4): A(f"v_fma_f32 v{MLr+2*i}, v{MLr+2*i}, s61, -v{mx}")
    for i in range(4): A(f"v_exp_f32 v{MLr+2*i}, v{MLr+2*i}")
    ls = T[2]
    A(f"v_mul_f32 v{ls}, v{MLr}, v{MLr+1}")
    for k in range(4): A(f"v_mul_f32 v{R+k}, v{MLr}, v{R+k}")
    for i in range(1, 4):
        A(f"v_fmac_f32 v{ls}, v{MLr+2*i}, v{MLr+2*i+1}")
        for k in range(4): A(f"v_fmac_f32 v{R+k}, v{MLr+2*i}, v{R+4*i+k}")
    A(f"v_permlane32_swap_b32 v{R}, v{R+2}"); A(f"v_permlane32_swap_b32 v{R+1}, v{R+3}")
    A(f"v_add_f32_dpp v{ls}, v{ls}, v{ls} row_ror:4 {DPPM}")
    A(f"v_add_f32 v{R}, v{R}, v{R+2}"); A(f"v_add_f32 v{R+1}, v{R+1}, v{R+3}")
    A(f"v_add_f32_dpp v{ls}, v{ls}, v{ls} row_ror:8 {DPPM}")
    A(f"v_permlane16_swap_b32 v{R}, v{R+1}")
    A(f"v_mov_b32 v{tt}, v{ls}")
    A(f"v_add_f32 v{R}, v{R}, v{R+1}")
    A(f"v_permlane16_swap_b32 v{ls}, v{tt}")
    A(f"v_add_f32_dpp v{R}, v{R}, v{R} row_ror:4 {DPPM}")
    A(f"v_add_f32 v{ls}, v{ls}, v{tt}")
    A(f"v_mov_b32 v{tt}, v{ls}")
    A(f"v_add_f32_dpp v{R}, v{R}, v{R} row_ror:8 {DPPM}")
    A(f"v_permlane32_swap_b32 v{ls}, v{tt}")
    A(f"v_add_f32 v{ls}, v{ls}, v{tt}")
    A(f"v_rcp_f32 v{ls}, v{ls}")
    A(f"v_mul_f32 v{R}, v{R}, v{ls}")
    A(f"v_mov_b32 v{R+1}, v{R}")
    A(f"v_permlane16_swap_b32 v{R}, v{R+1}")
    A(f"v_cvt_pk_bf16_f32 v{R}, v{R}, v{R+1}")
    for t in range(4):
        A(f"v_readlane_b32 s{SP+2*t}, v{R}, {t}"); A(f"v_readlane_b32 s{SP+2*t+1}, v{R}, {32+t}")
    row_dot()
    A("s_mov_b32 exec_hi, 0x00ffffff")
    A(f"buffer_store_dwordx4 v[{ACC}:{ACC+3}], v{vYv}, s[56:59], s96 offen sc1")
    A(f"buffer_store_dwordx4 v[{ACC+4}:{ACC+7}], v{vYv}, s[56:59], s97 offen sc1")
    A("s_mov_b64 exec, -1")
    stamp(7)
    A("s_cmp_ge_u32 s2, 112"); A("s_cbranch_scc1 L_hend")
    lp, lo = L("py"), L("pyo")
    A(f"{lp}:")
    for i in range(4): A(f"buffer_load_dwordx4 v[{R+4*i}:{R+4*i+3}], v{vL16}, s[56:59], s88 offen offset:{1024*i} sc1")
    A("s_waitcnt vmcnt(0)")
    anyinv(range(R, R+16), T[0])
    A(f"s_cbranch_vccz {lo}")
    A("s_sub_u32 s99, s99, 1"); A(f"s_cbranch_scc0 {lp}"); A("s_branch L_end")
    A(f"{lo}:")
    stamp(8)
    for k in range(4): A(f"v_add_f32 v{R+k}, v{R+k}, v{R+4+k}"); A(f"v_add_f32 v{R+8+k}, v{R+8+k}, v{R+12+k}")
    for k in range(4): A(f"v_add_f32 v{R+k}, v{R+k}, v{R+8+k}")
    reduce4(R); row_reduce([R])
    rnd(R)
    A(f"v_mul_f32 v{R}, v{R}, v{vG}"); rnd(R)
    A(f"v_add_f32 v{R}, v{R}, v{vXo}")
    A(f"v_cvt_pk_bf16_f32 v{R}, v{R}, v{R}")
    A("s_mov_b32 exec_lo, 0x00010001"); A("s_mov_b32 exec_hi, 0x00010001")
    A(f"buffer_store_short v{R}, v{T[4]}, s[48:51], s89 offen sc1")
    A("L_hend:")
    stamp(9)
    dump_stamps(10)
    A("L_end:")
    A("s_endpgm")
    body = A.finish()
    nv = 208 if diag else 168
    out = HEADER + "; @launch grid=(256,1,1) block=(320,1,1) lds=512\n" + body
    out += f""".section .rodata,"a"
.p2align 6
.amdhsa_kernel {KN}
  .amdhsa_next_free_vgpr {nv}
  .amdhsa_next_free_sgpr 102
  .amdhsa_accum_offset {nv}
  .amdhsa_group_segment_fixed_size 0
  .amdhsa_kernarg_size 88
  .amdhsa_user_sgpr_count 2
  .amdhsa_user_sgpr_kernarg_segment_ptr 1
  .amdhsa_system_sgpr_workgroup_id_x 1
  .amdhsa_float_denorm_mode_32 3
.end_amdhsa_kernel
"""
    return out

if __name__ == "__main__":
    import json
    kw = json.loads(sys.argv[2]) if len(sys.argv) > 2 else {}
    open(sys.argv[1], "w").write(gen(**kw))
```

```python
import sys, math, struct
from asmlib import Asm
KN = "recurrent_scan__mha_block_cached__dense_activation_silu__decode_kernel"

QS, ML, HS, ZS, BC, OS, YS, TK, DG = 0x0, 0x10000, 0x20000, 0x28000, 0x30000, 0x100000, 0x200000, 0x300000, 0x380000
WS_BYTES = 0x400000
def f2u(x): return struct.unpack("<I", struct.pack("<f", x))[0]
LOG2E = 1.4426950408889634
CSC = f2u(LOG2E / 16.0)

HEADER = """; Kernarg layout for this problem (88 bytes, ptrs only, base s[0:1]):
"""

def gen(S=100, C=1, NB=4, INF=8, LEAD=4, TKW=1, diag=0, spin=200000, codepf=1, noprep=0, skip=0, wnt=1, hfirst=0, sl1=64, sl2=32):
    A = Asm()
    NT = 8192
    NV = 232
    WNT = ' nt' if wnt else ''
    lab = [0]
    def L(p):
        lab[0] += 1; return f"L_{p}{lab[0]}"
    nst = [0]
    def stamp(k):
        if diag: A(f"s_memrealtime s[{64+2*k}:{65+2*k}]")
    def dump_stamps(n):
        if not diag: return
        A("s_waitcnt vmcnt(0) lgkmcnt(0)")
        A("s_mov_b64 exec, -1")
        A("v_mov_b32 v40, 0")
        for k in range(n): A(f"v_writelane_b32 v40, s{64+2*k}, {k}")
        A("s_getreg_b32 s62, hwreg(HW_REG_XCC_ID)"); A("v_writelane_b32 v40, s62, 15"); A("v_writelane_b32 v40, s61, 14")
        A("s_mul_i32 s62, s2, 5"); A("s_add_u32 s62, s62, s3"); A("s_lshl_b32 s62, s62, 6"); A(f"s_add_u32 s62, s62, {DG}")
        A("v_lshlrev_b32 v41, 2, v0")
        A("s_mov_b64 exec, 0xffff")
        A("buffer_store_dword v40, v41, s[56:59], s62 offen")
        if diag == 2 and n == 6:
            A("s_mov_b64 exec, -1")
            A("s_lshl_b32 s62, s2, 2"); A("s_add_u32 s62, s62, s3"); A("s_lshl_b32 s62, s62, 8"); A(f"s_add_u32 s62, s62, {DG+0x20000}")
            A(f"buffer_store_dword v{NV-2}, v41, s[56:59], s62 offen")
    DPPM = "row_mask:0xf bank_mask:0xf"
    ROWSTEPS = ["quad_perm:[1,0,3,2]", "quad_perm:[2,3,0,1]", "row_half_mirror", "row_mirror"]
    def row_reduce(regs, op="v_add_f32", steps=ROWSTEPS):
        for st in steps:
            for r in regs: A(f"{op}_dpp v{r}, v{r}, v{r} {st} {DPPM}")
    def xrow_allreduce(pairs, op="v_add_f32"):
        for sw in ("v_permlane16_swap_b32", "v_permlane32_swap_b32"):
            for r, t in pairs: A(f"v_mov_b32 v{t}, v{r}")
            for r, t in pairs: A(f"{sw} v{r}, v{t}")
            for r, t in pairs: A(f"{op} v{r}, v{r}, v{t}")
    def rnd(r):
        A(f"v_cvt_pk_bf16_f32 v{r}, v{r}, v{r}"); A(f"v_and_b32 v{r}, 0xffff0000, v{r}")
    def srd(b, p, n):
        A(f"s_mov_b32 s{b}, s{p}"); A(f"s_mov_b32 s{b+1}, s{p+1}"); A(f"s_mov_b32 s{b+2}, {n}"); A(f"s_mov_b32 s{b+3}, 0x20000")

    vJ = NV - 1
    A(f".amdgcn_target \"amdgcn-amd-amdhsa--gfx950\"")
    A(".text"); A(f".globl {KN}"); A(".p2align 8"); A(f".type {KN},@function"); A(f"{KN}:")
    A("s_cmp_ge_u32 s2, 256"); A("s_cbranch_scc1 L_end")
    A("s_load_dwordx16 s[4:19], s[0:1], 0")
    A("s_load_dwordx4 s[20:23], s[0:1], 64")
    A("s_load_dwordx2 s[24:25], s[0:1], 80")
    if codepf:
        A("s_getpc_b64 s[94:95]")
        A("L_pc:")
        A("v_lshlrev_b32 v2, 6, v0"); A("v_min_u32 v2, L_end-L_pc, v2")
        A(f"global_load_dword v{vJ}, v2, s[94:95]")
    stamp(0)
    A("v_lshrrev_b32 v1, 6, v0"); A("v_and_b32 v0, 63, v0")
    A("v_readfirstlane_b32 s3, v1")
    A("s_lshr_b32 s26, s2, 4"); A("s_and_b32 s27, s2, 15")
    A("v_lshrrev_b32 v3, 4, v0"); A("v_and_b32 v4, 15, v0")
    A("s_cmp_eq_u32 s3, 4"); A("s_cbranch_scc1 L_helper")

    sHB, sCUR, sLEFT, sTK, sTKO, sDYN, sT, sC = 40, 41, 42, 43, 44, 45, 46, 47
    sOFF = [48, 49]; sBO, sSTR, sFIRST = 50, 51, 60
    vM, vNM, vL, vA, vB, vT, vU1, vU2, vU3 = 3, 4, 5, 6, 7, 8, 9, 10, 11
    vQ, vACC, vBUF = 12, 20, 36
    nA = (LEAD + 1) // 2
    A("v_lshlrev_b32 v1, 9, v3"); A("v_lshl_add_u32 v1, v4, 4, v1")
    A(f"s_lshl_b32 s{sHB}, s26, 25")
    A(f"s_mul_i32 s{sCUR}, s27, {4*S}"); A(f"s_add_u32 s{sCUR}, s{sCUR}, s3")
    A(f"s_lshl_b32 s{sT}, s{sCUR}, 12"); A(f"s_add_u32 s{sOFF[0]}, s{sT}, s{sHB}")
    A(f"s_add_u32 s{sOFF[1]}, s{sOFF[0]}, {4*4096}")
    A(f"s_add_u32 s{sBO}, s{sOFF[0]}, {nA*4*4096}")
    A("s_waitcnt lgkmcnt(0)")
    srd(28, 6, 1 << 29); srd(32, 8, 1 << 29)
    if hfirst: A("s_barrier")
    IOFF = [0, 256, 2048, 2304]
    def kv(st, isv, i): return vBUF + st*32 + isv*16 + i*4
    def load(st, isv, i, so=None):
        b = kv(st, isv, i)
        if so is None: so = sOFF[st]
        A(f"buffer_load_dwordx4 v[{b}:{b+3}], v1, s[{28+4*isv}:{31+4*isv}], s{so} offen offset:{IOFF[i]} nt")
    def pub_voff(dst, t1, t2):
        A(f"v_lshrrev_b32 v{t1}, 1, v3"); A(f"v_lshlrev_b32 v{t1}, 3, v{t1}"); A(f"v_lshrrev_b32 v{t2}, 1, v4"); A(f"v_add_u32 v{t1}, v{t1}, v{t2}")
        A(f"v_lshlrev_b32 v{dst}, 12, v{t1}")
        A(f"v_and_b32 v{t1}, 1, v4"); A(f"v_lshlrev_b32 v{t1}, 5, v{t1}"); A(f"v_and_b32 v{t2}, 1, v3"); A(f"v_lshlrev_b32 v{t2}, 4, v{t2}")
        A(f"v_or3_b32 v{dst}, v{dst}, v{t1}, v{t2}")
    def setup():
        stamp(1)
        srd(56, 24, WS_BYTES)
        pub_voff(2, 6, 7)
        A("s_lshl_b32 s54, s27, 2"); A("s_add_u32 s54, s54, s3")
        A("s_lshl_b32 s52, s26, 16"); A("s_lshl_b32 s55, s54, 6"); A("s_add_u32 s52, s52, s55"); A(f"s_add_u32 s52, s52, {OS}")
        A("s_lshl_b32 s53, s26, 9"); A("s_lshl_b32 s55, s54, 3"); A("s_add_u32 s53, s53, s55"); A(f"s_add_u32 s53, s53, {ML}")
        for i in range(16): A(f"v_mov_b32 v{vACC+i}, 0")
        A(f"s_add_u32 s{sCUR}, s{sCUR}, {4*(nA+NB)}"); A(f"s_mov_b32 s{sLEFT}, {S-nA-NB}")
        if TKW:
            A(f"s_add_u32 s{sDYN}, s3, {16*S*4}")
            A(f"s_lshl_b32 s{sTKO}, s26, 2"); A(f"s_add_u32 s{sTKO}, s{sTKO}, s3"); A(f"s_lshl_b32 s{sTKO}, s{sTKO}, 12"); A(f"s_add_u32 s{sTKO}, s{sTKO}, {TK}")
        else:
            A(f"s_mov_b32 s{sDYN}, {16*S*4}")
            A(f"s_lshl_b32 s{sTKO}, s26, 14"); A(f"s_add_u32 s{sTKO}, s{sTKO}, {TK}")
        A(f"s_mov_b32 s{sC}, {CSC}"); A(f"s_mov_b32 s{sSTR}, 4"); A(f"s_mov_b32 s{sFIRST}, 1"); A(f"s_mov_b32 s61, {NB}")
        A("v_lshlrev_b32 v8, 4, v4")
        A(f"v_mov_b32 v{vM}, 0xff7fffff"); A(f"v_mov_b32 v{vL}, 0")
        A(f"v_mul_f32 v{vNM}, s{sC}, v{vM}"); A(f"v_sub_f32 v{vNM}, 0, v{vNM}")
    items = [(n >> 1, n & 1, None) for n in range(LEAD)]
    for b in range(NB): items += [(2 + b, 0, sBO), (2 + b, 1, sBO)]
    n = 0
    for (st, isv, so) in items:
        for i in range(4):
            if n == INF: setup()
            if n >= INF: A(f"s_waitcnt vmcnt({INF-1})")
            load(st, isv, i, so); n += 1
        if so is not None and isv == 1 and st < 1 + NB: A(f"s_add_u32 s{sBO}, s{sBO}, {4*4096}")
    assert n > INF
    stamp(5)
    A("s_barrier")
    A(f"ds_read_b128 v[{vQ}:{vQ+3}], v8"); A(f"ds_read_b128 v[{vQ+4}:{vQ+7}], v8 offset:256")
    A("s_waitcnt lgkmcnt(0)")
    stamp(2)
    rare = []
    VW = 4 * (LEAD - 1)
    def newtile(dst):
        lj, ln = L("j"), L("n")
        A(f"s_cmp_gt_i32 s{sLEFT}, 0"); A(f"s_cbranch_scc1 {lj}")
        A("s_waitcnt lgkmcnt(0)")
        A(f"s_mul_i32 s{sCUR}, s{sTK}, {(4 if TKW else 1)*C}"); A(f"s_add_u32 s{sCUR}, s{sCUR}, s{sDYN}"); A(f"s_mov_b32 s{sLEFT}, {C}")
        if not TKW: A(f"s_mov_b32 s{sSTR}, 1")
        A(f"{lj}:")
        A(f"s_cmp_lg_u32 s{sLEFT}, {C}"); A(f"s_cbranch_scc1 {ln}")
        A(f"s_mov_b32 s{sTK}, 1"); A(f"s_atomic_add s{sTK}, s[24:25], s{sTKO} glc")
        A(f"{ln}:")
        A(f"s_lshl_b32 s{sT}, s{sCUR}, 12"); A(f"s_add_u32 s{sT}, s{sT}, s{sHB}")
        A(f"s_cmp_lt_u32 s{sCUR}, {NT}"); A(f"s_cselect_b32 s{dst}, s{sT}, 0x80000000")
        A(f"s_add_u32 s{sCUR}, s{sCUR}, s{sSTR}"); A(f"s_sub_i32 s{sLEFT}, s{sLEFT}, 1")
    def body(st, stream):
        o = st ^ 1
        if stream:
            A(f"s_cmp_ge_u32 s{sOFF[st]}, 0x80000000"); A("s_cbranch_scc1 L_sdone")
            if diag: A("s_add_u32 s61, s61, 1")
            if LEAD == 4: newtile(sOFF[st])
            if LEAD == 2: newtile(sOFF[o])
            A(f"s_waitcnt vmcnt({VW})")
            if LEAD == 3:
                for i in range(4): load(o, 1, i)
            if LEAD == 2:
                for i in range(4): load(o, 0, i)
        for half in range(2):
            for d in range(4):
                for (acc, i) in ((vA, half), (vB, 2 + half)):
                    c = "0" if (half == 0 and d == 0) else f"v{acc}"
                    A(f"v_dot2_f32_bf16 v{acc}, v{kv(st,0,i)+d}, v{vQ+half*4+d}, {c}")
        if stream and LEAD == 4: load(st, 0, 0); load(st, 0, 1); load(st, 0, 2)
        for k, stp in enumerate(ROWSTEPS):
            A(f"v_add_f32_dpp v{vA}, v{vA}, v{vA} {stp} {DPPM}")
            A(f"v_add_f32_dpp v{vB}, v{vB}, v{vB} {stp} {DPPM}")
            if k == 0 and stream and LEAD == 4: load(st, 0, 3)
        A(f"v_cvt_pk_bf16_f32 v{vT}, v{vA}, v{vB}")
        A(f"v_lshlrev_b32 v{vA}, 16, v{vT}"); A(f"v_and_b32 v{vB}, 0xffff0000, v{vT}")
        A(f"v_max_f32 v{vT}, v{vA}, v{vB}")
        A(f"v_cmp_gt_f32 vcc, v{vT}, v{vM}")
        lr, lb = L("rare"), L("back")
        A(f"s_cbranch_vccnz {lr}")
        A(f"{lb}:")
        rare.append((lr, lb))
        A(f"v_fma_f32 v{vA}, v{vA}, s{sC}, v{vNM}"); A(f"v_fma_f32 v{vB}, v{vB}, s{sC}, v{vNM}")
        A(f"v_exp_f32 v{vA}, v{vA}"); A(f"v_exp_f32 v{vB}, v{vB}")
        if stream:
            if LEAD == 3: newtile(sOFF[st])
            A(f"s_waitcnt vmcnt({VW})")
            if LEAD == 3:
                for i in range(4): load(st, 0, i)
            if LEAD == 2:
                for i in range(4): load(o, 1, i)
        A(f"v_cvt_pk_bf16_f32 v{vT}, v{vA}, 0"); A(f"v_cvt_pk_bf16_f32 v{vU1}, 0, v{vA}")
        A(f"v_cvt_pk_bf16_f32 v{vU2}, v{vB}, 0"); A(f"v_cvt_pk_bf16_f32 v{vU3}, 0, v{vB}")
        A(f"v_add_f32 v{vL}, v{vL}, v{vA}"); A(f"v_add_f32 v{vL}, v{vL}, v{vB}")
        for i in range(4):
            lo, hi = (vT, vU1) if i < 2 else (vU2, vU3)
            ab = vACC + (i & 1) * 8
            for d in range(4):
                A(f"v_dot2c_f32_bf16 v{ab+2*d}, v{kv(st,1,i)+d}, v{lo}")
                A(f"v_dot2c_f32_bf16 v{ab+2*d+1}, v{kv(st,1,i)+d}, v{hi}")
            if stream and LEAD == 4: load(st, 1, i)
    A(".p2align 6")
    A("L_loop:")
    if diag == 2:
        A("s_memrealtime s[86:87]"); A("s_lshr_b32 s62, s61, 1"); A("s_min_u32 m0, s62, 63"); A("s_waitcnt lgkmcnt(0)"); A(f"v_writelane_b32 v{vJ-1}, s86, m0")
    body(0, True); body(1, True)
    A(f"s_cmp_eq_u32 s{sFIRST}, 0"); A("s_cbranch_scc1 L_loop")
    A(f"s_mov_b32 s{sFIRST}, 0")
    for b in range(NB): body(2 + b, False)
    A("s_branch L_loop")
    for lr, lb in rare:
        A(f"{lr}:")
        xrow_allreduce([(vT, vU1)], "v_max_f32")
        A(f"v_max_f32 v{vT}, v{vT}, v{vM}")
        A(f"v_mul_f32 v{vNM}, s{sC}, v{vT}"); A(f"v_sub_f32 v{vNM}, 0, v{vNM}")
        A(f"v_fma_f32 v{vU1}, v{vM}, s{sC}, v{vNM}"); A(f"v_exp_f32 v{vU1}, v{vU1}")
        A(f"v_mov_b32 v{vM}, v{vT}")
        A(f"v_mul_f32 v{vL}, v{vL}, v{vU1}")
        for i in range(0, 16, 2): A(f"v_pk_mul_f32 v[{vACC+i}:{vACC+i+1}], v[{vACC+i}:{vACC+i+1}], v[{vT}:{vU1}] op_sel:[0,1] op_sel_hi:[1,1]")
        A(f"s_branch {lb}")
    A("L_sdone:")
    stamp(3)
    for i in range(8): A(f"v_permlane32_swap_b32 v{vACC+i}, v{vACC+8+i}")
    A(f"v_mov_b32 v{vT}, v{vL}")
    for i in range(8): A(f"v_add_f32 v{vACC+i}, v{vACC+i}, v{vACC+8+i}")
    A(f"v_permlane16_swap_b32 v{vL}, v{vT}")
    for i in range(4): A(f"v_permlane16_swap_b32 v{vACC+i}, v{vACC+4+i}")
    A(f"v_add_f32 v{vL}, v{vL}, v{vT}")
    for i in range(4): A(f"v_add_f32 v{vACC+i}, v{vACC+i}, v{vACC+4+i}")
    A(f"v_mov_b32 v{vT}, v{vL}")
    for i in range(4): A(f"v_min_u32 v{vACC+i}, -2, v{vACC+i}")
    A(f"v_permlane32_swap_b32 v{vL}, v{vT}")
    A(f"v_min_u32 v{vA}, -2, v{vM}")
    A(f"v_add_f32 v{vB}, v{vL}, v{vT}")
    A(f"v_min_u32 v{vB}, -2, v{vB}")
    A("s_barrier")
    A(f"buffer_store_dwordx4 v[{vACC}:{vACC+3}], v2, s[56:59], s52 offen sc1")
    A("s_mov_b64 exec, 1")
    A(f"buffer_store_dwordx2 v[{vA}:{vB}], off, s[56:59], s53 sc1")
    stamp(4)
    dump_stamps(6)
    A("s_endpgm")

    A("L_helper:")
    A("s_setprio 3")
    X = 8
    XLO, XHI = 16, 24
    ACC = 32
    W = 48
    R = 112
    vM1 = 144
    vMean, vYv, vZv, vQv, vL4, vRs, vL16 = 148, 149, 150, 151, 152, 153, 154
    T = [156, 157, 158, 159, 160, 161, 162, 163]
    vF0, vF = 155, 164
    XA, XAF, XB, XBF = 8, 16, 24, 112
    A(f"v_lshlrev_b32 v{vL16}, 4, v0")
    A(f"v_lshrrev_b32 v{T[0]}, 3, v0")
    A(f"v_mul_u32_u24 v{T[1]}, 28, v{T[0]}")
    A(f"v_mul_u32_u24 v{T[2]}, {14*8192}, v{T[0]}")
    A(f"v_and_b32 v{T[3]}, 7, v0")
    A(f"v_lshl_add_u32 v{T[2]}, v{T[3]}, 4, v{T[2]}")
    A("s_lshr_b32 s61, s27, 2")
    A("s_mul_i32 s60, s61, 224")
    A(f"s_mul_i32 s62, s61, {112*8192}"); A("s_lshl_b32 s63, s26, 9"); A("s_add_u32 s62, s62, s63")
    A("s_and_b32 s63, s27, 3"); A("s_lshl_b32 s63, s63, 7"); A("s_add_u32 s62, s62, s63")
    A("s_lshl_b32 s93, s26, 12")
    lnc = L("noclr")
    A("s_cmp_lg_u32 s27, 0")
    A("s_waitcnt lgkmcnt(0)")
    srd(56, 24, WS_BYTES)
    A(f"s_cbranch_scc1 {lnc}")
    for i in range(4): A(f"v_mov_b32 v{vM1+i}, -1")
    for i in range(4): A(f"buffer_store_dwordx4 v[{vM1}:{vM1+3}], v{vL16}, s[56:59], s93 offen offset:{1024*i} sc1")
    A(f"v_lshlrev_b32 v{T[4]}, 12, v0"); A(f"v_mov_b32 v{T[5]}, 0")
    A("s_lshl_b32 s61, s26, 14"); A(f"s_add_u32 s61, s61, {TK}")
    A("s_mov_b64 exec, 15")
    A(f"buffer_store_dword v{T[5]}, v{T[4]}, s[56:59], s61 offen sc1")
    A("s_mov_b64 exec, -1")
    A(f"{lnc}:")
    srd(28, 4, 896); srd(32, 10, 448*4096*2)
    A(f"buffer_load_dwordx4 v[{XA}:{XA+3}], v{vL16}, s[28:31], 0 offen")
    A(f"buffer_load_dwordx4 v[{XB}:{XB+3}], v{T[1]}, s[28:31], s60 offen")
    A(f"buffer_load_dwordx3 v[{XB+4}:{XB+6}], v{T[1]}, s[28:31], s60 offen offset:16")
    for i in range(14):
        A(f"buffer_load_dwordx4 v[{W+4*i}:{W+4*i+3}], v{T[2]}, s[32:35], s62 offen{WNT}")
        if i < 13: A("s_add_u32 s62, s62, 8192")
    if hfirst: A("s_barrier")
    srd(52, 22, 256)
    for i in range(4): A(f"v_mov_b32 v{vM1+i}, -1")
    for i in range(8): A(f"v_mov_b32 v{ACC+i}, 0")
    A(f"v_lshlrev_b32 v{vQv}, 5, v{T[3]}"); A(f"v_lshrrev_b32 v{T[4]}, 5, v0"); A(f"v_lshl_add_u32 v{vQv}, v{T[4]}, 4, v{vQv}")
    A(f"v_and_b32 v{T[4]}, 1, v3"); A(f"v_lshl_add_u32 v{vQv}, v{T[4]}, 3, v{vQv}")
    def qpub(src, so):
        A("s_mov_b32 exec_lo, 0x00ff00ff"); A("s_mov_b32 exec_hi, 0x00ff00ff")
        A(f"buffer_store_dwordx2 v[{src}:{src+1}], v{vQv}, s[56:59], s{so} offen sc1")
        A("s_mov_b64 exec, -1")
    NCL = 0 if skip & 2 else 11
    A("s_lshl_b32 s62, s2, 12"); A(f"s_add_u32 s86, s62, {YS}"); A(f"s_add_u32 s87, s62, {OS}")
    A("s_lshl_b32 s47, s2, 7"); A(f"s_add_u32 s47, s47, {BC}")
    if NCL:
        for i in range(4): A(f"buffer_store_dwordx4 v[{vM1}:{vM1+3}], v{vL16}, s[56:59], s87 offen offset:{1024*i} sc1")
        A("s_cmp_lt_u32 s2, 112"); A("s_cselect_b32 s62, s86, 0x80000000")
        for i in range(4): A(f"buffer_store_dwordx4 v[{vM1}:{vM1+3}], v{vL16}, s[56:59], s62 offen offset:{1024*i} sc1")
        A("s_lshl_b32 s62, s2, 5"); A(f"s_add_u32 s62, s62, {ML}")
        A("s_mov_b64 exec, 3")
        A(f"buffer_store_dwordx4 v[{vM1}:{vM1+3}], v{vL16}, s[56:59], s62 offen sc1")
        A("s_mov_b64 exec, 1")
        A(f"buffer_store_dword v{vM1}, off, s[56:59], s47 sc1")
        A("s_mov_b64 exec, -1")
    A("s_lshr_b32 s61, s27, 2")
    A("s_lshl_b32 s62, s26, 2"); A("s_and_b32 s63, s27, 3"); A("s_add_u32 s62, s62, s63")
    A(f"s_mul_i32 s44, s61, {112*3584}"); A("s_lshl_b32 s63, s62, 7"); A("s_add_u32 s44, s44, s63")
    A("s_mul_i32 s45, s61, 7168"); A("s_lshl_b32 s63, s62, 8"); A("s_add_u32 s45, s45, s63"); A(f"s_add_u32 s45, s45, {HS}")
    A("s_sub_u32 s62, s26, 7")
    A(f"s_mul_i32 s60, s27, {112*896}"); A("s_lshl_b32 s63, s62, 7"); A("s_add_u32 s60, s60, s63")
    A("s_mul_i32 s61, s27, 1792"); A("s_lshl_b32 s63, s62, 8"); A("s_add_u32 s61, s61, s63"); A(f"s_add_u32 s61, s61, {ZS}")
    A("s_cmp_lt_u32 s2, 112")
    A("s_cselect_b32 s40, s16, s18"); A("s_cselect_b32 s41, s17, s19")
    A("s_cselect_b32 s44, s44, s60"); A("s_cselect_b32 s45, s45, s61")
    A("s_movk_i32 s46, 896"); A("s_cselect_b32 s46, 3584, s46")
    NR = 0 if skip & 4 else 224
    A(f"s_cmp_lt_u32 s2, {NR}")
    A(f"s_cselect_b32 s42, {448*1792*2}, 0"); A("s_mov_b32 s43, 0x20000")
    A("s_cselect_b32 s45, s45, 0x80000000")
    if NCL: qpub(vM1, 45)
    A("s_lshl_b32 s60, s2, 8")
    A("s_cmp_eq_u32 s27, 0"); A("s_cselect_b32 s61, s2, 0x1000")
    A("s_lshl_b32 s92, s26, 4")
    A(f"s_mov_b32 s90, 0x05040100"); A(f"s_mov_b32 s91, 0x07060302")
    A(f"s_mov_b32 s62, {f2u(1.0/448.0)}"); A(f"s_mov_b32 s63, {f2u(448.0)}")
    A("s_mov_b32 s88, -1"); A("s_mov_b32 s89, 0x00ffffff")
    A(f"s_mov_b32 s99, {spin}")
    A(f"v_mov_b32 v{T[0]}, 1")
    A(f"s_waitcnt vmcnt({14+NCL})")
    stamp(1)
    A("s_mov_b64 exec, 1")
    A(f"buffer_store_byte v{T[0]}, off, s[52:55], s61 sc1")
    A(f"buffer_load_ubyte v{vF0}, off, s[52:55], s92 sc1")
    A("s_mov_b64 exec, -1")
    def unpack(dst, src):
        return [f"v_lshlrev_b32 v{dst}, 16, v{src}", f"v_and_b32 v{dst+1}, 0xffff0000, v{src}"]
    def pr(r): return f"v[{r}:{r+1}]"
    def weave(chain, fill, k=2):
        fill = list(fill)
        for c in chain:
            A(c)
            for _ in range(k):
                if fill: A(fill.pop(0))
        for f in fill: A(f)
    def allred(r, t):
        ch = [f"v_add_f32_dpp v{r}, v{r}, v{r} {st} {DPPM}" for st in ROWSTEPS]
        for sw in ("v_permlane16_swap_b32", "v_permlane32_swap_b32"):
            ch += [f"v_mov_b32 v{t}, v{r}", f"{sw} v{r}, v{t}", f"v_add_f32 v{r}, v{r}, v{t}"]
        return ch
    def div448(r, t):
        return [f"v_mul_f32 v{t}, s62, v{r}", f"v_fma_f32 v{r}, -v{t}, s63, v{r}", f"v_fma_f32 v{r}, v{r}, s62, v{t}"]
    def rndl(r): return [f"v_cvt_pk_bf16_f32 v{r}, v{r}, v{r}", f"v_and_b32 v{r}, 0xffff0000, v{r}"]
    s_, t_, q_, u_ = T[0], T[1], T[2], T[3]
    for k in range(4):
        for ins in unpack(XAF+2*k, XA+k): A(ins)
    A(f"v_pk_add_f32 {pr(T[4])}, {pr(XAF)}, {pr(XAF+2)}"); A(f"v_pk_add_f32 {pr(T[6])}, {pr(XAF+4)}, {pr(XAF+6)}")
    A(f"v_pk_add_f32 {pr(T[4])}, {pr(T[4])}, {pr(T[6])}")
    A(f"v_add_f32 v{s_}, v{T[4]}, v{T[5]}")
    fillB = []
    for k in range(7): fillB += unpack(XBF+2*k, XB+k)
    weave(allred(s_, t_) + div448(s_, t_), fillB, 2)
    BCST = "op_sel:[0,0] op_sel_hi:[1,0]"
    for k in range(4): A(f"v_pk_add_f32 {pr(XAF+2*k)}, {pr(XAF+2*k)}, {pr(s_)} {BCST} neg_lo:[0,1] neg_hi:[0,1]")
    A(f"v_cvt_pk_bf16_f32 v{vMean}, v{s_}, v{s_}")
    A(f"v_pk_mul_f32 {pr(T[4])}, {pr(XAF)}, {pr(XAF)}"); A(f"v_pk_mul_f32 {pr(T[6])}, {pr(XAF+2)}, {pr(XAF+2)}")
    A(f"v_and_b32 v{vMean}, 0xffff0000, v{vMean}")
    A(f"v_pk_fma_f32 {pr(T[4])}, {pr(XAF+4)}, {pr(XAF+4)}, {pr(T[4])}"); A(f"v_pk_fma_f32 {pr(T[6])}, {pr(XAF+6)}, {pr(XAF+6)}, {pr(T[6])}")
    A(f"v_pk_add_f32 {pr(T[4])}, {pr(T[4])}, {pr(T[6])}")
    A(f"v_add_f32 v{q_}, v{T[4]}, v{T[5]}")
    A(f"v_cndmask_b32 v{q_}, 0, v{q_}, s[88:89]")
    fillB = []
    for k in range(7): fillB.append(f"v_pk_add_f32 {pr(XBF+2*k)}, {pr(XBF+2*k)}, {pr(vMean)} {BCST} neg_lo:[0,1] neg_hi:[0,1]")
    for k in range(7): fillB.append(f"v_cvt_pk_bf16_f32 v{XB+k}, v{XBF+2*k}, v{XBF+2*k+1}")
    for k in range(7): fillB += unpack(XBF+2*k, XB+k)
    chain = allred(q_, t_) + div448(q_, t_) + rndl(q_) + [f"v_add_f32 v{q_}, {f2u(1e-5)}, v{q_}"] + rndl(q_) + [f"v_sqrt_f32 v{q_}, v{q_}"] + rndl(q_) + [f"v_rcp_f32 v{T[4]}, v{q_}"]
    weave(chain, fillB, 2)
    A(f"v_mov_b32 v{vRs}, v{T[4]}")
    for k in range(7): A(f"v_pk_mul_f32 {pr(XBF+2*k)}, {pr(XBF+2*k)}, {pr(T[4])} {BCST}")
    for k in range(7): A(f"v_cvt_pk_bf16_f32 v{XB+k}, v{XBF+2*k}, v{XBF+2*k+1}")
    def slice_dot(Wb, waits):
        for k in range(7):
            if waits: A(f"s_waitcnt vmcnt({14+NCL-2*k})")
            for c in range(4):
                a, b = Wb + 8*k + c, Wb + 8*k + 4 + c
                A(f"v_perm_b32 v{T[c]}, v{b}, v{a}, s90"); A(f"v_perm_b32 v{b}, v{b}, v{a}, s91")
            for c in range(4):
                A(f"v_dot2c_f32_bf16 v{ACC+2*c}, v{T[c]}, v{XB+k}")
                A(f"v_dot2c_f32_bf16 v{ACC+2*c+1}, v{Wb+8*k+4+c}, v{XB+k}")
        for i in range(4): A(f"v_permlane32_swap_b32 v{ACC+i}, v{ACC+4+i}")
        for i in range(4): A(f"v_add_f32 v{ACC+i}, v{ACC+i}, v{ACC+4+i}")
        for i in range(2): A(f"v_permlane16_swap_b32 v{ACC+i}, v{ACC+2+i}")
        for i in range(2): A(f"v_add_f32 v{ACC+i}, v{ACC+i}, v{ACC+2+i}")
        for i in range(2): A(f"v_add_f32_dpp v{ACC+i}, v{ACC+i}, v{ACC+i} row_ror:8 {DPPM}")
        for i in range(2): A(f"v_min_u32 v{ACC+i}, -2, v{ACC+i}")
    slice_dot(W, True)
    A("s_waitcnt vmcnt(2)")
    qpub(ACC, 60)
    stamp(2)
    def anyinv(regs, t):
        regs = list(regs)
        A(f"v_max3_u32 v{t}, v{regs[0]}, v{regs[1]}, v{regs[2]}")
        rest = regs[3:]
        t2 = t + 1
        if len(rest) >= 3:
            A(f"v_max3_u32 v{t2}, v{rest[0]}, v{rest[1]}, v{rest[2]}"); rest = rest[3:]
            cur = [t, t2]; k = 0
            while rest:
                if len(rest) >= 2: A(f"v_max3_u32 v{cur[k]}, v{cur[k]}, v{rest[0]}, v{rest[1]}"); rest = rest[2:]
                else: A(f"v_max_u32 v{cur[k]}, v{cur[k]}, v{rest[0]}"); rest = []
                k ^= 1
            A(f"v_max_u32 v{t}, v{t}, v{t2}")
        else:
            for r in rest: A(f"v_max_u32 v{t}, v{t}, v{r}")
        A(f"v_cmp_eq_u32 vcc, -1, v{t}")
    lp, lo, l2, l3, l4 = L("pq"), L("pqo"), L("pqn"), L("pqs"), L("pqr")
    A("s_waitcnt vmcnt(1)")
    A(f"v_readfirstlane_b32 s61, v{vF0}")
    A("s_and_b32 s61, s61, 1")
    A(f"{lp}:")
    A("s_bitcmp1_b32 s61, 0"); A(f"s_cbranch_scc1 {l3}")
    A(f"buffer_load_ubyte v{vF}, off, s[52:55], s92 sc1")
    A("s_waitcnt vmcnt(0)")
    A(f"v_readfirstlane_b32 s61, v{vF}")
    A("s_and_b32 s61, s61, 1")
    A(f"s_branch {l4}")
    A(f"{l3}:")
    for i in range(4): A(f"buffer_load_dwordx4 v[{R+4*i}:{R+4*i+3}], v{vL16}, s[56:59], s93 offen offset:{1024*i} sc1")
    A("s_waitcnt vmcnt(0)")
    anyinv(range(R, R+16), T[0])
    A(f"s_cbranch_vccz {lo}")
    A("s_bitcmp1_b32 s61, 2"); A(f"s_cbranch_scc1 {l4}")
    qpub(ACC, 60)
    A("s_or_b32 s61, s61, 4")
    A(f"{l4}:")
    A("s_sub_u32 s99, s99, 1"); A(f"s_cbranch_scc0 {lp}"); A("s_branch L_end")
    A(f"{lo}:")
    for k in range(0, 4, 2):
        A(f"v_pk_add_f32 {pr(R+k)}, {pr(R+k)}, {pr(R+4+k)}"); A(f"v_pk_add_f32 {pr(R+8+k)}, {pr(R+8+k)}, {pr(R+12+k)}")
    for k in range(0, 4, 2): A(f"v_pk_add_f32 {pr(R+k)}, {pr(R+k)}, {pr(R+8+k)}")
    A(f"v_lshlrev_b32 v{T[2]}, 3, v0")
    A(f"v_cvt_pk_bf16_f32 v{T[0]}, v{R}, v{R+1}"); A(f"v_cvt_pk_bf16_f32 v{T[1]}, v{R+2}, v{R+3}")
    A(f"ds_write_b64 v{T[2]}, v[{T[0]}:{T[1]}]")
    stamp(10)
    A("s_waitcnt lgkmcnt(0)")
    A("s_barrier")
    stamp(3)
    A("s_setprio 0")
    if noprep:
        for k in range(4, 10): stamp(k)
        A("s_barrier"); A("s_branch L_hend")
    W2 = 168
    srd(36, 12, 4096*448*2); srd(48, 20, 896)
    A(f"v_lshlrev_b32 v{vYv}, 13, v0")
    A(f"v_lshlrev_b32 v{vL4}, 2, v0")
    A(f"v_mov_b32 v{T[0]}, 1")
    A("s_add_u32 s62, s2, 1"); A("s_cmp_eq_u32 s27, 0"); A("s_cselect_b32 s62, s62, 0x1000")
    A("s_mov_b64 exec, 1")
    if not skip & 1: A(f"buffer_store_byte v{T[0]}, off, s[52:55], s62 sc1")
    A("s_mov_b64 exec, -1")
    A(f"v_lshrrev_b32 v{T[0]}, 3, v0"); A(f"v_mul_u32_u24 v{T[1]}, 14, v{T[0]}"); A(f"v_mul_u32_u24 v{T[2]}, s46, v{T[1]}")
    A(f"v_and_b32 v{T[3]}, 7, v0"); A(f"v_lshl_add_u32 v{T[2]}, v{T[3]}, 4, v{T[2]}")
    for i in range(14):
        A(f"buffer_load_dwordx4 v[{W2+4*i}:{W2+4*i+3}], v{T[2]}, s[40:43], s44 offen{WNT}")
        if i < 13: A("s_add_u32 s44, s44, s46")
    A(f"s_mul_i32 s62, s2, {16*896}")
    if skip & 8: A("s_mov_b32 s38, 0")
    for r in range(16):
        A(f"buffer_load_dwordx4 v[{W+4*r}:{W+4*r+3}], v{vL16}, s[36:39], s62 offen offset:{(r%4)*896}{WNT}")
        if r % 4 == 3 and r < 15: A(f"s_add_u32 s62, s62, {4*896}")
    A(f"v_lshlrev_b32 v{T[6]}, 1, v{T[1]}")
    A("s_lshl_b32 s96, s2, 4"); A(f"s_add_u32 s97, s96, {YS+4096}"); A(f"s_add_u32 s96, s96, {YS}")
    for i in range(8): A(f"v_mov_b32 v{ACC+i}, 0")
    A("s_waitcnt vmcnt(0)")
    for k in range(8):
        for c in range(4):
            a, b = W + 8*k + c, W + 8*k + 4 + c
            A(f"v_perm_b32 v{T[0]}, v{b}, v{a}, s90"); A(f"v_perm_b32 v{b}, v{b}, v{a}, s91"); A(f"v_mov_b32 v{a}, v{T[0]}")
    def spin_or_end(lp, sleep):
        if sleep: A(f"s_sleep {sleep}")
        A("s_sub_u32 s99, s99, 1"); A(f"s_cbranch_scc0 {lp}"); A("s_branch L_end")
    if not skip & 1:
        lp, lo, ln = L("pf"), L("pfo"), L("pfn")
        A("s_cmp_lg_u32 s27, 0"); A(f"s_cbranch_scc1 {ln}")
        A(f"v_lshlrev_b32 v{T[1]}, 4, v4")
        A(f"{lp}:")
        A(f"buffer_load_dword v{T[0]}, v{T[1]}, s[52:55], 0 offen sc1")
        A("s_waitcnt vmcnt(0)")
        A(f"v_and_b32 v{T[0]}, 0x100, v{T[0]}")
        A(f"v_cmp_eq_u32 vcc, 0, v{T[0]}")
        A(f"s_cbranch_vccz {lo}")
        spin_or_end(lp, sl2)
        A(f"{lo}:")
        A(f"v_lshlrev_b32 v{T[1]}, 7, v0"); A(f"v_mov_b32 v{T[0]}, 1")
        A("s_mov_b64 exec, 0xffff")
        A(f"buffer_store_dword v{T[0]}, v{T[1]}, s[56:59], s47 offen sc1")
        A("s_mov_b64 exec, -1")
        A(f"{ln}:")
        lp, lo = L("pg"), L("pgo")
        A(f"{lp}:")
        A(f"buffer_load_dword v{T[0]}, off, s[56:59], s47 sc1")
        A("s_waitcnt vmcnt(0)")
        A(f"v_cmp_eq_u32 vcc, -1, v{T[0]}")
        A(f"s_cbranch_vccz {lo}")
        spin_or_end(lp, sl1)
        A(f"{lo}:")
    SP = 4
    def row_dot():
        for k in range(8):
            for c in range(4):
                cc = ["0", "0"] if k == 0 else [f"v{ACC+2*c}", f"v{ACC+2*c+1}"]
                A(f"v_dot2_f32_bf16 v{ACC+2*c}, v{W+8*k+c}, s{SP+k}, {cc[0]}")
                A(f"v_dot2_f32_bf16 v{ACC+2*c+1}, v{W+8*k+4+c}, s{SP+k}, {cc[1]}")
        for i in range(8): A(f"v_min_u32 v{ACC+i}, -2, v{ACC+i}")
    def silu(regs, tmps):
        A(f"s_mov_b32 s62, {f2u(-LOG2E)}")
        for r, t in zip(regs, tmps): A(f"v_mul_f32 v{t}, s62, v{r}")
        for r, t in zip(regs, tmps): A(f"v_exp_f32 v{t}, v{t}")
        for r, t in zip(regs, tmps): A(f"v_add_f32 v{t}, 1.0, v{t}")
        for r, t in zip(regs, tmps): A(f"v_rcp_f32 v{t}, v{t}")
        for r, t in zip(regs, tmps): A(f"v_mul_f32 v{r}, v{r}, v{t}")
    vG, vXo = 8, 9
    def reduce4(a):
        A(f"v_permlane32_swap_b32 v{a}, v{a+2}"); A(f"v_permlane32_swap_b32 v{a+1}, v{a+3}")
        A(f"v_add_f32 v{a}, v{a}, v{a+2}"); A(f"v_add_f32 v{a+1}, v{a+1}, v{a+3}")
        A(f"v_permlane16_swap_b32 v{a}, v{a+1}")
        A(f"v_add_f32 v{a}, v{a}, v{a+1}")
    lz3, lr1 = L("noz"), L("r1")
    A(f"v_lshlrev_b32 v{T[4]}, 1, v3")
    A("s_lshl_b32 s89, s2, 3")
    A(f"s_cmp_ge_u32 s2, {NR}"); A(f"s_cbranch_scc1 {lz3}")
    A("s_cmp_lt_u32 s2, 112"); A(f"s_cbranch_scc1 {lr1}")
    A("s_mul_i32 s62, s27, 448"); A(f"s_add_u32 s62, s62, {HS}"); A("s_add_u32 s63, s62, 14336")
    A(f"v_min_u32 v{T[5]}, 55, v0"); A(f"v_lshlrev_b32 v{T[5]}, 3, v{T[5]}"); A(f"v_add_u32 v{T[7]}, 7168, v{T[5]}")
    lp, lo = L("ph"), L("pho")
    A(f"{lp}:")
    A(f"buffer_load_dwordx2 v[{R}:{R+1}], v{T[5]}, s[56:59], s62 offen sc1")
    A(f"buffer_load_dwordx2 v[{R+2}:{R+3}], v{T[7]}, s[56:59], s62 offen sc1")
    A(f"buffer_load_dwordx2 v[{R+4}:{R+5}], v{T[5]}, s[56:59], s63 offen sc1")
    A(f"buffer_load_dwordx2 v[{R+6}:{R+7}], v{T[7]}, s[56:59], s63 offen sc1")
    A("s_waitcnt vmcnt(0)")
    anyinv(range(R, R+8), T[0])
    A(f"s_cbranch_vccz {lo}")
    spin_or_end(lp, sl2)
    A(f"{lo}:")
    A(f"v_pk_add_f32 {pr(R)}, {pr(R)}, {pr(R+2)}"); A(f"v_pk_add_f32 {pr(R+4)}, {pr(R+4)}, {pr(R+6)}")
    A(f"v_pk_add_f32 {pr(R)}, {pr(R)}, {pr(R+4)}")
    rnd(R); rnd(R+1)
    silu([R, R+1], T[:2])
    A(f"v_cvt_pk_bf16_f32 v{R}, v{R}, v{R+1}")
    for k in range(7): A(f"ds_bpermute_b32 v{XB+k}, v{T[6]}, v{R} offset:{4*k}")
    A("s_waitcnt lgkmcnt(0)")
    A(f"{lr1}:")
    slice_dot(W2, False)
    qpub(ACC, 45)
    A("s_cmp_ge_u32 s2, 112"); A(f"s_cbranch_scc1 {lz3}")
    A(f"buffer_load_ushort v{vXo}, v{T[4]}, s[28:31], s89 offen")
    A(f"v_mul_u32_u24 v{T[5]}, 1792, v4"); A(f"v_lshl_add_u32 v{T[5]}, v3, 2, v{T[5]}")
    A("s_lshl_b32 s62, s2, 4"); A(f"s_add_u32 s62, s62, {ZS}")
    lp, lo = L("pz"), L("pzo")
    A(f"s_sleep {sl1}")
    A(f"{lp}:")
    A(f"buffer_load_dword v{R}, v{T[5]}, s[56:59], s62 offen sc1")
    A("s_waitcnt vmcnt(0)")
    A(f"v_cmp_eq_u32 vcc, -1, v{R}")
    A(f"s_cbranch_vccz {lo}")
    spin_or_end(lp, sl1)
    A(f"{lo}:")
    row_reduce([R])
    rnd(R); silu([R], [T[0]]); rnd(R)
    A(f"v_mov_b32 v{vG}, v{R}")
    A(f"v_lshlrev_b32 v{vXo}, 16, v{vXo}")
    A(f"{lz3}:")
    A("s_mov_b32 s62, s87")
    A("s_lshl_b32 s63, s26, 9"); A(f"s_add_u32 s63, s63, {ML}")
    A(f"v_lshrrev_b32 v{T[5]}, 2, v0"); A(f"v_lshlrev_b32 v{T[5]}, 3, v{T[5]}")
    A(f"s_mov_b32 s61, {CSC}")
    A("s_setprio 3")
    stamp(4)
    A("s_barrier")
    stamp(5)
    MLr = R + 16
    lp, lo = L("po"), L("poo")
    A(f"{lp}:")
    for i in range(4): A(f"buffer_load_dwordx2 v[{MLr+2*i}:{MLr+2*i+1}], v{T[5]}, s[56:59], s63 offen offset:{128*i} sc1")
    for i in range(4): A(f"buffer_load_dwordx4 v[{R+4*i}:{R+4*i+3}], v{vL16}, s[56:59], s62 offen offset:{1024*i} sc1")
    A("s_waitcnt vmcnt(0)")
    anyinv(range(R, R+24), T[0])
    A(f"s_cbranch_vccz {lo}")
    A("s_sub_u32 s99, s99, 1"); A(f"s_cbranch_scc0 {lp}"); A("s_branch L_end")
    A(f"{lo}:")
    stamp(6)
    GSTEPS = ["row_ror:4", "row_ror:8"]
    mx, tt = T[0], T[1]
    A(f"v_max3_f32 v{mx}, v{MLr}, v{MLr+2}, v{MLr+4}"); A(f"v_max_f32 v{mx}, v{mx}, v{MLr+6}")
    row_reduce([mx], "v_max_f32", GSTEPS); xrow_allreduce([(mx, tt)], "v_max_f32")
    A(f"v_mul_f32 v{mx}, s61, v{mx}")
    for i in range(4): A(f"v_fma_f32 v{MLr+2*i}, v{MLr+2*i}, s61, -v{mx}")
    for i in range(4): A(f"v_exp_f32 v{MLr+2*i}, v{MLr+2*i}")
    ls = T[2]
    A(f"v_mul_f32 v{ls}, v{MLr}, v{MLr+1}")
    for k in range(4): A(f"v_mul_f32 v{R+k}, v{MLr}, v{R+k}")
    for i in range(1, 4):
        A(f"v_fmac_f32 v{ls}, v{MLr+2*i}, v{MLr+2*i+1}")
        for k in range(4): A(f"v_fmac_f32 v{R+k}, v{MLr+2*i}, v{R+4*i+k}")
    A(f"v_permlane32_swap_b32 v{R}, v{R+2}"); A(f"v_permlane32_swap_b32 v{R+1}, v{R+3}")
    A(f"v_add_f32_dpp v{ls}, v{ls}, v{ls} row_ror:4 {DPPM}")
    A(f"v_add_f32 v{R}, v{R}, v{R+2}"); A(f"v_add_f32 v{R+1}, v{R+1}, v{R+3}")
    A(f"v_add_f32_dpp v{ls}, v{ls}, v{ls} row_ror:8 {DPPM}")
    A(f"v_permlane16_swap_b32 v{R}, v{R+1}")
    A(f"v_mov_b32 v{tt}, v{ls}")
    A(f"v_add_f32 v{R}, v{R}, v{R+1}")
    A(f"v_permlane16_swap_b32 v{ls}, v{tt}")
    A(f"v_add_f32_dpp v{R}, v{R}, v{R} row_ror:4 {DPPM}")
    A(f"v_add_f32 v{ls}, v{ls}, v{tt}")
    A(f"v_mov_b32 v{tt}, v{ls}")
    A(f"v_add_f32_dpp v{R}, v{R}, v{R} row_ror:8 {DPPM}")
    A(f"v_permlane32_swap_b32 v{ls}, v{tt}")
    A(f"v_add_f32 v{ls}, v{ls}, v{tt}")
    A(f"v_rcp_f32 v{ls}, v{ls}")
    A(f"v_mul_f32 v{R}, v{R}, v{ls}")
    A(f"v_mov_b32 v{R+1}, v{R}")
    A(f"v_permlane16_swap_b32 v{R}, v{R+1}")
    A(f"v_cvt_pk_bf16_f32 v{R}, v{R}, v{R+1}")
    for t in range(4):
        A(f"v_readlane_b32 s{SP+2*t}, v{R}, {t}"); A(f"v_readlane_b32 s{SP+2*t+1}, v{R}, {32+t}")
    row_dot()
    A("s_mov_b32 exec_hi, 0x00ffffff")
    A(f"buffer_store_dwordx4 v[{ACC}:{ACC+3}], v{vYv}, s[56:59], s96 offen sc1")
    A(f"buffer_store_dwordx4 v[{ACC+4}:{ACC+7}], v{vYv}, s[56:59], s97 offen sc1")
    A("s_mov_b64 exec, -1")
    stamp(7)
    A("s_cmp_ge_u32 s2, 112"); A("s_cbranch_scc1 L_hend")
    lp, lo = L("py"), L("pyo")
    A(f"{lp}:")
    for i in range(4): A(f"buffer_load_dwordx4 v[{R+4*i}:{R+4*i+3}], v{vL16}, s[56:59], s86 offen offset:{1024*i} sc1")
    A("s_waitcnt vmcnt(0)")
    anyinv(range(R, R+16), T[0])
    A(f"s_cbranch_vccz {lo}")
    A("s_sub_u32 s99, s99, 1"); A(f"s_cbranch_scc0 {lp}"); A("s_branch L_end")
    A(f"{lo}:")
    stamp(8)
    for k in range(4): A(f"v_add_f32 v{R+k}, v{R+k}, v{R+4+k}"); A(f"v_add_f32 v{R+8+k}, v{R+8+k}, v{R+12+k}")
    for k in range(4): A(f"v_add_f32 v{R+k}, v{R+k}, v{R+8+k}")
    reduce4(R); row_reduce([R])
    rnd(R)
    A(f"v_mul_f32 v{R}, v{R}, v{vG}"); rnd(R)
    A(f"v_add_f32 v{R}, v{R}, v{vXo}")
    A(f"v_cvt_pk_bf16_f32 v{R}, v{R}, v{R}")
    A("s_mov_b32 exec_lo, 0x00010001"); A("s_mov_b32 exec_hi, 0x00010001")
    A(f"buffer_store_short v{R}, v{T[4]}, s[48:51], s89 offen sc1")
    A("L_hend:")
    stamp(9)
    dump_stamps(11)
    A("L_end:")
    A("s_endpgm")
    body = A.finish()
    nv = NV
    out = HEADER + "; @launch grid=(256,1,1) block=(320,1,1) lds=512\n" + body
    out += f""".section .rodata,"a"
.p2align 6
.amdhsa_kernel {KN}
  .amdhsa_next_free_vgpr {nv}
  .amdhsa_next_free_sgpr 102
  .amdhsa_accum_offset {nv}
  .amdhsa_group_segment_fixed_size 0
  .amdhsa_kernarg_size 88
  .amdhsa_user_sgpr_count 2
  .amdhsa_user_sgpr_kernarg_segment_ptr 1
  .amdhsa_system_sgpr_workgroup_id_x 1
  .amdhsa_float_denorm_mode_32 3
.end_amdhsa_kernel
"""
    return out

if __name__ == "__main__":
    import json
    kw = json.loads(sys.argv[2]) if len(sys.argv) > 2 else {}
    open(sys.argv[1], "w").write(gen(**kw))
```

```python
import sys, math, struct
from asmlib import Asm
KN = "recurrent_scan__mha_block_cached__dense_activation_silu__decode_kernel"

QS, ML, HS, ZS, EP, OS, YS, TK, DG = 0x0, 0x10000, 0x20000, 0x28000, 0x38000, 0x100000, 0x200000, 0x300000, 0x380000
WS_BYTES = 0x400000
def f2u(x): return struct.unpack("<I", struct.pack("<f", x))[0]
LOG2E = 1.4426950408889634
CSC = f2u(LOG2E / 16.0)

HEADER = """; Kernarg layout for this problem (88 bytes, ptrs only, base s[0:1]):
"""

def gen(S=112, C=1, NB=4, INF=8, LEAD=4, TKW=1, diag=0, spin=200000, codepf=1, noprep=0, skip=0, wnt=1, hfirst=0, sl1=64, sl2=32, early=1, NP=2, slq=16, NPT=1, slt=0, NPY=1, sly=0, MQ=0, MO=1, MY=1, PAIR=0, PL=8, PORD=0, SRV=0, AH=2, sls=8, PM=1, sls0=0, LDS_='sc1', STS='sc1'):
    A = Asm()
    NT = 8192
    NV = 232
    WNT = ' nt' if wnt else ''
    lab = [0]
    def L(p):
        lab[0] += 1; return f"L_{p}{lab[0]}"
    nst = [0]
    def stamp(k):
        if diag: A(f"s_memrealtime s[{64+2*k}:{65+2*k}]")
    def dump_stamps(n):
        if not diag: return
        A("s_waitcnt vmcnt(0) lgkmcnt(0)")
        A("s_mov_b64 exec, -1")
        A("v_mov_b32 v40, 0")
        for k in range(n): A(f"v_writelane_b32 v40, s{64+2*k}, {k}")
        A("s_getreg_b32 s62, hwreg(HW_REG_XCC_ID)"); A("v_writelane_b32 v40, s62, 15"); A("v_writelane_b32 v40, s61, 14")
        A("s_mul_i32 s62, s2, 5"); A("s_add_u32 s62, s62, s3"); A("s_lshl_b32 s62, s62, 6"); A(f"s_add_u32 s62, s62, {DG}")
        A("v_lshlrev_b32 v41, 2, v0")
        A("s_mov_b64 exec, 0xffff")
        A("buffer_store_dword v40, v41, s[56:59], s62 offen")
        if diag == 2 and n == 6:
            A("s_mov_b64 exec, -1")
            A("s_lshl_b32 s62, s2, 2"); A("s_add_u32 s62, s62, s3"); A("s_lshl_b32 s62, s62, 8"); A(f"s_add_u32 s62, s62, {DG+0x20000}")
            A(f"buffer_store_dword v{NV-2}, v41, s[56:59], s62 offen")
    DPPM = "row_mask:0xf bank_mask:0xf"
    ROWSTEPS = ["quad_perm:[1,0,3,2]", "quad_perm:[2,3,0,1]", "row_half_mirror", "row_mirror"]
    def row_reduce(regs, op="v_add_f32", steps=ROWSTEPS):
        for st in steps:
            for r in regs: A(f"{op}_dpp v{r}, v{r}, v{r} {st} {DPPM}")
    def xrow_allreduce(pairs, op="v_add_f32"):
        for sw in ("v_permlane16_swap_b32", "v_permlane32_swap_b32"):
            for r, t in pairs: A(f"v_mov_b32 v{t}, v{r}")
            for r, t in pairs: A(f"{sw} v{r}, v{t}")
            for r, t in pairs: A(f"{op} v{r}, v{r}, v{t}")
    def rnd(r):
        A(f"v_cvt_pk_bf16_f32 v{r}, v{r}, v{r}"); A(f"v_and_b32 v{r}, 0xffff0000, v{r}")
    def srd(b, p, n):
        A(f"s_mov_b32 s{b}, s{p}"); A(f"s_mov_b32 s{b+1}, s{p+1}"); A(f"s_mov_b32 s{b+2}, {n}"); A(f"s_mov_b32 s{b+3}, 0x20000")

    vJ = NV - 1
    A(f".amdgcn_target \"amdgcn-amd-amdhsa--gfx950\"")
    A(".text"); A(f".globl {KN}"); A(".p2align 8"); A(f".type {KN},@function"); A(f"{KN}:")
    A("s_cmp_ge_u32 s2, 256"); A("s_cbranch_scc1 L_end")
    A("s_load_dwordx16 s[4:19], s[0:1], 0")
    A("s_load_dwordx4 s[20:23], s[0:1], 64")
    A("s_load_dwordx2 s[24:25], s[0:1], 80")
    if codepf:
        A("s_getpc_b64 s[94:95]")
        A("L_pc:")
        A("v_lshlrev_b32 v2, 6, v0"); A("v_min_u32 v2, L_end-L_pc, v2")
        A(f"global_load_dword v{vJ}, v2, s[94:95]")
    stamp(0)
    A("v_lshrrev_b32 v1, 6, v0"); A("v_and_b32 v0, 63, v0")
    A("v_readfirstlane_b32 s3, v1")
    A("s_lshr_b32 s26, s2, 4"); A("s_and_b32 s27, s2, 15")
    A("v_lshrrev_b32 v3, 4, v0"); A("v_and_b32 v4, 15, v0")
    A("s_cmp_eq_u32 s3, 4"); A("s_cbranch_scc1 L_helper")

    sHB, sCUR, sLEFT, sTK, sTKO, sDYN, sT, sC = 40, 41, 42, 43, 44, 45, 46, 47
    sOFF = [48, 49]; sBO, sSTR, sNB = 50, 51, 60
    vM, vNM, vL, vA, vB, vT, vU1, vU2, vU3 = 3, 4, 5, 6, 7, 8, 9, 10, 11
    vQ, vACC, vBUF = 12, 20, 36
    nA = (LEAD + 1) // 2
    A("v_lshlrev_b32 v1, 9, v3"); A("v_lshl_add_u32 v1, v4, 4, v1")
    A(f"s_lshl_b32 s{sHB}, s26, 25")
    sPT, sMODE, sTKP = 36, 37, 38
    NPAIR, NPOOL = 256 - PL - 2*S, 8*PL
    if PAIR:
        assert LEAD == 4 and NPAIR >= 0
        A("s_lshl_b32 s62, s3, 12"); A(f"s_add_u32 s{sHB}, s{sHB}, s62")
        A(f"s_lshr_b32 s{sT}, s27, 1"); A(f"s_lshl_b32 s{sT}, s{sT}, 22"); A(f"s_add_u32 s{sOFF[0]}, s{sT}, s{sHB}")
        A("s_bitcmp1_b32 s27, 0")
        A(f"s_mov_b32 s{sT}, {(PL//2)*16384}"); A(f"s_cselect_b32 s{sT}, {(255-PL//2)*16384}, s{sT}")
        A(f"s_movk_i32 s{sSTR}, 16384"); A(f"s_cselect_b32 s{sSTR}, -16384, s{sSTR}")
        A(f"s_add_u32 s{sOFF[0]}, s{sOFF[0]}, s{sT}")
        A(f"s_add_u32 s{sOFF[1]}, s{sOFF[0]}, s{sSTR}")
        A(f"s_add_u32 s{sBO}, s{sOFF[1]}, s{sSTR}")
    else:
        A(f"s_mul_i32 s{sCUR}, s27, {4*(128 if PM else S)}"); A(f"s_add_u32 s{sCUR}, s{sCUR}, s3")
        A(f"s_lshl_b32 s{sT}, s{sCUR}, 12"); A(f"s_add_u32 s{sOFF[0]}, s{sT}, s{sHB}")
        A(f"s_add_u32 s{sOFF[1]}, s{sOFF[0]}, {4*4096}")
        A(f"s_add_u32 s{sBO}, s{sOFF[0]}, {nA*4*4096}")
    A("s_waitcnt lgkmcnt(0)")
    srd(28, 6, 1 << 29); srd(32, 8, 1 << 29)
    if hfirst: A("s_barrier")
    IOFF = [0, 256, 2048, 2304]
    def kv(st, isv, i): return vBUF + st*32 + isv*16 + i*4
    def load(st, isv, i, so=None):
        b = kv(st, isv, i)
        if so is None: so = sOFF[st]
        A(f"buffer_load_dwordx4 v[{b}:{b+3}], v1, s[{28+4*isv}:{31+4*isv}], s{so} offen offset:{IOFF[i]} nt")
    def pub_voff(dst, t1, t2):
        A(f"v_lshrrev_b32 v{t1}, 1, v3"); A(f"v_lshlrev_b32 v{t1}, 3, v{t1}"); A(f"v_lshrrev_b32 v{t2}, 1, v4"); A(f"v_add_u32 v{t1}, v{t1}, v{t2}")
        A(f"v_lshlrev_b32 v{dst}, 12, v{t1}")
        A(f"v_and_b32 v{t1}, 1, v4"); A(f"v_lshlrev_b32 v{t1}, 5, v{t1}"); A(f"v_and_b32 v{t2}, 1, v3"); A(f"v_lshlrev_b32 v{t2}, 4, v{t2}")
        A(f"v_or3_b32 v{dst}, v{dst}, v{t1}, v{t2}")
    def setup():
        stamp(1)
        srd(56, 24, WS_BYTES)
        pub_voff(2, 6, 7)
        A("s_lshl_b32 s54, s27, 2"); A("s_add_u32 s54, s54, s3")
        A("s_lshl_b32 s52, s26, 16"); A("s_lshl_b32 s55, s54, 6"); A("s_add_u32 s52, s52, s55"); A(f"s_add_u32 s52, s52, {OS}")
        A("s_lshl_b32 s53, s26, 10"); A("s_lshl_b32 s55, s54, 4"); A("s_add_u32 s53, s53, s55"); A(f"s_add_u32 s53, s53, {ML}")
        for i in range(16): A(f"v_mov_b32 v{vACC+i}, 0")
        if PAIR:
            A(f"s_mov_b32 s{sLEFT}, {S-nA-1}"); A(f"s_mov_b32 s{sMODE}, 0")
            A(f"s_lshl_b32 s{sTKP}, s26, 2"); A(f"s_add_u32 s{sTKP}, s{sTKP}, s3"); A(f"s_lshl_b32 s{sTKP}, s{sTKP}, 12"); A(f"s_add_u32 s{sTKP}, s{sTKP}, {TK}")
            A(f"s_lshr_b32 s{sTKO}, s27, 1"); A(f"s_lshl_b32 s{sTKO}, s{sTKO}, 8"); A(f"s_add_u32 s{sTKO}, s{sTKO}, s{sTKP}"); A(f"s_add_u32 s{sTKO}, s{sTKO}, 256")
        else:
            A(f"s_add_u32 s{sCUR}, s{sCUR}, {4*nA}"); A(f"s_mov_b32 s{sLEFT}, {S-nA}"); A(f"s_mov_b32 s{sSTR}, 4")
        if SRV: A(f"s_lshl_b32 s{sCUR}, s{sCUR}, 12"); A(f"s_add_u32 s{sCUR}, s{sCUR}, s{sHB}"); A(f"s_mov_b32 s{sMODE}, 0")
        if PAIR or SRV: pass
        elif TKW:
            A(f"s_add_u32 s{sDYN}, s3, {S*4 if PM else 16*S*4}")
            A(f"s_lshl_b32 s{sTKO}, s26, 2"); A(f"s_add_u32 s{sTKO}, s{sTKO}, s3"); A(f"s_lshl_b32 s{sTKO}, s{sTKO}, 12"); A(f"s_add_u32 s{sTKO}, s{sTKO}, {TK}")
        else:
            A(f"s_mov_b32 s{sDYN}, {16*S*4}")
            A(f"s_lshl_b32 s{sTKO}, s26, 14"); A(f"s_add_u32 s{sTKO}, s{sTKO}, {TK}")
        A(f"s_mov_b32 s{sC}, {CSC}"); A(f"s_mov_b32 s{sNB}, 0"); A(f"s_mov_b32 s63, {1<<22}")
        A("v_lshlrev_b32 v8, 4, v4")
        A("v_mov_b32 v10, 512")
        A(f"v_mov_b32 v{vM}, 0xff7fffff"); A(f"v_mov_b32 v{vL}, 0")
        A(f"v_mul_f32 v{vNM}, s{sC}, v{vM}"); A(f"v_sub_f32 v{vNM}, 0, v{vNM}")
        if not hfirst: A("s_barrier")
    def qcheck():
        A("ds_read_b64 v[6:7], v10")
        A(f"ds_read_b128 v[{vQ}:{vQ+3}], v8"); A(f"ds_read_b128 v[{vQ+4}:{vQ+7}], v8 offset:256")
        A("s_waitcnt lgkmcnt(0)")
        A("v_readfirstlane_b32 s62, v6")
        A("s_cmp_lg_u32 s62, 0"); A("s_cbranch_scc1 L_go")
    items = [(n >> 1, n & 1, None) for n in range(LEAD)]
    for b in range(NB): items += [(2 + b, 0, sBO), (2 + b, 1, sBO)]
    n = 0
    for (st, isv, so) in items:
        if so is not None and isv == 0 and early: qcheck()
        for i in range(4):
            if n == INF: setup()
            if n >= INF: A(f"s_waitcnt vmcnt({INF-1})")
            load(st, isv, i, so); n += 1
        if so is not None and isv == 1:
            A(f"s_add_u32 s{sBO}, s{sBO}, " + (f"s{sSTR}" if PAIR else f"{4*4096}")); A(f"s_add_u32 s{sNB}, s{sNB}, 1")
    assert 4 * LEAD > INF
    A("L_qspin:")
    qcheck()
    A("s_sleep 1")
    A("s_sub_u32 s63, s63, 1"); A("s_cbranch_scc0 L_qspin"); A("s_branch L_end")
    A("L_go:")
    A("v_readfirstlane_b32 s54, v7")
    if PAIR or SRV: A(f"s_mov_b32 s{sCUR}, s{sBO}")
    else: A(f"s_lshl_b32 s62, s{sNB}, 2"); A(f"s_add_u32 s{sCUR}, s{sCUR}, s62")
    A(f"s_sub_u32 s{sLEFT}, s{sLEFT}, s{sNB}")
    if diag: A(f"s_mov_b32 s61, s{sNB}"); A(f"s_mov_b32 s74, s{sNB}")
    stamp(2)
    rare = []
    VW = 4 * (LEAD - 1)
    dyns = []; srvs = []
    LCNT, LROWS = 520, 1024
    def newtile(dst):
        lj, ln = L("j"), L("n")
        if SRV:
            ld = L("dyn")
            A(f"s_sub_u32 s{sLEFT}, s{sLEFT}, 1"); A(f"s_cbranch_scc1 {ld}")
            A(f"s_mov_b32 s{dst}, s{sCUR}"); A(f"s_add_u32 s{sCUR}, s{sCUR}, 16384")
            A(f"{ln}:")
            srvs.append((ld, ln, dst))
            return
        if PAIR:
            ld = L("dyn")
            A(f"s_sub_u32 s{sLEFT}, s{sLEFT}, 1"); A(f"s_cbranch_scc1 {ld}")
            A(f"{lj}:")
            A(f"s_mov_b32 s{dst}, s{sCUR}"); A(f"s_add_u32 s{sCUR}, s{sCUR}, s{sSTR}")
            A(f"{ln}:")
            dyns.append((ld, lj, ln, dst))
            return
        A(f"s_cmp_gt_i32 s{sLEFT}, 0"); A(f"s_cbranch_scc1 {lj}")
        A("s_waitcnt lgkmcnt(0)")
        if PM:
            assert C == 1 and TKW
            A(f"s_and_b32 s{sT}, s{sTK}, 15"); A(f"s_lshl_b32 s{sT}, s{sT}, 7"); A(f"s_lshr_b32 s{sCUR}, s{sTK}, 4"); A(f"s_add_u32 s{sCUR}, s{sCUR}, s{sT}")
            A(f"s_lshl_b32 s{sCUR}, s{sCUR}, 2"); A(f"s_add_u32 s{sCUR}, s{sCUR}, s{sDYN}"); A(f"s_mov_b32 s{sLEFT}, {C}")
            A(f"s_cmp_lt_u32 s{sTK}, {16*(128-S)}"); A(f"s_cselect_b32 s{sCUR}, s{sCUR}, {NT}")
        else:
            A(f"s_mul_i32 s{sCUR}, s{sTK}, {(4 if TKW else 1)*C}"); A(f"s_add_u32 s{sCUR}, s{sCUR}, s{sDYN}"); A(f"s_mov_b32 s{sLEFT}, {C}")
        if not TKW: A(f"s_mov_b32 s{sSTR}, 1")
        A(f"s_cmp_lt_u32 s{sCUR}, {NT}"); A(f"s_cselect_b32 s{sLEFT}, s{sLEFT}, 1000")
        A(f"{lj}:")
        A(f"s_cmp_lg_u32 s{sLEFT}, {C}"); A(f"s_cbranch_scc1 {ln}")
        A(f"s_mov_b32 s{sTK}, 1"); A(f"s_atomic_add s{sTK}, s[24:25], s{sTKO} glc")
        A(f"{ln}:")
        A(f"s_lshl_b32 s{sT}, s{sCUR}, 12"); A(f"s_add_u32 s{sT}, s{sT}, s{sHB}")
        A(f"s_cmp_lt_u32 s{sCUR}, {NT}"); A(f"s_cselect_b32 s{dst}, s{sT}, 0x80000000")
        A(f"s_add_u32 s{sCUR}, s{sCUR}, s{sSTR}"); A(f"s_sub_i32 s{sLEFT}, s{sLEFT}, 1")
    def body(st, stream):
        o = st ^ 1
        if stream:
            A(f"s_cmp_ge_u32 s{sOFF[st]}, 0x80000000"); A("s_cbranch_scc1 L_sdone")
            if diag: A("s_add_u32 s61, s61, 1")
            if LEAD == 4: newtile(sOFF[st])
            if LEAD == 2: newtile(sOFF[o])
            A(f"s_waitcnt vmcnt({VW})")
            if LEAD == 3:
                for i in range(4): load(o, 1, i)
            if LEAD == 2:
                for i in range(4): load(o, 0, i)
        for half in range(2):
            for d in range(4):
                for (acc, i) in ((vA, half), (vB, 2 + half)):
                    c = "0" if (half == 0 and d == 0) else f"v{acc}"
                    A(f"v_dot2_f32_bf16 v{acc}, v{kv(st,0,i)+d}, v{vQ+half*4+d}, {c}")
        if stream and LEAD == 4: load(st, 0, 0); load(st, 0, 1); load(st, 0, 2)
        for k, stp in enumerate(ROWSTEPS):
            A(f"v_add_f32_dpp v{vA}, v{vA}, v{vA} {stp} {DPPM}")
            A(f"v_add_f32_dpp v{vB}, v{vB}, v{vB} {stp} {DPPM}")
            if k == 0 and stream and LEAD == 4: load(st, 0, 3)
        A(f"v_cvt_pk_bf16_f32 v{vT}, v{vA}, v{vB}")
        A(f"v_lshlrev_b32 v{vA}, 16, v{vT}"); A(f"v_and_b32 v{vB}, 0xffff0000, v{vT}")
        A(f"v_max_f32 v{vT}, v{vA}, v{vB}")
        A(f"v_cmp_gt_f32 vcc, v{vT}, v{vM}")
        lr, lb = L("rare"), L("back")
        A(f"s_cbranch_vccnz {lr}")
        A(f"{lb}:")
        rare.append((lr, lb))
        A(f"v_fma_f32 v{vA}, v{vA}, s{sC}, v{vNM}"); A(f"v_fma_f32 v{vB}, v{vB}, s{sC}, v{vNM}")
        A(f"v_exp_f32 v{vA}, v{vA}"); A(f"v_exp_f32 v{vB}, v{vB}")
        if stream:
            if LEAD == 3: newtile(sOFF[st])
            A(f"s_waitcnt vmcnt({VW})")
            if LEAD == 3:
                for i in range(4): load(st, 0, i)
            if LEAD == 2:
                for i in range(4): load(o, 1, i)
        A(f"v_cvt_pk_bf16_f32 v{vT}, v{vA}, 0"); A(f"v_cvt_pk_bf16_f32 v{vU1}, 0, v{vA}")
        A(f"v_cvt_pk_bf16_f32 v{vU2}, v{vB}, 0"); A(f"v_cvt_pk_bf16_f32 v{vU3}, 0, v{vB}")
        A(f"v_add_f32 v{vL}, v{vL}, v{vA}"); A(f"v_add_f32 v{vL}, v{vL}, v{vB}")
        for i in range(4):
            lo, hi = (vT, vU1) if i < 2 else (vU2, vU3)
            ab = vACC + (i & 1) * 8
            for d in range(4):
                A(f"v_dot2c_f32_bf16 v{ab+2*d}, v{kv(st,1,i)+d}, v{lo}")
                A(f"v_dot2c_f32_bf16 v{ab+2*d+1}, v{kv(st,1,i)+d}, v{hi}")
            if stream and LEAD == 4: load(st, 1, i)
    A(".p2align 6")
    A("L_loop:")
    if diag == 2:
        A("s_memrealtime s[86:87]"); A("s_lshr_b32 s62, s61, 1"); A("s_min_u32 m0, s62, 63"); A("s_waitcnt lgkmcnt(0)"); A(f"v_writelane_b32 v{vJ-1}, s86, m0")
    body(0, True); body(1, True)
    A(f"s_cmp_eq_u32 s{sNB}, 0"); A("s_cbranch_scc1 L_loop")
    for b in range(NB):
        body(2 + b, False)
        if b < NB - 1: A(f"s_cmp_eq_u32 s{sNB}, {b+1}"); A("s_cbranch_scc1 L_bdone")
    A("L_bdone:")
    A(f"s_mov_b32 s{sNB}, 0")
    A("s_branch L_loop")
    for ld, ln, dst in srvs:
        l1 = L("d")
        A(f"{ld}:")
        A(f"s_mov_b32 s{sLEFT}, 0"); A(f"s_mov_b32 s{dst}, 0x80000000")
        A(f"s_cmp_lg_u32 s{sMODE}, 0"); A(f"s_cbranch_scc1 {ln}")
        A("s_mov_b64 exec, 1")
        A(f"v_mov_b32 v{vT}, {LCNT}"); A(f"v_mov_b32 v{vU1}, 1")
        A(f"ds_add_rtn_u32 v{vU1}, v{vT}, v{vU1}")
        A("s_waitcnt lgkmcnt(0)")
        A(f"v_and_b32 v{vT}, -4, v{vU1}")
        A(f"v_readfirstlane_b32 s{sT}, v{vU1}")
        A(f"{l1}:")
        A(f"ds_read_b32 v{vU1}, v{vT} offset:{LROWS}")
        A(f"s_and_b32 s{sT}, s{sT}, 3")
        A("s_waitcnt lgkmcnt(0)")
        A(f"v_readfirstlane_b32 s62, v{vU1}")
        A("s_sub_u32 s63, s63, 1"); A("s_cbranch_scc1 L_end")
        A(f"s_cmp_eq_u32 s62, 0"); A(f"s_cbranch_scc1 {l1}")
        A("s_mov_b64 exec, -1")
        A(f"s_lshl_b32 s{sT}, s{sT}, 12"); A(f"s_or_b32 s{dst}, s62, s{sT}")
        A(f"s_lshr_b32 s{sMODE}, s62, 31")
        A(f"s_branch {ln}")
    for ld, lj, ln, dst in dyns:
        l1, l2, l3 = L("d"), L("d"), L("d")
        A(f"{ld}:")
        A(f"s_mov_b32 s{sLEFT}, 0")
        A(f"s_cmp_lg_u32 s{sMODE}, 0"); A(f"s_cbranch_scc1 {l1}")
        A(f"s_mov_b32 s{sMODE}, 1"); A(f"s_mov_b32 s{sPT}, 1"); A(f"s_atomic_add s{sPT}, s[24:25], s{sTKP} glc")
        A(f"{l3}:")
        A(f"s_mov_b32 s{sTK}, 1"); A(f"s_atomic_add s{sTK}, s[24:25], s{sTKO} glc")
        A(f"s_branch {lj}")
        A(f"{l1}:")
        A("s_waitcnt lgkmcnt(0)")
        A(f"s_cmp_eq_u32 s{sMODE}, 2"); A(f"s_cbranch_scc1 {l2}")
        A(f"s_cmp_lt_u32 s{sTK}, {NPAIR}"); A(f"s_cbranch_scc1 {l3}")
        A(f"s_mov_b32 s{sMODE}, 2"); A(f"s_mov_b32 s{sTK}, s{sPT}")
        A(f"{l2}:")
        A(f"s_mov_b32 s{dst}, 0x80000000")
        A(f"s_cmp_lt_u32 s{sTK}, {NPOOL}"); A(f"s_cbranch_scc0 {ln}")
        lg = PL.bit_length() - 1
        if PORD == 0:
            A(f"s_lshr_b32 s{sT}, s{sTK}, {lg}"); A(f"s_and_b32 s62, s{sTK}, {PL-1}")
        else:
            A(f"s_and_b32 s{sT}, s{sTK}, 7"); A(f"s_lshr_b32 s62, s{sTK}, 3")
        A(f"s_lshl_b32 s{sT}, s{sT}, 8"); A(f"s_add_u32 s{sT}, s{sT}, s62"); A(f"s_sub_u32 s{sT}, s{sT}, {PL//2}"); A(f"s_and_b32 s{sT}, s{sT}, 2047")
        A(f"s_lshl_b32 s{sT}, s{sT}, 14"); A(f"s_add_u32 s{dst}, s{sT}, s{sHB}")
        A(f"s_mov_b32 s{sTK}, 1"); A(f"s_atomic_add s{sTK}, s[24:25], s{sTKP} glc")
        A(f"s_branch {ln}")
    for lr, lb in rare:
        A(f"{lr}:")
        xrow_allreduce([(vT, vU1)], "v_max_f32")
        A(f"v_max_f32 v{vT}, v{vT}, v{vM}")
        A(f"v_mul_f32 v{vNM}, s{sC}, v{vT}"); A(f"v_sub_f32 v{vNM}, 0, v{vNM}")
        A(f"v_fma_f32 v{vU1}, v{vM}, s{sC}, v{vNM}"); A(f"v_exp_f32 v{vU1}, v{vU1}")
        A(f"v_mov_b32 v{vM}, v{vT}")
        A(f"v_mul_f32 v{vL}, v{vL}, v{vU1}")
        for i in range(0, 16, 2): A(f"v_pk_mul_f32 v[{vACC+i}:{vACC+i+1}], v[{vACC+i}:{vACC+i+1}], v[{vT}:{vU1}] op_sel:[0,1] op_sel_hi:[1,1]")
        A(f"s_branch {lb}")
    A("L_sdone:")
    stamp(3)
    A("s_lshr_b32 s55, s54, 8"); A("s_lshr_b32 s62, s54, 16"); A("s_lshr_b32 s63, s54, 24")
    for i in range(8): A(f"v_permlane32_swap_b32 v{vACC+i}, v{vACC+8+i}")
    A(f"v_mov_b32 v{vT}, v{vL}")
    for i in range(8): A(f"v_add_f32 v{vACC+i}, v{vACC+i}, v{vACC+8+i}")
    A(f"v_permlane16_swap_b32 v{vL}, v{vT}")
    for i in range(4): A(f"v_permlane16_swap_b32 v{vACC+i}, v{vACC+4+i}")
    A(f"v_add_f32 v{vL}, v{vL}, v{vT}")
    A(f"v_mov_b32 v{vA}, 0xff")
    for i in range(4): A(f"v_add_f32 v{vACC+i}, v{vACC+i}, v{vACC+4+i}")
    A(f"v_mov_b32 v{vT}, v{vL}")
    for i, t in enumerate((54, 55, 62, 63)): A(f"v_bfi_b32 v{vACC+i}, v{vA}, s{t}, v{vACC+i}")
    A(f"v_permlane32_swap_b32 v{vL}, v{vT}")
    A(f"buffer_store_dwordx4 v[{vACC}:{vACC+3}], v2, s[56:59], s52 offen {STS}")
    A(f"v_add_f32 v{vU1}, v{vL}, v{vT}")
    A(f"v_mov_b32 v{vT}, v{vM}"); A(f"v_mov_b32 v{vU2}, s54"); A(f"v_mov_b32 v{vU3}, s54")
    A("s_mov_b64 exec, 1")
    A(f"buffer_store_dwordx4 v[{vT}:{vU3}], off, s[56:59], s53 {STS}")
    A("s_barrier")
    stamp(4)
    dump_stamps(6)
    A("s_endpgm")

    A("L_helper:")
    A("s_setprio 3")
    X = 8
    XLO, XHI = 16, 24
    ACC = 32
    W = 48
    R = 112
    vM1 = 144
    vMean, vYv, vZv, vQv, vL4, vRs, vL16 = 148, 149, 150, 151, 152, 153, 154
    T = [156, 157, 158, 159, 160, 161, 162, 163]
    vF0, vF, vLF = 155, 164, 165
    XA, XAF, XB, XBF = 8, 16, 24, 112
    A(f"v_mov_b32 v{T[4]}, 0"); A(f"v_mov_b32 v{T[5]}, 0"); A(f"v_mov_b32 v{vLF}, 512")
    A(f"v_lshlrev_b32 v{vL16}, 4, v0")
    A(f"v_mov_b32 v{T[6]}, 0"); A(f"v_mov_b32 v{T[7]}, 0")
    A(f"ds_write_b128 v{vLF}, v[{T[4]}:{T[7]}]")
    if SRV:
        for i in range(3): A(f"ds_write_b128 v{vL16}, v[{T[4]}:{T[7]}] offset:{LROWS+1024*i}")
    A(f"v_lshrrev_b32 v{T[0]}, 3, v0")
    A(f"v_mul_u32_u24 v{T[1]}, 28, v{T[0]}")
    A(f"v_mul_u32_u24 v{T[2]}, {14*8192}, v{T[0]}")
    A(f"v_and_b32 v{T[3]}, 7, v0")
    A(f"v_lshl_add_u32 v{T[2]}, v{T[3]}, 4, v{T[2]}")
    A("s_lshr_b32 s61, s27, 2")
    A("s_mul_i32 s60, s61, 224")
    A(f"s_mul_i32 s62, s61, {112*8192}"); A("s_lshl_b32 s63, s26, 9"); A("s_add_u32 s62, s62, s63")
    A("s_and_b32 s63, s27, 3"); A("s_lshl_b32 s63, s63, 7"); A("s_add_u32 s62, s62, s63")
    A("s_lshl_b32 s93, s26, 12")
    lnc = L("noclr")
    A("s_cmp_lg_u32 s27, 0")
    A("s_waitcnt lgkmcnt(0)")
    A(f"s_load_dword s52, s[24:25], {EP}")
    srd(56, 24, WS_BYTES)
    A(f"s_cbranch_scc1 {lnc}")
    A(f"v_lshlrev_b32 v{T[4]}, 8, v0")
    A("s_lshl_b32 s61, s26, 14"); A(f"s_add_u32 s61, s61, {TK}")
    if SRV: A("s_mov_b64 exec, 1")
    A(f"buffer_store_dword v{T[5]}, v{T[4]}, s[56:59], s61 offen sc1")
    A("s_mov_b64 exec, -1")
    A(f"{lnc}:")
    srd(28, 4, 896); srd(32, 10, 448*4096*2)
    A(f"buffer_load_dwordx4 v[{XA}:{XA+3}], v{vL16}, s[28:31], 0 offen")
    A(f"buffer_load_dwordx4 v[{XB}:{XB+3}], v{T[1]}, s[28:31], s60 offen")
    A(f"buffer_load_dwordx3 v[{XB+4}:{XB+6}], v{T[1]}, s[28:31], s60 offen offset:16")
    for i in range(14):
        A(f"buffer_load_dwordx4 v[{W+4*i}:{W+4*i+3}], v{T[2]}, s[32:35], s62 offen{WNT}")
        if i < 13: A("s_add_u32 s62, s62, 8192")
    A("s_barrier")
    vMK, vTa, vTb, vMKY = vM1, vM1 + 1, vM1 + 2, vM1 + 3
    A(f"v_mov_b32 v{vMK}, 0xff"); A(f"v_mov_b32 v{vMKY}, 0x3ff")
    for i in range(8): A(f"v_mov_b32 v{ACC+i}, 0")
    A(f"v_lshlrev_b32 v{vQv}, 5, v{T[3]}"); A(f"v_lshrrev_b32 v{T[4]}, 5, v0"); A(f"v_lshl_add_u32 v{vQv}, v{T[4]}, 4, v{vQv}")
    A(f"v_and_b32 v{T[4]}, 1, v3"); A(f"v_lshl_add_u32 v{vQv}, v{T[4]}, 3, v{vQv}")
    def qpub(src, so):
        A("s_mov_b32 exec_lo, 0x00ff00ff"); A("s_mov_b32 exec_hi, 0x00ff00ff")
        A(f"buffer_store_dwordx2 v[{src}:{src+1}], v{vQv}, s[56:59], s{so} offen sc1")
        A("s_mov_b64 exec, -1")
    NCL = -2
    A("s_lshl_b32 s60, s2, 8")
    A(f"v_lshlrev_b32 v{vTb}, 4, v{T[4]}")
    A(f"s_mov_b32 s90, 0x05040100"); A(f"s_mov_b32 s91, 0x07060302")
    A(f"s_mov_b32 s62, {f2u(1.0/448.0)}"); A(f"s_mov_b32 s63, {f2u(448.0)}")
    A("s_mov_b32 s88, -1"); A("s_mov_b32 s89, 0x00ffffff")
    A(f"s_mov_b32 s99, {spin}")
    A(f"s_waitcnt vmcnt(14)")
    stamp(1)
    def unpack(dst, src):
        return [f"v_lshlrev_b32 v{dst}, 16, v{src}", f"v_and_b32 v{dst+1}, 0xffff0000, v{src}"]
    def pr(r): return f"v[{r}:{r+1}]"
    def weave(chain, fill, k=2):
        fill = list(fill)
        for c in chain:
            A(c)
            for _ in range(k):
                if fill: A(fill.pop(0))
        for f in fill: A(f)
    def allred(r, t):
        ch = [f"v_add_f32_dpp v{r}, v{r}, v{r} {st} {DPPM}" for st in ROWSTEPS]
        for sw in ("v_permlane16_swap_b32", "v_permlane32_swap_b32"):
            ch += [f"v_mov_b32 v{t}, v{r}", f"{sw} v{r}, v{t}", f"v_add_f32 v{r}, v{r}, v{t}"]
        return ch
    def div448(r, t):
        return [f"v_mul_f32 v{t}, s62, v{r}", f"v_fma_f32 v{r}, -v{t}, s63, v{r}", f"v_fma_f32 v{r}, v{r}, s62, v{t}"]
    def rndl(r): return [f"v_cvt_pk_bf16_f32 v{r}, v{r}, v{r}", f"v_and_b32 v{r}, 0xffff0000, v{r}"]
    s_, t_, q_, u_ = T[0], T[1], T[2], T[3]
    for k in range(4):
        for ins in unpack(XAF+2*k, XA+k): A(ins)
    A(f"v_pk_add_f32 {pr(T[4])}, {pr(XAF)}, {pr(XAF+2)}"); A(f"v_pk_add_f32 {pr(T[6])}, {pr(XAF+4)}, {pr(XAF+6)}")
    A(f"v_pk_add_f32 {pr(T[4])}, {pr(T[4])}, {pr(T[6])}")
    A(f"v_add_f32 v{s_}, v{T[4]}, v{T[5]}")
    fillB = []
    for k in range(7): fillB += unpack(XBF+2*k, XB+k)
    weave(allred(s_, t_) + div448(s_, t_), fillB, 2)
    BCST = "op_sel:[0,0] op_sel_hi:[1,0]"
    for k in range(4): A(f"v_pk_add_f32 {pr(XAF+2*k)}, {pr(XAF+2*k)}, {pr(s_)} {BCST} neg_lo:[0,1] neg_hi:[0,1]")
    A(f"v_cvt_pk_bf16_f32 v{vMean}, v{s_}, v{s_}")
    A(f"v_pk_mul_f32 {pr(T[4])}, {pr(XAF)}, {pr(XAF)}"); A(f"v_pk_mul_f32 {pr(T[6])}, {pr(XAF+2)}, {pr(XAF+2)}")
    A(f"v_and_b32 v{vMean}, 0xffff0000, v{vMean}")
    A(f"v_pk_fma_f32 {pr(T[4])}, {pr(XAF+4)}, {pr(XAF+4)}, {pr(T[4])}"); A(f"v_pk_fma_f32 {pr(T[6])}, {pr(XAF+6)}, {pr(XAF+6)}, {pr(T[6])}")
    A(f"v_pk_add_f32 {pr(T[4])}, {pr(T[4])}, {pr(T[6])}")
    A(f"v_add_f32 v{q_}, v{T[4]}, v{T[5]}")
    A(f"v_cndmask_b32 v{q_}, 0, v{q_}, s[88:89]")
    fillB = []
    for k in range(7): fillB.append(f"v_pk_add_f32 {pr(XBF+2*k)}, {pr(XBF+2*k)}, {pr(vMean)} {BCST} neg_lo:[0,1] neg_hi:[0,1]")
    for k in range(7): fillB.append(f"v_cvt_pk_bf16_f32 v{XB+k}, v{XBF+2*k}, v{XBF+2*k+1}")
    for k in range(7): fillB += unpack(XBF+2*k, XB+k)
    chain = allred(q_, t_) + div448(q_, t_) + rndl(q_) + [f"v_add_f32 v{q_}, {f2u(1e-5)}, v{q_}"] + rndl(q_) + [f"v_sqrt_f32 v{q_}, v{q_}"] + rndl(q_) + [f"v_rcp_f32 v{T[4]}, v{q_}"]
    weave(chain, fillB, 2)
    A(f"v_mov_b32 v{vRs}, v{T[4]}")
    for k in range(7): A(f"v_pk_mul_f32 {pr(XBF+2*k)}, {pr(XBF+2*k)}, {pr(T[4])} {BCST}")
    for k in range(7): A(f"v_cvt_pk_bf16_f32 v{XB+k}, v{XBF+2*k}, v{XBF+2*k+1}")
    def slice_dot(Wb, waits):
        for k in range(7):
            if waits: A(f"s_waitcnt vmcnt({14+NCL-2*k})")
            for c in range(4):
                a, b = Wb + 8*k + c, Wb + 8*k + 4 + c
                A(f"v_perm_b32 v{T[c]}, v{b}, v{a}, s90"); A(f"v_perm_b32 v{b}, v{b}, v{a}, s91")
            for c in range(4):
                A(f"v_dot2c_f32_bf16 v{ACC+2*c}, v{T[c]}, v{XB+k}")
                A(f"v_dot2c_f32_bf16 v{ACC+2*c+1}, v{Wb+8*k+4+c}, v{XB+k}")
        for i in range(4): A(f"v_permlane32_swap_b32 v{ACC+i}, v{ACC+4+i}")
        for i in range(4): A(f"v_add_f32 v{ACC+i}, v{ACC+i}, v{ACC+4+i}")
        for i in range(2): A(f"v_permlane16_swap_b32 v{ACC+i}, v{ACC+2+i}")
        for i in range(2): A(f"v_add_f32 v{ACC+i}, v{ACC+i}, v{ACC+2+i}")
        for i in range(2): A(f"v_add_f32_dpp v{ACC+i}, v{ACC+i}, v{ACC+i} row_ror:8 {DPPM}")
        for i, t in enumerate((vTa, vTb)): A(f"v_bfi_b32 v{ACC+i}, v{vMK}, v{t}, v{ACC+i}")
    A("s_waitcnt lgkmcnt(0)")
    A("s_add_u32 s52, s52, 0x01010101")
    A("s_lshr_b32 s53, s52, 8"); A("s_lshr_b32 s54, s52, 16"); A("s_lshr_b32 s55, s52, 24")
    A(f"v_lshrrev_b32 v{vTa}, v{vTb}, s52"); A(f"v_lshrrev_b32 v{vTb}, v{vTb}, s53")
    slice_dot(W, True)
    qpub(ACC, 60)
    stamp(2)
    def anyinv(pairs, t, mask, full=()):
        def chain(ps, a0, a1):
            cur = [a0, a1]
            for k, (r, tg) in enumerate(ps):
                if k < 2: A(f"v_xor_b32 v{cur[k]}, {tg}, v{r}")
                else: A(f"v_bitop3_b32 v{cur[k&1]}, v{cur[k&1]}, v{r}, {tg} bitop3:0xf6")
        pairs = list(pairs)
        if len(pairs) == 1:
            A(f"v_xor_b32 v{t}, {pairs[0][1]}, v{pairs[0][0]}"); A(f"v_and_b32 v{t}, v{mask}, v{t}")
        else:
            chain(pairs, t, t + 1)
            if full: chain([(r, "s52") for r in full], t + 2, t + 3)
            A(f"v_bitop3_b32 v{t}, v{t}, v{t+1}, v{mask} bitop3:0xa8")
            if full: A(f"v_or3_b32 v{t}, v{t}, v{t+2}, v{t+3}")
        A(f"v_cmp_ne_u32 vcc, 0, v{t}")
    def quad(b, n): return [(b + i, f"s{52 + (i & 3)}") for i in range(n)]
    def pipe_poll(nsets, issue, nld, check, done, sleep, name):
        lp, lo = L(name), L(name + "o")
        ok = [L(name + "k") for _ in range(nsets)]
        for k in range(nsets - 1):
            issue(k)
            if sleep: A(f"s_sleep {sleep}")
        A(f"{lp}:")
        for k in range(nsets):
            issue((k + nsets - 1) % nsets)
            A(f"s_waitcnt vmcnt({nld*(nsets-1)})")
            check(k)
            A(f"s_cbranch_vccz {ok[k]}")
        A("s_sub_u32 s99, s99, 1"); A(f"s_cbranch_scc0 {lp}"); A("s_branch L_end")
        for k in range(nsets):
            A(f"{ok[k]}:")
            done(k)
            if k < nsets - 1: A(f"s_branch {lo}")
        A(f"{lo}:")
    def masked_poll(issue, check, sleep, name):
        lp, lo = L(name), L(name + "o")
        for i in range(4): A(f"s_mov_b64 s[{4+2*i}:{5+2*i}], -1")
        A(f"{lp}:")
        for i in range(4):
            A(f"s_mov_b64 exec, s[{4+2*i}:{5+2*i}]")
            issue(i)
        A("s_mov_b64 exec, -1")
        A("s_waitcnt vmcnt(0)")
        for i in range(4):
            prs = check(i)
            A(f"v_xor_b32 v{T[i]}, {prs[0][1]}, v{prs[0][0]}")
        for k in range(1, 4):
            for i in range(4):
                r, tg = check(i)[k]
                A(f"v_bitop3_b32 v{T[i]}, v{T[i]}, v{r}, {tg} bitop3:0xf6")
        for i in range(4): A(f"v_and_b32 v{T[i]}, v{check(i)[4]}, v{T[i]}")
        for k in range(5, len(check(0))):
            for i in range(4): A(f"v_bitop3_b32 v{T[i]}, v{T[i]}, v{check(i)[k]}, s52 bitop3:0xf6")
        for i in range(4): A(f"v_cmp_ne_u32 s[{4+2*i}:{5+2*i}], 0, v{T[i]}")
        A("s_or_b64 vcc, s[4:5], s[6:7]"); A("s_or_b64 vcc, vcc, s[8:9]"); A("s_or_b64 vcc, vcc, s[10:11]")
        A(f"s_cbranch_scc0 {lo}")
        if sleep: A(f"s_sleep {sleep}")
        A("s_sub_u32 s99, s99, 1"); A(f"s_cbranch_scc0 {lp}"); A("s_branch L_end")
        A(f"{lo}:")
    def q_issue(k):
        for i in range(4): A(f"buffer_load_dwordx4 v[{W+16*k+4*i}:{W+16*k+4*i+3}], v{vL16}, s[56:59], s93 offen offset:{1024*i} sc1")
    def q_done(kk):
        B = W + 16*kk
        for k in range(0, 4, 2):
            A(f"v_pk_add_f32 {pr(R+k)}, {pr(B+k)}, {pr(B+4+k)}"); A(f"v_pk_add_f32 {pr(R+8+k)}, {pr(B+8+k)}, {pr(B+12+k)}")
    A(f"v_lshlrev_b32 v{vF}, 3, v0")
    A(f"v_mov_b32 v{T[4]}, 1"); A(f"v_mov_b32 v{T[5]}, s52")
    if MQ:
        masked_poll(lambda i: A(f"buffer_load_dwordx4 v[{W+4*i}:{W+4*i+3}], v{vL16}, s[56:59], s93 offen offset:{1024*i} sc1"),
                    lambda i: quad(W + 4*i, 4) + [vMK], slq, "pq")
        q_done(0)
    else: pipe_poll(NP, q_issue, 4, lambda k: anyinv(quad(W + 16*k, 16), T[0], vMK), q_done, slq, "pq")
    for k in range(0, 4, 2): A(f"v_pk_add_f32 {pr(R+k)}, {pr(R+k)}, {pr(R+8+k)}")
    A(f"v_cvt_pk_bf16_f32 v{T[0]}, v{R}, v{R+1}"); A(f"v_cvt_pk_bf16_f32 v{T[1]}, v{R+2}, v{R+3}")
    A(f"ds_write_b64 v{vF}, v[{T[0]}:{T[1]}]")
    A(f"ds_write_b64 v{vLF}, v[{T[4]}:{T[5]}]")
    stamp(10)
    stamp(3)
    A("s_setprio 0")
    if noprep:
        for k in range(4, 10): stamp(k)
        A("s_barrier"); A("s_branch L_hend")
    W2 = 168
    srd(36, 12, 4096*448*2); srd(48, 20, 896)
    A(f"v_lshlrev_b32 v{vYv}, 13, v0")
    A(f"v_lshlrev_b32 v{vL4}, 2, v0")
    A("s_lshl_b32 s62, s2, 12"); A(f"s_add_u32 s86, s62, {YS}"); A(f"s_add_u32 s87, s62, {OS}")
    A("s_lshr_b32 s61, s27, 2")
    A("s_lshl_b32 s62, s26, 2"); A("s_and_b32 s63, s27, 3"); A("s_add_u32 s62, s62, s63")
    A(f"s_mul_i32 s44, s61, {112*3584}"); A("s_lshl_b32 s63, s62, 7"); A("s_add_u32 s44, s44, s63")
    A("s_mul_i32 s45, s61, 7168"); A("s_lshl_b32 s63, s62, 8"); A("s_add_u32 s45, s45, s63"); A(f"s_add_u32 s45, s45, {HS}")
    A("s_sub_u32 s62, s26, 7")
    A(f"s_mul_i32 s60, s27, {112*896}"); A("s_lshl_b32 s63, s62, 7"); A("s_add_u32 s60, s60, s63")
    A("s_mul_i32 s61, s27, 1792"); A("s_lshl_b32 s63, s62, 8"); A("s_add_u32 s61, s61, s63"); A(f"s_add_u32 s61, s61, {ZS}")
    A("s_cmp_lt_u32 s2, 112")
    A("s_cselect_b32 s40, s16, s18"); A("s_cselect_b32 s41, s17, s19")
    A("s_cselect_b32 s44, s44, s60"); A("s_cselect_b32 s45, s45, s61")
    A("s_movk_i32 s46, 896"); A("s_cselect_b32 s46, 3584, s46")
    NR = 0 if skip & 4 else 224
    A(f"s_cmp_lt_u32 s2, {NR}")
    A(f"s_cselect_b32 s42, {448*1792*2}, 0"); A("s_mov_b32 s43, 0x20000")
    A("s_cselect_b32 s45, s45, 0x80000000")
    A(f"v_lshrrev_b32 v{T[0]}, 3, v0"); A(f"v_mul_u32_u24 v{T[1]}, 14, v{T[0]}"); A(f"v_mul_u32_u24 v{T[2]}, s46, v{T[1]}")
    A(f"v_and_b32 v{T[3]}, 7, v0"); A(f"v_lshl_add_u32 v{T[2]}, v{T[3]}, 4, v{T[2]}")
    for i in range(14):
        A(f"buffer_load_dwordx4 v[{W2+4*i}:{W2+4*i+3}], v{T[2]}, s[40:43], s44 offen{WNT}")
        if i < 13: A("s_add_u32 s44, s44, s46")
    A(f"s_mul_i32 s62, s2, {16*896}")
    if skip & 8: A("s_mov_b32 s38, 0")
    for r in range(16):
        A(f"buffer_load_dwordx4 v[{W+4*r}:{W+4*r+3}], v{vL16}, s[36:39], s62 offen offset:{(r%4)*896}{WNT}")
        if r % 4 == 3 and r < 15: A(f"s_add_u32 s62, s62, {4*896}")
    A(f"v_lshlrev_b32 v{T[6]}, 1, v{T[1]}")
    A("s_lshl_b32 s96, s2, 4"); A(f"s_add_u32 s97, s96, {YS+4096}"); A(f"s_add_u32 s96, s96, {YS}")
    for i in range(8): A(f"v_mov_b32 v{ACC+i}, 0")
    A("s_waitcnt vmcnt(0)")
    for k in range(8):
        for c in range(4):
            a, b = W + 8*k + c, W + 8*k + 4 + c
            A(f"v_perm_b32 v{T[0]}, v{b}, v{a}, s90"); A(f"v_perm_b32 v{b}, v{b}, v{a}, s91"); A(f"v_mov_b32 v{a}, v{T[0]}")
    def spin_or_end(lp, sleep):
        if sleep: A(f"s_sleep {sleep}")
        A("s_sub_u32 s99, s99, 1"); A(f"s_cbranch_scc0 {lp}"); A("s_branch L_end")
    SP = 4
    def row_dot():
        for k in range(8):
            for c in range(4):
                cc = ["0", "0"] if k == 0 else [f"v{ACC+2*c}", f"v{ACC+2*c+1}"]
                A(f"v_dot2_f32_bf16 v{ACC+2*c}, v{W+8*k+c}, s{SP+k}, {cc[0]}")
                A(f"v_dot2_f32_bf16 v{ACC+2*c+1}, v{W+8*k+4+c}, s{SP+k}, {cc[1]}")
        for i in range(8): A(f"v_bfi_b32 v{ACC+i}, v{vMKY}, s{52+(i&3)}, v{ACC+i}")
    def silu(regs, tmps):
        A(f"s_mov_b32 s62, {f2u(-LOG2E)}")
        for r, t in zip(regs, tmps): A(f"v_mul_f32 v{t}, s62, v{r}")
        for r, t in zip(regs, tmps): A(f"v_exp_f32 v{t}, v{t}")
        for r, t in zip(regs, tmps): A(f"v_add_f32 v{t}, 1.0, v{t}")
        for r, t in zip(regs, tmps): A(f"v_rcp_f32 v{t}, v{t}")
        for r, t in zip(regs, tmps): A(f"v_mul_f32 v{r}, v{r}, v{t}")
    vG, vXo = 8, 9
    def reduce4(a):
        A(f"v_permlane32_swap_b32 v{a}, v{a+2}"); A(f"v_permlane32_swap_b32 v{a+1}, v{a+3}")
        A(f"v_add_f32 v{a}, v{a}, v{a+2}"); A(f"v_add_f32 v{a+1}, v{a+1}, v{a+3}")
        A(f"v_permlane16_swap_b32 v{a}, v{a+1}")
        A(f"v_add_f32 v{a}, v{a}, v{a+1}")
    lz3, lr1 = L("noz"), L("r1")
    A(f"v_lshlrev_b32 v{T[4]}, 1, v3")
    A("s_lshl_b32 s89, s2, 3")
    A(f"s_cmp_ge_u32 s2, {NR}"); A(f"s_cbranch_scc1 {lz3}")
    A("s_cmp_lt_u32 s2, 112"); A(f"s_cbranch_scc1 {lr1}")
    A("s_mul_i32 s62, s27, 448"); A(f"s_add_u32 s62, s62, {HS}"); A("s_add_u32 s63, s62, 14336")
    A(f"v_min_u32 v{T[5]}, 55, v0"); A(f"v_lshlrev_b32 v{T[5]}, 3, v{T[5]}"); A(f"v_add_u32 v{T[7]}, 7168, v{T[5]}")
    A(f"v_lshlrev_b32 v{vF0}, 1, v{T[5]}"); A(f"v_and_b32 v{vF0}, 16, v{vF0}")
    A(f"v_lshrrev_b32 v{vF}, v{vF0}, s53"); A(f"v_lshrrev_b32 v{vF0}, v{vF0}, s52")
    lp, lo = L("ph"), L("pho")
    A(f"{lp}:")
    A(f"buffer_load_dwordx2 v[{R}:{R+1}], v{T[5]}, s[56:59], s62 offen sc1")
    A(f"buffer_load_dwordx2 v[{R+2}:{R+3}], v{T[7]}, s[56:59], s62 offen sc1")
    A(f"buffer_load_dwordx2 v[{R+4}:{R+5}], v{T[5]}, s[56:59], s63 offen sc1")
    A(f"buffer_load_dwordx2 v[{R+6}:{R+7}], v{T[7]}, s[56:59], s63 offen sc1")
    A("s_waitcnt vmcnt(0)")
    anyinv([(R + i, f"v{vF if i & 1 else vF0}") for i in range(8)], T[0], vMK)
    A(f"s_cbranch_vccz {lo}")
    spin_or_end(lp, sl2)
    A(f"{lo}:")
    A(f"v_pk_add_f32 {pr(R)}, {pr(R)}, {pr(R+2)}"); A(f"v_pk_add_f32 {pr(R+4)}, {pr(R+4)}, {pr(R+6)}")
    A(f"v_pk_add_f32 {pr(R)}, {pr(R)}, {pr(R+4)}")
    rnd(R); rnd(R+1)
    silu([R, R+1], T[:2])
    A(f"v_cvt_pk_bf16_f32 v{R}, v{R}, v{R+1}")
    for k in range(7): A(f"ds_bpermute_b32 v{XB+k}, v{T[6]}, v{R} offset:{4*k}")
    A("s_waitcnt lgkmcnt(0)")
    A(f"{lr1}:")
    slice_dot(W2, False)
    qpub(ACC, 45)
    A("s_cmp_ge_u32 s2, 112"); A(f"s_cbranch_scc1 {lz3}")
    A(f"buffer_load_ushort v{vXo}, v{T[4]}, s[28:31], s89 offen")
    A(f"v_mul_u32_u24 v{T[5]}, 1792, v4"); A(f"v_lshl_add_u32 v{T[5]}, v3, 2, v{T[5]}")
    A("s_lshl_b32 s62, s2, 4"); A(f"s_add_u32 s62, s62, {ZS}")
    A(f"v_lshlrev_b32 v{vF0}, 3, v3"); A(f"v_lshrrev_b32 v{vF0}, v{vF0}, s52")
    lp, lo = L("pz"), L("pzo")
    A(f"s_sleep {sl1}")
    A(f"{lp}:")
    A(f"buffer_load_dword v{R}, v{T[5]}, s[56:59], s62 offen sc1")
    A("s_waitcnt vmcnt(0)")
    anyinv([(R, f"v{vF0}")], T[0], vMK)
    A(f"s_cbranch_vccz {lo}")
    spin_or_end(lp, sl1)
    A(f"{lo}:")
    row_reduce([R])
    rnd(R); silu([R], [T[0]]); rnd(R)
    A(f"v_mov_b32 v{vG}, v{R}")
    A(f"v_lshlrev_b32 v{vXo}, 16, v{vXo}")
    A(f"{lz3}:")
    if SRV:
        assert 2048 - 16*S + 16 <= 768
        lp, lo = L("sv"), L("svo")
        A("s_mov_b32 s60, 0")
        A("s_lshl_b32 s61, s26, 14"); A(f"s_add_u32 s61, s61, {TK}")
        A("s_lshl_b32 s47, s26, 11"); A(f"s_add_u32 s47, s47, {S if PM else 16*S}")
        A(f"s_mov_b32 s92, {2048-16*S}")
        A(f"{lp}:")
        A(f"ds_read_b32 v{T[0]}, v{vLF} offset:{LCNT-512}")
        A("s_waitcnt lgkmcnt(0)")
        A(f"v_readfirstlane_b32 s62, v{T[0]}")
        if sls0:
            lz = L("svz")
            A("s_cmp_lg_u32 s62, 0"); A(f"s_cbranch_scc1 {lz}"); A("s_cmp_eq_u32 s60, 0"); A(f"s_cbranch_scc1 {lz}")
            A(f"s_sleep {sls0}")
            A(f"{lz}:")
        A("s_lshr_b32 s62, s62, 2"); A(f"s_add_u32 s62, s62, {AH}")
        A("s_sub_i32 s62, s62, s60"); A("s_min_i32 s62, s62, 8")
        A(f"s_cmp_gt_i32 s62, 0"); A(f"s_cbranch_scc1 {lo}")
        spin_or_end(lp, sls)
        A(f"{lo}:")
        A("s_mov_b32 s63, s62"); A("s_atomic_add s63, s[24:25], s61 glc")
        A(f"v_add_u32 v{T[1]}, s60, v0"); A(f"v_lshlrev_b32 v{T[1]}, 2, v{T[1]}")
        A("s_add_u32 s60, s60, s62")
        A("s_bfm_b64 s[4:5], s62, 0")
        A(f"v_bfrev_b32 v{T[3]}, 1")
        A("s_waitcnt lgkmcnt(0)")
        A(f"v_add_u32 v{T[0]}, s63, v0")
        if PM:
            A(f"v_and_b32 v{T[2]}, 15, v{T[0]}"); A(f"v_lshrrev_b32 v{T[5]}, 4, v{T[0]}"); A(f"v_lshl_add_u32 v{T[2]}, v{T[2]}, 7, v{T[5]}")
            A(f"v_add_u32 v{T[2]}, s47, v{T[2]}")
        else: A(f"v_add_u32 v{T[2]}, s47, v{T[0]}")
        A(f"v_lshlrev_b32 v{T[2]}, 14, v{T[2]}")
        A(f"v_cmp_gt_u32 vcc, s92, v{T[0]}")
        A(f"v_cndmask_b32 v{T[2]}, v{T[3]}, v{T[2]}, vcc")
        A("s_mov_b64 exec, s[4:5]")
        A(f"ds_write_b32 v{T[1]}, v{T[2]} offset:{LROWS}")
        A("s_mov_b64 exec, -1")
        A("s_add_u32 s63, s63, s62"); A("s_cmp_le_u32 s63, s92"); A(f"s_cbranch_scc1 {lp}")
    A("s_mov_b32 s62, s87")
    A("s_lshl_b32 s63, s26, 10"); A(f"s_add_u32 s63, s63, {ML}")
    A(f"v_lshrrev_b32 v{T[5]}, 2, v0"); A(f"v_lshlrev_b32 v{T[5]}, 4, v{T[5]}")
    A(f"s_mov_b32 s61, {CSC}")
    A("s_setprio 3")
    stamp(4)
    A("s_barrier")
    stamp(5)
    PSET = [R, W2]
    def o_issue(k):
        B = PSET[k]
        for i in range(4): A(f"buffer_load_dwordx4 v[{B+16+4*i}:{B+16+4*i+3}], v{T[5]}, s[56:59], s63 offen offset:{256*i} {LDS_}")
        for i in range(4): A(f"buffer_load_dwordx4 v[{B+4*i}:{B+4*i+3}], v{vL16}, s[56:59], s62 offen offset:{1024*i} {LDS_}")
    GSTEPS = ["row_ror:4", "row_ror:8"]
    mx, tt, ls = T[0], T[1], T[2]
    def o_done(kk):
        B = PSET[kk]; MLr = B + 16
        A(f"v_max3_f32 v{mx}, v{MLr}, v{MLr+4}, v{MLr+8}"); A(f"v_max_f32 v{mx}, v{mx}, v{MLr+12}")
        row_reduce([mx], "v_max_f32", GSTEPS); xrow_allreduce([(mx, tt)], "v_max_f32")
        A(f"v_mul_f32 v{mx}, s61, v{mx}")
        for i in range(4): A(f"v_fma_f32 v{MLr+4*i}, v{MLr+4*i}, s61, -v{mx}")
        for i in range(4): A(f"v_exp_f32 v{MLr+4*i}, v{MLr+4*i}")
        A(f"v_mul_f32 v{ls}, v{MLr}, v{MLr+1}")
        for k in range(4): A(f"v_mul_f32 v{O+k}, v{MLr}, v{B+k}")
        for i in range(1, 4):
            A(f"v_fmac_f32 v{ls}, v{MLr+4*i}, v{MLr+4*i+1}")
            for k in range(4): A(f"v_fmac_f32 v{O+k}, v{MLr+4*i}, v{B+4*i+k}")
    O = 12
    def o_issue1(i):
        A(f"buffer_load_dwordx4 v[{R+16+4*i}:{R+16+4*i+3}], v{T[5]}, s[56:59], s63 offen offset:{256*i} {LDS_}")
        A(f"buffer_load_dwordx4 v[{R+4*i}:{R+4*i+3}], v{vL16}, s[56:59], s62 offen offset:{1024*i} {LDS_}")
    if MO:
        masked_poll(o_issue1, lambda i: quad(R + 4*i, 4) + [vMK, R + 16 + 4*i + 2, R + 16 + 4*i + 3], slt, "po")
        o_done(0)
    else: pipe_poll(NPT, o_issue, 8, lambda k: anyinv(quad(PSET[k], 16), T[0], vMK, [PSET[k] + 16 + 4*i + kk for i in range(4) for kk in (2, 3)]), o_done, slt, "po")
    stamp(6)
    Rs, R = R, O
    A(f"v_permlane32_swap_b32 v{R}, v{R+2}"); A(f"v_permlane32_swap_b32 v{R+1}, v{R+3}")
    A(f"v_add_f32_dpp v{ls}, v{ls}, v{ls} row_ror:4 {DPPM}")
    A(f"v_add_f32 v{R}, v{R}, v{R+2}"); A(f"v_add_f32 v{R+1}, v{R+1}, v{R+3}")
    A(f"v_add_f32_dpp v{ls}, v{ls}, v{ls} row_ror:8 {DPPM}")
    A(f"v_permlane16_swap_b32 v{R}, v{R+1}")
    A(f"v_mov_b32 v{tt}, v{ls}")
    A(f"v_add_f32 v{R}, v{R}, v{R+1}")
    A(f"v_permlane16_swap_b32 v{ls}, v{tt}")
    A(f"v_add_f32_dpp v{R}, v{R}, v{R} row_ror:4 {DPPM}")
    A(f"v_add_f32 v{ls}, v{ls}, v{tt}")
    A(f"v_mov_b32 v{tt}, v{ls}")
    A(f"v_add_f32_dpp v{R}, v{R}, v{R} row_ror:8 {DPPM}")
    A(f"v_permlane32_swap_b32 v{ls}, v{tt}")
    A(f"v_add_f32 v{ls}, v{ls}, v{tt}")
    A(f"v_rcp_f32 v{ls}, v{ls}")
    A(f"v_mul_f32 v{R}, v{R}, v{ls}")
    A(f"v_mov_b32 v{R+1}, v{R}")
    A(f"v_permlane16_swap_b32 v{R}, v{R+1}")
    A(f"v_cvt_pk_bf16_f32 v{R}, v{R}, v{R+1}")
    for t in range(4):
        A(f"v_readlane_b32 s{SP+2*t}, v{R}, {t}"); A(f"v_readlane_b32 s{SP+2*t+1}, v{R}, {32+t}")
    row_dot()
    A("s_mov_b32 exec_hi, 0x00ffffff")
    A(f"buffer_store_dwordx4 v[{ACC}:{ACC+3}], v{vYv}, s[56:59], s96 offen {STS}")
    A(f"buffer_store_dwordx4 v[{ACC+4}:{ACC+7}], v{vYv}, s[56:59], s97 offen {STS}")
    A("s_mov_b64 exec, -1")
    stamp(7)
    A("s_cmp_ge_u32 s2, 112"); A("s_cbranch_scc1 L_hend")
    YSET = [W, W + 16, W + 32, W + 48]
    def y_issue(k):
        for i in range(4): A(f"buffer_load_dwordx4 v[{YSET[k]+4*i}:{YSET[k]+4*i+3}], v{vL16}, s[56:59], s86 offen offset:{1024*i} {LDS_}")
    R = ACC + 4
    def y_done(kk):
        B = YSET[kk]
        A("s_movk_i32 s62, 0x200")
        for k in range(16): A(f"v_bfi_b32 v{B+k}, v{vMKY}, s62, v{B+k}")
        for k in range(4): A(f"v_add_f32 v{R+k}, v{B+k}, v{B+4+k}"); A(f"v_add_f32 v{R+8+k}, v{B+8+k}, v{B+12+k}")
    if MY:
        masked_poll(lambda i: A(f"buffer_load_dwordx4 v[{W+4*i}:{W+4*i+3}], v{vL16}, s[56:59], s86 offen offset:{1024*i} {LDS_}"),
                    lambda i: quad(W + 4*i, 4) + [vMKY], sly, "py")
        y_done(0)
    else: pipe_poll(NPY, y_issue, 4, lambda k: anyinv(quad(YSET[k], 16), T[0], vMKY), y_done, sly, "py")
    stamp(8)
    for k in range(4): A(f"v_add_f32 v{R+k}, v{R+k}, v{R+8+k}")
    reduce4(R); row_reduce([R])
    rnd(R)
    A(f"v_mul_f32 v{R}, v{R}, v{vG}"); rnd(R)
    A(f"v_add_f32 v{R}, v{R}, v{vXo}")
    A(f"v_cvt_pk_bf16_f32 v{R}, v{R}, v{R}")
    A("s_mov_b32 exec_lo, 0x00010001"); A("s_mov_b32 exec_hi, 0x00010001")
    A(f"buffer_store_short v{R}, v{T[4]}, s[48:51], s89 offen sc1")
    A("s_cmp_eq_u32 s2, 0"); A(f"s_mov_b32 s62, {EP}"); A("s_cselect_b32 s62, s62, 0x80000000"); A(f"v_mov_b32 v{T[0]}, s52")
    A("s_mov_b64 exec, 1")
    A(f"buffer_store_dword v{T[0]}, off, s[56:59], s62 sc1")
    A("L_hend:")
    stamp(9)
    dump_stamps(11)
    A("L_end:")
    A("s_endpgm")
    body = A.finish()
    nv = NV
    out = HEADER + "; @launch grid=(256,1,1) block=(320,1,1) lds=%d\n" % (4096 if SRV else 1024) + body
    out += f""".section .rodata,"a"
.p2align 6
.amdhsa_kernel {KN}
  .amdhsa_next_free_vgpr {nv}
  .amdhsa_next_free_sgpr 102
  .amdhsa_accum_offset {nv}
  .amdhsa_group_segment_fixed_size 0
  .amdhsa_kernarg_size 88
  .amdhsa_user_sgpr_count 2
  .amdhsa_user_sgpr_kernarg_segment_ptr 1
  .amdhsa_system_sgpr_workgroup_id_x 1
  .amdhsa_float_denorm_mode_32 3
.end_amdhsa_kernel
"""
    return out

if __name__ == "__main__":
    import json
    kw = json.loads(sys.argv[2]) if len(sys.argv) > 2 else {}
    open(sys.argv[1], "w").write(gen(**kw))
```

```python
import sys, math, struct
from asmlib import Asm
KN = "recurrent_scan__mha_block_cached__dense_activation_silu__decode_kernel"

QS, ML, HS, ZS, EP, OS, YS, TK, DG = 0x0, 0x10000, 0x20000, 0x28000, 0x38000, 0x100000, 0x80000, 0x40000, 0x380000
WS_BYTES = 0x400000
def f2u(x): return struct.unpack("<I", struct.pack("<f", x))[0]
LOG2E = 1.4426950408889634
CSC = f2u(LOG2E / 16.0)

HEADER = """; Kernarg layout for this problem (88 bytes, ptrs only, base s[0:1]):
"""

def gen(S=112, C=1, NB=4, INF=8, LEAD=4, TKW=1, diag=0, spin=200000, codepf=1, noprep=0, skip=0, wnt=1, hfirst=0, sl1=64, sl2=32, early=1, NP=2, slq=16, NPT=1, slt=0, NPY=1, sly=0, MQ=0, MO=1, MY=1, PAIR=0, PL=8, PORD=0, SRV=0, AH=2, sls=8, PM=1, sls0=0, WARM=0, LAY=0, WF='sc1', LDS_='sc1', STS='sc1'):
    A = Asm()
    global YS, TK
    YS, TK = (0x80000, 0x40000) if LAY else (0x200000, 0x300000)
    NT = 8192
    NV = 232
    WNT = ' nt' if wnt else ''
    lab = [0]
    def L(p):
        lab[0] += 1; return f"L_{p}{lab[0]}"
    nst = [0]
    def stamp(k):
        if diag: A(f"s_memrealtime s[{64+2*k}:{65+2*k}]")
    def dump_stamps(n):
        if not diag: return
        A("s_waitcnt vmcnt(0) lgkmcnt(0)")
        A("s_mov_b64 exec, -1")
        A("v_mov_b32 v40, 0")
        for k in range(n): A(f"v_writelane_b32 v40, s{64+2*k}, {k}")
        A("s_getreg_b32 s62, hwreg(HW_REG_XCC_ID)"); A("v_writelane_b32 v40, s62, 15"); A("v_writelane_b32 v40, s61, 14")
        A("s_mul_i32 s62, s2, 5"); A("s_add_u32 s62, s62, s3"); A("s_lshl_b32 s62, s62, 6"); A(f"s_add_u32 s62, s62, {DG}")
        A("v_lshlrev_b32 v41, 2, v0")
        A("s_mov_b64 exec, 0xffff")
        A("buffer_store_dword v40, v41, s[56:59], s62 offen")
        if diag == 2 and n == 6:
            A("s_mov_b64 exec, -1")
            A("s_lshl_b32 s62, s2, 2"); A("s_add_u32 s62, s62, s3"); A("s_lshl_b32 s62, s62, 8"); A(f"s_add_u32 s62, s62, {DG+0x20000}")
            A(f"buffer_store_dword v{NV-2}, v41, s[56:59], s62 offen")
    DPPM = "row_mask:0xf bank_mask:0xf"
    ROWSTEPS = ["quad_perm:[1,0,3,2]", "quad_perm:[2,3,0,1]", "row_half_mirror", "row_mirror"]
    def row_reduce(regs, op="v_add_f32", steps=ROWSTEPS):
        for st in steps:
            for r in regs: A(f"{op}_dpp v{r}, v{r}, v{r} {st} {DPPM}")
    def xrow_allreduce(pairs, op="v_add_f32"):
        for sw in ("v_permlane16_swap_b32", "v_permlane32_swap_b32"):
            for r, t in pairs: A(f"v_mov_b32 v{t}, v{r}")
            for r, t in pairs: A(f"{sw} v{r}, v{t}")
            for r, t in pairs: A(f"{op} v{r}, v{r}, v{t}")
    def rnd(r):
        A(f"v_cvt_pk_bf16_f32 v{r}, v{r}, v{r}"); A(f"v_and_b32 v{r}, 0xffff0000, v{r}")
    def srd(b, p, n):
        A(f"s_mov_b32 s{b}, s{p}"); A(f"s_mov_b32 s{b+1}, s{p+1}"); A(f"s_mov_b32 s{b+2}, {n}"); A(f"s_mov_b32 s{b+3}, 0x20000")

    vJ = NV - 1
    A(f".amdgcn_target \"amdgcn-amd-amdhsa--gfx950\"")
    A(".text"); A(f".globl {KN}"); A(".p2align 8"); A(f".type {KN},@function"); A(f"{KN}:")
    A("s_cmp_ge_u32 s2, 256"); A("s_cbranch_scc1 L_end")
    A("s_load_dwordx16 s[4:19], s[0:1], 0")
    A("s_load_dwordx4 s[20:23], s[0:1], 64")
    A("s_load_dwordx2 s[24:25], s[0:1], 80")
    if codepf:
        A("s_getpc_b64 s[94:95]")
        A("L_pc:")
        A("v_lshlrev_b32 v2, 6, v0"); A("v_min_u32 v2, L_end-L_pc, v2")
        A(f"global_load_dword v{vJ}, v2, s[94:95]")
    stamp(0)
    A("v_lshrrev_b32 v1, 6, v0"); A("v_and_b32 v0, 63, v0")
    A("v_readfirstlane_b32 s3, v1")
    A("s_lshr_b32 s26, s2, 4"); A("s_and_b32 s27, s2, 15")
    A("v_lshrrev_b32 v3, 4, v0"); A("v_and_b32 v4, 15, v0")
    A("s_cmp_eq_u32 s3, 4"); A("s_cbranch_scc1 L_helper")

    sHB, sCUR, sLEFT, sTK, sTKO, sDYN, sT, sC = 40, 41, 42, 43, 44, 45, 46, 47
    sOFF = [48, 49]; sBO, sSTR, sNB = 50, 51, 60
    vM, vNM, vL, vA, vB, vT, vU1, vU2, vU3 = 3, 4, 5, 6, 7, 8, 9, 10, 11
    vQ, vACC, vBUF = 12, 20, 36
    nA = (LEAD + 1) // 2
    A("v_lshlrev_b32 v1, 9, v3"); A("v_lshl_add_u32 v1, v4, 4, v1")
    A(f"s_lshl_b32 s{sHB}, s26, 25")
    sPT, sMODE, sTKP = 36, 37, 38
    NPAIR, NPOOL = 256 - PL - 2*S, 8*PL
    if PAIR:
        assert LEAD == 4 and NPAIR >= 0
        A("s_lshl_b32 s62, s3, 12"); A(f"s_add_u32 s{sHB}, s{sHB}, s62")
        A(f"s_lshr_b32 s{sT}, s27, 1"); A(f"s_lshl_b32 s{sT}, s{sT}, 22"); A(f"s_add_u32 s{sOFF[0]}, s{sT}, s{sHB}")
        A("s_bitcmp1_b32 s27, 0")
        A(f"s_mov_b32 s{sT}, {(PL//2)*16384}"); A(f"s_cselect_b32 s{sT}, {(255-PL//2)*16384}, s{sT}")
        A(f"s_movk_i32 s{sSTR}, 16384"); A(f"s_cselect_b32 s{sSTR}, -16384, s{sSTR}")
        A(f"s_add_u32 s{sOFF[0]}, s{sOFF[0]}, s{sT}")
        A(f"s_add_u32 s{sOFF[1]}, s{sOFF[0]}, s{sSTR}")
        A(f"s_add_u32 s{sBO}, s{sOFF[1]}, s{sSTR}")
    else:
        A(f"s_mul_i32 s{sCUR}, s27, {4*(128 if PM else S)}"); A(f"s_add_u32 s{sCUR}, s{sCUR}, s3")
        A(f"s_lshl_b32 s{sT}, s{sCUR}, 12"); A(f"s_add_u32 s{sOFF[0]}, s{sT}, s{sHB}")
        A(f"s_add_u32 s{sOFF[1]}, s{sOFF[0]}, {4*4096}")
        A(f"s_add_u32 s{sBO}, s{sOFF[0]}, {nA*4*4096}")
    A("s_waitcnt lgkmcnt(0)")
    srd(28, 6, 1 << 29); srd(32, 8, 1 << 29)
    if hfirst: A("s_barrier")
    IOFF = [0, 256, 2048, 2304]
    def kv(st, isv, i): return vBUF + st*32 + isv*16 + i*4
    def load(st, isv, i, so=None):
        b = kv(st, isv, i)
        if so is None: so = sOFF[st]
        A(f"buffer_load_dwordx4 v[{b}:{b+3}], v1, s[{28+4*isv}:{31+4*isv}], s{so} offen offset:{IOFF[i]} nt")
    def pub_voff(dst, t1, t2):
        A(f"v_lshrrev_b32 v{t1}, 1, v3"); A(f"v_lshlrev_b32 v{t1}, 3, v{t1}"); A(f"v_lshrrev_b32 v{t2}, 1, v4"); A(f"v_add_u32 v{t1}, v{t1}, v{t2}")
        A(f"v_lshlrev_b32 v{dst}, 12, v{t1}")
        A(f"v_and_b32 v{t1}, 1, v4"); A(f"v_lshlrev_b32 v{t1}, 5, v{t1}"); A(f"v_and_b32 v{t2}, 1, v3"); A(f"v_lshlrev_b32 v{t2}, 4, v{t2}")
        A(f"v_or3_b32 v{dst}, v{dst}, v{t1}, v{t2}")
    def setup():
        stamp(1)
        srd(56, 24, WS_BYTES)
        pub_voff(2, 6, 7)
        A("s_lshl_b32 s54, s27, 2"); A("s_add_u32 s54, s54, s3")
        A("s_lshl_b32 s52, s26, 16"); A("s_lshl_b32 s55, s54, 6"); A("s_add_u32 s52, s52, s55"); A(f"s_add_u32 s52, s52, {OS}")
        A("s_lshl_b32 s53, s26, 10"); A("s_lshl_b32 s55, s54, 4"); A("s_add_u32 s53, s53, s55"); A(f"s_add_u32 s53, s53, {ML}")
        for i in range(16): A(f"v_mov_b32 v{vACC+i}, 0")
        if PAIR:
            A(f"s_mov_b32 s{sLEFT}, {S-nA-1}"); A(f"s_mov_b32 s{sMODE}, 0")
            A(f"s_lshl_b32 s{sTKP}, s26, 2"); A(f"s_add_u32 s{sTKP}, s{sTKP}, s3"); A(f"s_lshl_b32 s{sTKP}, s{sTKP}, 12"); A(f"s_add_u32 s{sTKP}, s{sTKP}, {TK}")
            A(f"s_lshr_b32 s{sTKO}, s27, 1"); A(f"s_lshl_b32 s{sTKO}, s{sTKO}, 8"); A(f"s_add_u32 s{sTKO}, s{sTKO}, s{sTKP}"); A(f"s_add_u32 s{sTKO}, s{sTKO}, 256")
        else:
            A(f"s_add_u32 s{sCUR}, s{sCUR}, {4*nA}"); A(f"s_mov_b32 s{sLEFT}, {S-nA}"); A(f"s_mov_b32 s{sSTR}, 4"); A(f"s_mov_b32 s{sMODE}, 0")
        if SRV: A(f"s_lshl_b32 s{sCUR}, s{sCUR}, 12"); A(f"s_add_u32 s{sCUR}, s{sCUR}, s{sHB}"); A(f"s_mov_b32 s{sMODE}, 0")
        if PAIR or SRV: pass
        elif TKW:
            A(f"s_add_u32 s{sDYN}, s3, {S*4 if PM else 16*S*4}")
            A(f"s_lshl_b32 s{sTKO}, s26, 2"); A(f"s_add_u32 s{sTKO}, s{sTKO}, s3"); A(f"s_lshl_b32 s{sTKO}, s{sTKO}, 12"); A(f"s_add_u32 s{sTKO}, s{sTKO}, {TK}")
        else:
            A(f"s_mov_b32 s{sDYN}, {16*S*4}")
            A(f"s_lshl_b32 s{sTKO}, s26, 14"); A(f"s_add_u32 s{sTKO}, s{sTKO}, {TK}")
        A(f"s_mov_b32 s{sC}, {CSC}"); A(f"s_mov_b32 s{sNB}, 0"); A(f"s_mov_b32 s63, {1<<22}")
        A("v_lshlrev_b32 v8, 4, v4")
        A("v_mov_b32 v10, 512")
        A(f"v_mov_b32 v{vM}, 0xff7fffff"); A(f"v_mov_b32 v{vL}, 0")
        A(f"v_mul_f32 v{vNM}, s{sC}, v{vM}"); A(f"v_sub_f32 v{vNM}, 0, v{vNM}")
        if not hfirst: A("s_barrier")
    def qcheck():
        A("ds_read_b64 v[6:7], v10")
        A(f"ds_read_b128 v[{vQ}:{vQ+3}], v8"); A(f"ds_read_b128 v[{vQ+4}:{vQ+7}], v8 offset:256")
        A("s_waitcnt lgkmcnt(0)")
        A("v_readfirstlane_b32 s62, v6")
        A("s_cmp_lg_u32 s62, 0"); A("s_cbranch_scc1 L_go")
    items = [(n >> 1, n & 1, None) for n in range(LEAD)]
    for b in range(NB): items += [(2 + b, 0, sBO), (2 + b, 1, sBO)]
    n = 0
    for (st, isv, so) in items:
        if so is not None and isv == 0 and early: qcheck()
        for i in range(4):
            if n == INF: setup()
            if n >= INF: A(f"s_waitcnt vmcnt({INF-1})")
            load(st, isv, i, so); n += 1
        if so is not None and isv == 1:
            A(f"s_add_u32 s{sBO}, s{sBO}, " + (f"s{sSTR}" if PAIR else f"{4*4096}")); A(f"s_add_u32 s{sNB}, s{sNB}, 1")
    assert 4 * LEAD > INF
    A("L_qspin:")
    qcheck()
    A("s_sleep 1")
    A("s_sub_u32 s63, s63, 1"); A("s_cbranch_scc0 L_qspin"); A("s_branch L_end")
    A("L_go:")
    A("v_readfirstlane_b32 s54, v7")
    if PAIR or SRV: A(f"s_mov_b32 s{sCUR}, s{sBO}")
    else: A(f"s_lshl_b32 s62, s{sNB}, 2"); A(f"s_add_u32 s{sCUR}, s{sCUR}, s62")
    A(f"s_sub_u32 s{sLEFT}, s{sLEFT}, s{sNB}")
    if diag: A(f"s_mov_b32 s61, s{sNB}"); A(f"s_mov_b32 s74, s{sNB}")
    stamp(2)
    rare = []
    VW = 4 * (LEAD - 1)
    dyns = []; srvs = []
    LCNT, LROWS = 520, 1024
    def newtile(dst):
        lj, ln = L("j"), L("n")
        if SRV:
            ld = L("dyn")
            A(f"s_sub_u32 s{sLEFT}, s{sLEFT}, 1"); A(f"s_cbranch_scc1 {ld}")
            A(f"s_mov_b32 s{dst}, s{sCUR}"); A(f"s_add_u32 s{sCUR}, s{sCUR}, 16384")
            A(f"{ln}:")
            srvs.append((ld, ln, dst))
            return
        if PAIR:
            ld = L("dyn")
            A(f"s_sub_u32 s{sLEFT}, s{sLEFT}, 1"); A(f"s_cbranch_scc1 {ld}")
            A(f"{lj}:")
            A(f"s_mov_b32 s{dst}, s{sCUR}"); A(f"s_add_u32 s{sCUR}, s{sCUR}, s{sSTR}")
            A(f"{ln}:")
            dyns.append((ld, lj, ln, dst))
            return
        A(f"s_cmp_gt_i32 s{sLEFT}, 0"); A(f"s_cbranch_scc1 {lj}")
        A("s_waitcnt lgkmcnt(0)")
        if PM:
            assert C == 1 and TKW
            A(f"s_and_b32 s{sT}, s{sTK}, 15"); A(f"s_lshl_b32 s{sT}, s{sT}, 7"); A(f"s_lshr_b32 s{sCUR}, s{sTK}, 4"); A(f"s_add_u32 s{sCUR}, s{sCUR}, s{sT}")
            A(f"s_lshl_b32 s{sCUR}, s{sCUR}, 2"); A(f"s_add_u32 s{sCUR}, s{sCUR}, s{sDYN}"); A(f"s_mov_b32 s{sLEFT}, {C}")
            A(f"s_cmp_lt_u32 s{sTK}, {16*(128-S)}"); A(f"s_cselect_b32 s{sCUR}, s{sCUR}, {NT}")
        else:
            A(f"s_mul_i32 s{sCUR}, s{sTK}, {(4 if TKW else 1)*C}"); A(f"s_add_u32 s{sCUR}, s{sCUR}, s{sDYN}"); A(f"s_mov_b32 s{sLEFT}, {C}")
        if not TKW: A(f"s_mov_b32 s{sSTR}, 1")
        A(f"s_cmp_lt_u32 s{sCUR}, {NT}"); A(f"s_cselect_b32 s{sLEFT}, s{sLEFT}, 1000")
        A(f"{lj}:")
        A(f"s_cmp_lg_u32 s{sLEFT}, {C}"); A(f"s_cbranch_scc1 {ln}")
        A(f"s_mov_b32 s{sTK}, 1"); A(f"s_atomic_add s{sTK}, s[24:25], s{sTKO} glc")
        if WARM & 6:
            A(f"s_cmp_lg_u32 s{sMODE}, 0"); A(f"s_cbranch_scc1 {ln}")
            A(f"s_mov_b32 s{sMODE}, 1")
            if WARM & 2:
                A(f"buffer_load_dword v{vBUF+64}, v2, s[56:59], s52 offen sc1")
                A(f"buffer_load_dword v{vBUF+65}, off, s[56:59], s53 sc1")
            if WARM & 4:
                A(f"v_lshlrev_b32 v{vBUF+66}, 4, v0")
                A("s_lshl_b32 s62, s2, 2"); A("s_add_u32 s62, s62, s3"); A("s_lshl_b32 s62, s62, 10"); A(f"s_add_u32 s62, s62, {OS}")
                A(f"buffer_load_dword v{vBUF+67}, v{vBUF+66}, s[56:59], s62 offen sc1")
                A(f"s_add_u32 s62, s62, {YS-OS}"); A("s_cmp_lt_u32 s2, 112"); A("s_cselect_b32 s62, s62, 0x80000000")
                A(f"buffer_load_dword v{vBUF+68}, v{vBUF+66}, s[56:59], s62 offen sc1")
        A(f"{ln}:")
        A(f"s_lshl_b32 s{sT}, s{sCUR}, 12"); A(f"s_add_u32 s{sT}, s{sT}, s{sHB}")
        A(f"s_cmp_lt_u32 s{sCUR}, {NT}"); A(f"s_cselect_b32 s{dst}, s{sT}, 0x80000000")
        A(f"s_add_u32 s{sCUR}, s{sCUR}, s{sSTR}"); A(f"s_sub_i32 s{sLEFT}, s{sLEFT}, 1")
    def body(st, stream):
        o = st ^ 1
        if stream:
            A(f"s_cmp_ge_u32 s{sOFF[st]}, 0x80000000"); A("s_cbranch_scc1 L_sdone")
            if diag: A("s_add_u32 s61, s61, 1")
            if LEAD == 4: newtile(sOFF[st])
            if LEAD == 2: newtile(sOFF[o])
            A(f"s_waitcnt vmcnt({VW})")
            if LEAD == 3:
                for i in range(4): load(o, 1, i)
            if LEAD == 2:
                for i in range(4): load(o, 0, i)
        for half in range(2):
            for d in range(4):
                for (acc, i) in ((vA, half), (vB, 2 + half)):
                    c = "0" if (half == 0 and d == 0) else f"v{acc}"
                    A(f"v_dot2_f32_bf16 v{acc}, v{kv(st,0,i)+d}, v{vQ+half*4+d}, {c}")
        if stream and LEAD == 4: load(st, 0, 0); load(st, 0, 1); load(st, 0, 2)
        for k, stp in enumerate(ROWSTEPS):
            A(f"v_add_f32_dpp v{vA}, v{vA}, v{vA} {stp} {DPPM}")
            A(f"v_add_f32_dpp v{vB}, v{vB}, v{vB} {stp} {DPPM}")
            if k == 0 and stream and LEAD == 4: load(st, 0, 3)
        A(f"v_cvt_pk_bf16_f32 v{vT}, v{vA}, v{vB}")
        A(f"v_lshlrev_b32 v{vA}, 16, v{vT}"); A(f"v_and_b32 v{vB}, 0xffff0000, v{vT}")
        A(f"v_max_f32 v{vT}, v{vA}, v{vB}")
        A(f"v_cmp_gt_f32 vcc, v{vT}, v{vM}")
        lr, lb = L("rare"), L("back")
        A(f"s_cbranch_vccnz {lr}")
        A(f"{lb}:")
        rare.append((lr, lb))
        A(f"v_fma_f32 v{vA}, v{vA}, s{sC}, v{vNM}"); A(f"v_fma_f32 v{vB}, v{vB}, s{sC}, v{vNM}")
        A(f"v_exp_f32 v{vA}, v{vA}"); A(f"v_exp_f32 v{vB}, v{vB}")
        if stream:
            if LEAD == 3: newtile(sOFF[st])
            A(f"s_waitcnt vmcnt({VW})")
            if LEAD == 3:
                for i in range(4): load(st, 0, i)
            if LEAD == 2:
                for i in range(4): load(o, 1, i)
        A(f"v_cvt_pk_bf16_f32 v{vT}, v{vA}, 0"); A(f"v_cvt_pk_bf16_f32 v{vU1}, 0, v{vA}")
        A(f"v_cvt_pk_bf16_f32 v{vU2}, v{vB}, 0"); A(f"v_cvt_pk_bf16_f32 v{vU3}, 0, v{vB}")
        A(f"v_add_f32 v{vL}, v{vL}, v{vA}"); A(f"v_add_f32 v{vL}, v{vL}, v{vB}")
        for i in range(4):
            lo, hi = (vT, vU1) if i < 2 else (vU2, vU3)
            ab = vACC + (i & 1) * 8
            for d in range(4):
                A(f"v_dot2c_f32_bf16 v{ab+2*d}, v{kv(st,1,i)+d}, v{lo}")
                A(f"v_dot2c_f32_bf16 v{ab+2*d+1}, v{kv(st,1,i)+d}, v{hi}")
            if stream and LEAD == 4: load(st, 1, i)
    A(".p2align 6")
    A("L_loop:")
    if diag == 2:
        A("s_memrealtime s[86:87]"); A("s_lshr_b32 s62, s61, 1"); A("s_min_u32 m0, s62, 63"); A("s_waitcnt lgkmcnt(0)"); A(f"v_writelane_b32 v{vJ-1}, s86, m0")
    body(0, True); body(1, True)
    A(f"s_cmp_eq_u32 s{sNB}, 0"); A("s_cbranch_scc1 L_loop")
    for b in range(NB):
        body(2 + b, False)
        if b < NB - 1: A(f"s_cmp_eq_u32 s{sNB}, {b+1}"); A("s_cbranch_scc1 L_bdone")
    A("L_bdone:")
    A(f"s_mov_b32 s{sNB}, 0")
    A("s_branch L_loop")
    for ld, ln, dst in srvs:
        l1 = L("d")
        A(f"{ld}:")
        A(f"s_mov_b32 s{sLEFT}, 0"); A(f"s_mov_b32 s{dst}, 0x80000000")
        A(f"s_cmp_lg_u32 s{sMODE}, 0"); A(f"s_cbranch_scc1 {ln}")
        A("s_mov_b64 exec, 1")
        A(f"v_mov_b32 v{vT}, {LCNT}"); A(f"v_mov_b32 v{vU1}, 1")
        A(f"ds_add_rtn_u32 v{vU1}, v{vT}, v{vU1}")
        A("s_waitcnt lgkmcnt(0)")
        A(f"v_and_b32 v{vT}, -4, v{vU1}")
        A(f"v_readfirstlane_b32 s{sT}, v{vU1}")
        A(f"{l1}:")
        A(f"ds_read_b32 v{vU1}, v{vT} offset:{LROWS}")
        A(f"s_and_b32 s{sT}, s{sT}, 3")
        A("s_waitcnt lgkmcnt(0)")
        A(f"v_readfirstlane_b32 s62, v{vU1}")
        A("s_sub_u32 s63, s63, 1"); A("s_cbranch_scc1 L_end")
        A(f"s_cmp_eq_u32 s62, 0"); A(f"s_cbranch_scc1 {l1}")
        A("s_mov_b64 exec, -1")
        A(f"s_lshl_b32 s{sT}, s{sT}, 12"); A(f"s_or_b32 s{dst}, s62, s{sT}")
        A(f"s_lshr_b32 s{sMODE}, s62, 31")
        A(f"s_branch {ln}")
    for ld, lj, ln, dst in dyns:
        l1, l2, l3 = L("d"), L("d"), L("d")
        A(f"{ld}:")
        A(f"s_mov_b32 s{sLEFT}, 0")
        A(f"s_cmp_lg_u32 s{sMODE}, 0"); A(f"s_cbranch_scc1 {l1}")
        A(f"s_mov_b32 s{sMODE}, 1"); A(f"s_mov_b32 s{sPT}, 1"); A(f"s_atomic_add s{sPT}, s[24:25], s{sTKP} glc")
        A(f"{l3}:")
        A(f"s_mov_b32 s{sTK}, 1"); A(f"s_atomic_add s{sTK}, s[24:25], s{sTKO} glc")
        A(f"s_branch {lj}")
        A(f"{l1}:")
        A("s_waitcnt lgkmcnt(0)")
        A(f"s_cmp_eq_u32 s{sMODE}, 2"); A(f"s_cbranch_scc1 {l2}")
        A(f"s_cmp_lt_u32 s{sTK}, {NPAIR}"); A(f"s_cbranch_scc1 {l3}")
        A(f"s_mov_b32 s{sMODE}, 2"); A(f"s_mov_b32 s{sTK}, s{sPT}")
        A(f"{l2}:")
        A(f"s_mov_b32 s{dst}, 0x80000000")
        A(f"s_cmp_lt_u32 s{sTK}, {NPOOL}"); A(f"s_cbranch_scc0 {ln}")
        lg = PL.bit_length() - 1
        if PORD == 0:
            A(f"s_lshr_b32 s{sT}, s{sTK}, {lg}"); A(f"s_and_b32 s62, s{sTK}, {PL-1}")
        else:
            A(f"s_and_b32 s{sT}, s{sTK}, 7"); A(f"s_lshr_b32 s62, s{sTK}, 3")
        A(f"s_lshl_b32 s{sT}, s{sT}, 8"); A(f"s_add_u32 s{sT}, s{sT}, s62"); A(f"s_sub_u32 s{sT}, s{sT}, {PL//2}"); A(f"s_and_b32 s{sT}, s{sT}, 2047")
        A(f"s_lshl_b32 s{sT}, s{sT}, 14"); A(f"s_add_u32 s{dst}, s{sT}, s{sHB}")
        A(f"s_mov_b32 s{sTK}, 1"); A(f"s_atomic_add s{sTK}, s[24:25], s{sTKP} glc")
        A(f"s_branch {ln}")
    for lr, lb in rare:
        A(f"{lr}:")
        xrow_allreduce([(vT, vU1)], "v_max_f32")
        A(f"v_max_f32 v{vT}, v{vT}, v{vM}")
        A(f"v_mul_f32 v{vNM}, s{sC}, v{vT}"); A(f"v_sub_f32 v{vNM}, 0, v{vNM}")
        A(f"v_fma_f32 v{vU1}, v{vM}, s{sC}, v{vNM}"); A(f"v_exp_f32 v{vU1}, v{vU1}")
        A(f"v_mov_b32 v{vM}, v{vT}")
        A(f"v_mul_f32 v{vL}, v{vL}, v{vU1}")
        for i in range(0, 16, 2): A(f"v_pk_mul_f32 v[{vACC+i}:{vACC+i+1}], v[{vACC+i}:{vACC+i+1}], v[{vT}:{vU1}] op_sel:[0,1] op_sel_hi:[1,1]")
        A(f"s_branch {lb}")
    A("L_sdone:")
    stamp(3)
    A("s_lshr_b32 s55, s54, 4"); A("s_lshr_b32 s62, s54, 8"); A("s_lshr_b32 s63, s54, 12")
    for i in range(8): A(f"v_permlane32_swap_b32 v{vACC+i}, v{vACC+8+i}")
    A(f"v_mov_b32 v{vT}, v{vL}")
    for i in range(8): A(f"v_add_f32 v{vACC+i}, v{vACC+i}, v{vACC+8+i}")
    A(f"v_permlane16_swap_b32 v{vL}, v{vT}")
    for i in range(4): A(f"v_permlane16_swap_b32 v{vACC+i}, v{vACC+4+i}")
    A(f"v_add_f32 v{vL}, v{vL}, v{vT}")
    for i in range(4): A(f"v_add_f32 v{vACC+i}, v{vACC+i}, v{vACC+4+i}")
    A(f"v_mov_b32 v{vT}, v{vL}")
    for i, t in enumerate((54, 55, 62, 63)): A(f"v_bfi_b32 v{vACC+i}, 15, s{t}, v{vACC+i}")
    A(f"v_permlane32_swap_b32 v{vL}, v{vT}")
    A(f"buffer_store_dwordx4 v[{vACC}:{vACC+3}], v2, s[56:59], s52 offen {STS}")
    A(f"v_add_f32 v{vU1}, v{vL}, v{vT}")
    A(f"v_mov_b32 v{vT}, v{vM}"); A(f"v_mov_b32 v{vU2}, s54"); A(f"v_mov_b32 v{vU3}, s54")
    A("s_mov_b64 exec, 1")
    A(f"buffer_store_dwordx4 v[{vT}:{vU3}], off, s[56:59], s53 {STS}")
    A("s_barrier")
    stamp(4)
    dump_stamps(6)
    A("s_endpgm")

    A("L_helper:")
    A("s_setprio 3")
    X = 8
    XLO, XHI = 16, 24
    ACC = 32
    W = 48
    R = 112
    vM1 = 144
    vMean, vYv, vZv, vQv, vL4, vRs, vL16 = 148, 149, 150, 151, 152, 153, 154
    T = [156, 157, 158, 159, 160, 161, 162, 163]
    vF0, vF, vLF = 155, 164, 165
    XA, XAF, XB, XBF = 8, 16, 24, 112
    A(f"v_mov_b32 v{T[4]}, 0"); A(f"v_mov_b32 v{T[5]}, 0"); A(f"v_mov_b32 v{vLF}, 512")
    A(f"v_lshlrev_b32 v{vL16}, 4, v0")
    A(f"v_mov_b32 v{T[6]}, 0"); A(f"v_mov_b32 v{T[7]}, 0")
    A(f"ds_write_b128 v{vLF}, v[{T[4]}:{T[7]}]")
    if SRV:
        for i in range(3): A(f"ds_write_b128 v{vL16}, v[{T[4]}:{T[7]}] offset:{LROWS+1024*i}")
    A(f"v_lshrrev_b32 v{T[0]}, 3, v0")
    A(f"v_mul_u32_u24 v{T[1]}, 28, v{T[0]}")
    A(f"v_mul_u32_u24 v{T[2]}, {14*8192}, v{T[0]}")
    A(f"v_and_b32 v{T[3]}, 7, v0")
    A(f"v_lshl_add_u32 v{T[2]}, v{T[3]}, 4, v{T[2]}")
    A("s_lshr_b32 s61, s27, 2")
    A("s_mul_i32 s60, s61, 224")
    A(f"s_mul_i32 s62, s61, {112*8192}"); A("s_lshl_b32 s63, s26, 9"); A("s_add_u32 s62, s62, s63")
    A("s_and_b32 s63, s27, 3"); A("s_lshl_b32 s63, s63, 7"); A("s_add_u32 s62, s62, s63")
    A("s_lshl_b32 s93, s26, 12")
    lnc = L("noclr")
    A("s_cmp_lg_u32 s27, 0")
    A("s_waitcnt lgkmcnt(0)")
    A(f"s_load_dword s52, s[24:25], {EP}")
    srd(56, 24, WS_BYTES)
    A(f"s_cbranch_scc1 {lnc}")
    A(f"v_lshlrev_b32 v{T[4]}, 8, v0")
    A("s_lshl_b32 s61, s26, 14"); A(f"s_add_u32 s61, s61, {TK}")
    if SRV: A("s_mov_b64 exec, 1")
    A(f"buffer_store_dword v{T[5]}, v{T[4]}, s[56:59], s61 offen sc1")
    A("s_mov_b64 exec, -1")
    A(f"{lnc}:")
    srd(28, 4, 896); srd(32, 10, 448*4096*2)
    A(f"buffer_load_dwordx4 v[{XA}:{XA+3}], v{vL16}, s[28:31], 0 offen")
    A(f"buffer_load_dwordx4 v[{XB}:{XB+3}], v{T[1]}, s[28:31], s60 offen")
    A(f"buffer_load_dwordx3 v[{XB+4}:{XB+6}], v{T[1]}, s[28:31], s60 offen offset:16")
    for i in range(14):
        A(f"buffer_load_dwordx4 v[{W+4*i}:{W+4*i+3}], v{T[2]}, s[32:35], s62 offen{WNT}")
        if i < 13: A("s_add_u32 s62, s62, 8192")
    A("s_barrier")
    vMK, vTa, vTb, vMKY = vM1, vM1 + 1, vM1 + 2, vM1 + 3
    A(f"v_mov_b32 v{vMK}, 15"); A(f"v_mov_b32 v{vMKY}, 0x3ff")
    for i in range(8): A(f"v_mov_b32 v{ACC+i}, 0")
    A(f"v_lshlrev_b32 v{vQv}, 5, v{T[3]}"); A(f"v_lshrrev_b32 v{T[4]}, 5, v0"); A(f"v_lshl_add_u32 v{vQv}, v{T[4]}, 4, v{vQv}")
    A(f"v_and_b32 v{T[4]}, 1, v3"); A(f"v_lshl_add_u32 v{vQv}, v{T[4]}, 3, v{vQv}")
    def qpub(src, so):
        A("s_mov_b32 exec_lo, 0x00ff00ff"); A("s_mov_b32 exec_hi, 0x00ff00ff")
        A(f"buffer_store_dwordx2 v[{src}:{src+1}], v{vQv}, s[56:59], s{so} offen sc1")
        A("s_mov_b64 exec, -1")
    NCL = -2
    A("s_lshl_b32 s60, s2, 8")
    A(f"v_lshlrev_b32 v{vTb}, 3, v{T[4]}")
    A(f"s_mov_b32 s90, 0x05040100"); A(f"s_mov_b32 s91, 0x07060302")
    A(f"s_mov_b32 s62, {f2u(1.0/448.0)}"); A(f"s_mov_b32 s63, {f2u(448.0)}")
    A("s_mov_b32 s88, -1"); A("s_mov_b32 s89, 0x00ffffff")
    A(f"s_mov_b32 s99, {spin}")
    A(f"s_waitcnt vmcnt(14)")
    stamp(1)
    def unpack(dst, src):
        return [f"v_lshlrev_b32 v{dst}, 16, v{src}", f"v_and_b32 v{dst+1}, 0xffff0000, v{src}"]
    def pr(r): return f"v[{r}:{r+1}]"
    def weave(chain, fill, k=2):
        fill = list(fill)
        for c in chain:
            A(c)
            for _ in range(k):
                if fill: A(fill.pop(0))
        for f in fill: A(f)
    def allred(r, t):
        ch = [f"v_add_f32_dpp v{r}, v{r}, v{r} {st} {DPPM}" for st in ROWSTEPS]
        for sw in ("v_permlane16_swap_b32", "v_permlane32_swap_b32"):
            ch += [f"v_mov_b32 v{t}, v{r}", f"{sw} v{r}, v{t}", f"v_add_f32 v{r}, v{r}, v{t}"]
        return ch
    def div448(r, t):
        return [f"v_mul_f32 v{t}, s62, v{r}", f"v_fma_f32 v{r}, -v{t}, s63, v{r}", f"v_fma_f32 v{r}, v{r}, s62, v{t}"]
    def rndl(r): return [f"v_cvt_pk_bf16_f32 v{r}, v{r}, v{r}", f"v_and_b32 v{r}, 0xffff0000, v{r}"]
    s_, t_, q_, u_ = T[0], T[1], T[2], T[3]
    for k in range(4):
        for ins in unpack(XAF+2*k, XA+k): A(ins)
    A(f"v_pk_add_f32 {pr(T[4])}, {pr(XAF)}, {pr(XAF+2)}"); A(f"v_pk_add_f32 {pr(T[6])}, {pr(XAF+4)}, {pr(XAF+6)}")
    A(f"v_pk_add_f32 {pr(T[4])}, {pr(T[4])}, {pr(T[6])}")
    A(f"v_add_f32 v{s_}, v{T[4]}, v{T[5]}")
    fillB = []
    for k in range(7): fillB += unpack(XBF+2*k, XB+k)
    weave(allred(s_, t_) + div448(s_, t_), fillB, 2)
    BCST = "op_sel:[0,0] op_sel_hi:[1,0]"
    for k in range(4): A(f"v_pk_add_f32 {pr(XAF+2*k)}, {pr(XAF+2*k)}, {pr(s_)} {BCST} neg_lo:[0,1] neg_hi:[0,1]")
    A(f"v_cvt_pk_bf16_f32 v{vMean}, v{s_}, v{s_}")
    A(f"v_pk_mul_f32 {pr(T[4])}, {pr(XAF)}, {pr(XAF)}"); A(f"v_pk_mul_f32 {pr(T[6])}, {pr(XAF+2)}, {pr(XAF+2)}")
    A(f"v_and_b32 v{vMean}, 0xffff0000, v{vMean}")
    A(f"v_pk_fma_f32 {pr(T[4])}, {pr(XAF+4)}, {pr(XAF+4)}, {pr(T[4])}"); A(f"v_pk_fma_f32 {pr(T[6])}, {pr(XAF+6)}, {pr(XAF+6)}, {pr(T[6])}")
    A(f"v_pk_add_f32 {pr(T[4])}, {pr(T[4])}, {pr(T[6])}")
    A(f"v_add_f32 v{q_}, v{T[4]}, v{T[5]}")
    A(f"v_cndmask_b32 v{q_}, 0, v{q_}, s[88:89]")
    fillB = []
    for k in range(7): fillB.append(f"v_pk_add_f32 {pr(XBF+2*k)}, {pr(XBF+2*k)}, {pr(vMean)} {BCST} neg_lo:[0,1] neg_hi:[0,1]")
    for k in range(7): fillB.append(f"v_cvt_pk_bf16_f32 v{XB+k}, v{XBF+2*k}, v{XBF+2*k+1}")
    for k in range(7): fillB += unpack(XBF+2*k, XB+k)
    chain = allred(q_, t_) + div448(q_, t_) + rndl(q_) + [f"v_add_f32 v{q_}, {f2u(1e-5)}, v{q_}"] + rndl(q_) + [f"v_sqrt_f32 v{q_}, v{q_}"] + rndl(q_) + [f"v_rcp_f32 v{T[4]}, v{q_}"]
    weave(chain, fillB, 2)
    A(f"v_mov_b32 v{vRs}, v{T[4]}")
    for k in range(7): A(f"v_pk_mul_f32 {pr(XBF+2*k)}, {pr(XBF+2*k)}, {pr(T[4])} {BCST}")
    for k in range(7): A(f"v_cvt_pk_bf16_f32 v{XB+k}, v{XBF+2*k}, v{XBF+2*k+1}")
    def slice_dot(Wb, waits):
        for k in range(7):
            if waits: A(f"s_waitcnt vmcnt({14+NCL-2*k})")
            for c in range(4):
                a, b = Wb + 8*k + c, Wb + 8*k + 4 + c
                A(f"v_perm_b32 v{T[c]}, v{b}, v{a}, s90"); A(f"v_perm_b32 v{b}, v{b}, v{a}, s91")
            for c in range(4):
                A(f"v_dot2c_f32_bf16 v{ACC+2*c}, v{T[c]}, v{XB+k}")
                A(f"v_dot2c_f32_bf16 v{ACC+2*c+1}, v{Wb+8*k+4+c}, v{XB+k}")
        for i in range(4): A(f"v_permlane32_swap_b32 v{ACC+i}, v{ACC+4+i}")
        for i in range(4): A(f"v_add_f32 v{ACC+i}, v{ACC+i}, v{ACC+4+i}")
        for i in range(2): A(f"v_permlane16_swap_b32 v{ACC+i}, v{ACC+2+i}")
        for i in range(2): A(f"v_add_f32 v{ACC+i}, v{ACC+i}, v{ACC+2+i}")
        for i in range(2): A(f"v_add_f32_dpp v{ACC+i}, v{ACC+i}, v{ACC+i} row_ror:8 {DPPM}")
        for i, t in enumerate((vTa, vTb)): A(f"v_bfi_b32 v{ACC+i}, v{vMK}, v{t}, v{ACC+i}")
    A("s_waitcnt lgkmcnt(0)")
    A("s_add_u32 s52, s52, 0x11111111")
    A("s_lshr_b32 s53, s52, 8"); A("s_lshr_b32 s54, s52, 16"); A("s_lshr_b32 s55, s52, 24")
    A("s_lshr_b32 s100, s52, 4"); A("s_lshr_b32 s101, s52, 12")
    A(f"v_lshrrev_b32 v{vTa}, v{vTb}, s52"); A(f"v_lshrrev_b32 v{vTb}, v{vTb}, s100")
    slice_dot(W, True)
    qpub(ACC, 60)
    stamp(2)
    def anyinv(pairs, t, mask, full=()):
        def chain(ps, a0, a1):
            cur = [a0, a1]
            for k, (r, tg) in enumerate(ps):
                if k < 2: A(f"v_xor_b32 v{cur[k]}, {tg}, v{r}")
                else: A(f"v_bitop3_b32 v{cur[k&1]}, v{cur[k&1]}, v{r}, {tg} bitop3:0xf6")
        pairs = list(pairs)
        if len(pairs) == 1:
            A(f"v_xor_b32 v{t}, {pairs[0][1]}, v{pairs[0][0]}"); A(f"v_and_b32 v{t}, v{mask}, v{t}")
        else:
            chain(pairs, t, t + 1)
            if full: chain([(r, "s52") for r in full], t + 2, t + 3)
            A(f"v_bitop3_b32 v{t}, v{t}, v{t+1}, v{mask} bitop3:0xa8")
            if full: A(f"v_or3_b32 v{t}, v{t}, v{t+2}, v{t+3}")
        A(f"v_cmp_ne_u32 vcc, 0, v{t}")
    def quadB(b, n): return [(b + i, f"s{52 + (i & 3)}") for i in range(n)]
    def quad(b, n): return [(b + i, f"s{(52, 100, 53, 101)[i & 3]}") for i in range(n)]
    def pipe_poll(nsets, issue, nld, check, done, sleep, name):
        lp, lo = L(name), L(name + "o")
        ok = [L(name + "k") for _ in range(nsets)]
        for k in range(nsets - 1):
            issue(k)
            if sleep: A(f"s_sleep {sleep}")
        A(f"{lp}:")
        for k in range(nsets):
            issue((k + nsets - 1) % nsets)
            A(f"s_waitcnt vmcnt({nld*(nsets-1)})")
            check(k)
            A(f"s_cbranch_vccz {ok[k]}")
        A("s_sub_u32 s99, s99, 1"); A(f"s_cbranch_scc0 {lp}"); A("s_branch L_end")
        for k in range(nsets):
            A(f"{ok[k]}:")
            done(k)
            if k < nsets - 1: A(f"s_branch {lo}")
        A(f"{lo}:")
    def masked_poll(issue, check, sleep, name, quads=False):
        lp, lo = L(name), L(name + "o")
        for i in range(4): A(f"s_mov_b64 s[{4+2*i}:{5+2*i}], -1")
        A(f"{lp}:")
        for i in range(4):
            A(f"s_mov_b64 exec, s[{4+2*i}:{5+2*i}]")
            issue(i)
        A("s_mov_b64 exec, -1")
        A("s_waitcnt vmcnt(0)")
        for i in range(4):
            prs = check(i)
            A(f"v_xor_b32 v{T[i]}, {prs[0][1]}, v{prs[0][0]}")
        for k in range(1, 4):
            for i in range(4):
                r, tg = check(i)[k]
                A(f"v_bitop3_b32 v{T[i]}, v{T[i]}, v{r}, {tg} bitop3:0xf6")
        for i in range(4): A(f"v_and_b32 v{T[i]}, v{check(i)[4]}, v{T[i]}")
        for k in range(5, len(check(0))):
            for i in range(4): A(f"v_bitop3_b32 v{T[i]}, v{T[i]}, v{check(i)[k]}, s52 bitop3:0xf6")
        if quads:
            for st in ROWSTEPS[:2]:
                for i in range(4): A(f"v_or_b32_dpp v{T[i]}, v{T[i]}, v{T[i]} {st} {DPPM}")
        for i in range(4): A(f"v_cmp_ne_u32 s[{4+2*i}:{5+2*i}], 0, v{T[i]}")
        A("s_or_b64 vcc, s[4:5], s[6:7]"); A("s_or_b64 vcc, vcc, s[8:9]"); A("s_or_b64 vcc, vcc, s[10:11]")
        A(f"s_cbranch_scc0 {lo}")
        if sleep: A(f"s_sleep {sleep}")
        A("s_sub_u32 s99, s99, 1"); A(f"s_cbranch_scc0 {lp}"); A("s_branch L_end")
        A(f"{lo}:")
    def q_issue(k):
        for i in range(4): A(f"buffer_load_dwordx4 v[{W+16*k+4*i}:{W+16*k+4*i+3}], v{vL16}, s[56:59], s93 offen offset:{1024*i} sc1")
    def q_done(kk):
        B = W + 16*kk
        for k in range(0, 4, 2):
            A(f"v_pk_add_f32 {pr(R+k)}, {pr(B+k)}, {pr(B+4+k)}"); A(f"v_pk_add_f32 {pr(R+8+k)}, {pr(B+8+k)}, {pr(B+12+k)}")
    A(f"v_lshlrev_b32 v{vF}, 3, v0")
    A(f"v_mov_b32 v{T[4]}, 1"); A(f"v_mov_b32 v{T[5]}, s52")
    if MQ:
        masked_poll(lambda i: A(f"buffer_load_dwordx4 v[{W+4*i}:{W+4*i+3}], v{vL16}, s[56:59], s93 offen offset:{1024*i} sc1"),
                    lambda i: quad(W + 4*i, 4) + [vMK], slq, "pq", True)
        q_done(0)
    else: pipe_poll(NP, q_issue, 4, lambda k: anyinv(quad(W + 16*k, 16), T[0], vMK), q_done, slq, "pq")
    for k in range(0, 4, 2): A(f"v_pk_add_f32 {pr(R+k)}, {pr(R+k)}, {pr(R+8+k)}")
    A(f"v_cvt_pk_bf16_f32 v{T[0]}, v{R}, v{R+1}"); A(f"v_cvt_pk_bf16_f32 v{T[1]}, v{R+2}, v{R+3}")
    A(f"ds_write_b64 v{vF}, v[{T[0]}:{T[1]}]")
    A(f"ds_write_b64 v{vLF}, v[{T[4]}:{T[5]}]")
    stamp(10)
    stamp(3)
    A("s_setprio 0")
    if noprep:
        for k in range(4, 10): stamp(k)
        A("s_barrier"); A("s_branch L_hend")
    W2 = 168
    srd(36, 12, 4096*448*2); srd(48, 20, 896)
    A(f"v_lshlrev_b32 v{vYv}, 13, v0")
    A(f"v_lshlrev_b32 v{vL4}, 2, v0")
    A("s_lshl_b32 s62, s2, 12"); A(f"s_add_u32 s86, s62, {YS}"); A(f"s_add_u32 s87, s62, {OS}")
    A("s_lshr_b32 s61, s27, 2")
    A("s_lshl_b32 s62, s26, 2"); A("s_and_b32 s63, s27, 3"); A("s_add_u32 s62, s62, s63")
    A(f"s_mul_i32 s44, s61, {112*3584}"); A("s_lshl_b32 s63, s62, 7"); A("s_add_u32 s44, s44, s63")
    A("s_mul_i32 s45, s61, 7168"); A("s_lshl_b32 s63, s62, 8"); A("s_add_u32 s45, s45, s63"); A(f"s_add_u32 s45, s45, {HS}")
    A("s_sub_u32 s62, s26, 7")
    A(f"s_mul_i32 s60, s27, {112*896}"); A("s_lshl_b32 s63, s62, 7"); A("s_add_u32 s60, s60, s63")
    A("s_mul_i32 s61, s27, 1792"); A("s_lshl_b32 s63, s62, 8"); A("s_add_u32 s61, s61, s63"); A(f"s_add_u32 s61, s61, {ZS}")
    A("s_cmp_lt_u32 s2, 112")
    A("s_cselect_b32 s40, s16, s18"); A("s_cselect_b32 s41, s17, s19")
    A("s_cselect_b32 s44, s44, s60"); A("s_cselect_b32 s45, s45, s61")
    A("s_movk_i32 s46, 896"); A("s_cselect_b32 s46, 3584, s46")
    NR = 0 if skip & 4 else 224
    A(f"s_cmp_lt_u32 s2, {NR}")
    A(f"s_cselect_b32 s42, {448*1792*2}, 0"); A("s_mov_b32 s43, 0x20000")
    A("s_cselect_b32 s45, s45, 0x80000000")
    A(f"v_lshrrev_b32 v{T[0]}, 3, v0"); A(f"v_mul_u32_u24 v{T[1]}, 14, v{T[0]}"); A(f"v_mul_u32_u24 v{T[2]}, s46, v{T[1]}")
    A(f"v_and_b32 v{T[3]}, 7, v0"); A(f"v_lshl_add_u32 v{T[2]}, v{T[3]}, 4, v{T[2]}")
    for i in range(14):
        A(f"buffer_load_dwordx4 v[{W2+4*i}:{W2+4*i+3}], v{T[2]}, s[40:43], s44 offen{WNT}")
        if i < 13: A("s_add_u32 s44, s44, s46")
    A(f"s_mul_i32 s62, s2, {16*896}")
    if skip & 8: A("s_mov_b32 s38, 0")
    for r in range(16):
        A(f"buffer_load_dwordx4 v[{W+4*r}:{W+4*r+3}], v{vL16}, s[36:39], s62 offen offset:{(r%4)*896}{WNT}")
        if r % 4 == 3 and r < 15: A(f"s_add_u32 s62, s62, {4*896}")
    A(f"v_lshlrev_b32 v{T[6]}, 1, v{T[1]}")
    A("s_lshl_b32 s96, s2, 4"); A(f"s_add_u32 s97, s96, {YS+4096}"); A(f"s_add_u32 s96, s96, {YS}")
    for i in range(8): A(f"v_mov_b32 v{ACC+i}, 0")
    A("s_waitcnt vmcnt(0)")
    for k in range(8):
        for c in range(4):
            a, b = W + 8*k + c, W + 8*k + 4 + c
            A(f"v_perm_b32 v{T[0]}, v{b}, v{a}, s90"); A(f"v_perm_b32 v{b}, v{b}, v{a}, s91"); A(f"v_mov_b32 v{a}, v{T[0]}")
    def spin_or_end(lp, sleep):
        if sleep: A(f"s_sleep {sleep}")
        A("s_sub_u32 s99, s99, 1"); A(f"s_cbranch_scc0 {lp}"); A("s_branch L_end")
    SP = 4
    def row_dot():
        for k in range(8):
            for c in range(4):
                cc = ["0", "0"] if k == 0 else [f"v{ACC+2*c}", f"v{ACC+2*c+1}"]
                A(f"v_dot2_f32_bf16 v{ACC+2*c}, v{W+8*k+c}, s{SP+k}, {cc[0]}")
                A(f"v_dot2_f32_bf16 v{ACC+2*c+1}, v{W+8*k+4+c}, s{SP+k}, {cc[1]}")
        for i in range(8): A(f"v_bfi_b32 v{ACC+i}, v{vMKY}, s{52+(i&3)}, v{ACC+i}")
    def silu(regs, tmps):
        A(f"s_mov_b32 s62, {f2u(-LOG2E)}")
        for r, t in zip(regs, tmps): A(f"v_mul_f32 v{t}, s62, v{r}")
        for r, t in zip(regs, tmps): A(f"v_exp_f32 v{t}, v{t}")
        for r, t in zip(regs, tmps): A(f"v_add_f32 v{t}, 1.0, v{t}")
        for r, t in zip(regs, tmps): A(f"v_rcp_f32 v{t}, v{t}")
        for r, t in zip(regs, tmps): A(f"v_mul_f32 v{r}, v{r}, v{t}")
    vG, vXo = 8, 9
    def reduce4(a):
        A(f"v_permlane32_swap_b32 v{a}, v{a+2}"); A(f"v_permlane32_swap_b32 v{a+1}, v{a+3}")
        A(f"v_add_f32 v{a}, v{a}, v{a+2}"); A(f"v_add_f32 v{a+1}, v{a+1}, v{a+3}")
        A(f"v_permlane16_swap_b32 v{a}, v{a+1}")
        A(f"v_add_f32 v{a}, v{a}, v{a+1}")
    lz3, lr1 = L("noz"), L("r1")
    A(f"v_lshlrev_b32 v{T[4]}, 1, v3")
    A("s_lshl_b32 s89, s2, 3")
    A(f"s_cmp_ge_u32 s2, {NR}"); A(f"s_cbranch_scc1 {lz3}")
    A("s_cmp_lt_u32 s2, 112"); A(f"s_cbranch_scc1 {lr1}")
    A("s_mul_i32 s62, s27, 448"); A(f"s_add_u32 s62, s62, {HS}"); A("s_add_u32 s63, s62, 14336")
    A(f"v_min_u32 v{T[5]}, 55, v0"); A(f"v_lshlrev_b32 v{T[5]}, 3, v{T[5]}"); A(f"v_add_u32 v{T[7]}, 7168, v{T[5]}")
    A(f"v_and_b32 v{vF0}, 8, v{T[5]}")
    A(f"v_lshrrev_b32 v{vF}, v{vF0}, s100"); A(f"v_lshrrev_b32 v{vF0}, v{vF0}, s52")
    lp, lo = L("ph"), L("pho")
    A(f"{lp}:")
    A(f"buffer_load_dwordx2 v[{R}:{R+1}], v{T[5]}, s[56:59], s62 offen sc1")
    A(f"buffer_load_dwordx2 v[{R+2}:{R+3}], v{T[7]}, s[56:59], s62 offen sc1")
    A(f"buffer_load_dwordx2 v[{R+4}:{R+5}], v{T[5]}, s[56:59], s63 offen sc1")
    A(f"buffer_load_dwordx2 v[{R+6}:{R+7}], v{T[7]}, s[56:59], s63 offen sc1")
    A("s_waitcnt vmcnt(0)")
    anyinv([(R + i, f"v{vF if i & 1 else vF0}") for i in range(8)], T[0], vMK)
    A(f"s_cbranch_vccz {lo}")
    spin_or_end(lp, sl2)
    A(f"{lo}:")
    A(f"v_pk_add_f32 {pr(R)}, {pr(R)}, {pr(R+2)}"); A(f"v_pk_add_f32 {pr(R+4)}, {pr(R+4)}, {pr(R+6)}")
    A(f"v_pk_add_f32 {pr(R)}, {pr(R)}, {pr(R+4)}")
    rnd(R); rnd(R+1)
    silu([R, R+1], T[:2])
    A(f"v_cvt_pk_bf16_f32 v{R}, v{R}, v{R+1}")
    for k in range(7): A(f"ds_bpermute_b32 v{XB+k}, v{T[6]}, v{R} offset:{4*k}")
    A(f"v_and_b32 v{vTb}, 1, v3"); A(f"v_lshlrev_b32 v{vTb}, 4, v{vTb}"); A(f"v_mov_b32 v{vMK}, 0xff")
    A(f"v_lshrrev_b32 v{vTa}, v{vTb}, s52"); A(f"v_lshrrev_b32 v{vTb}, v{vTb}, s53")
    A("s_waitcnt lgkmcnt(0)")
    A(f"{lr1}:")
    slice_dot(W2, False)
    qpub(ACC, 45)
    A(f"v_mov_b32 v{vMK}, 0xff")
    A("s_cmp_ge_u32 s2, 112"); A(f"s_cbranch_scc1 {lz3}")
    A(f"buffer_load_ushort v{vXo}, v{T[4]}, s[28:31], s89 offen")
    A(f"v_mul_u32_u24 v{T[5]}, 1792, v4"); A(f"v_lshl_add_u32 v{T[5]}, v3, 2, v{T[5]}")
    A("s_lshl_b32 s62, s2, 4"); A(f"s_add_u32 s62, s62, {ZS}")
    A(f"v_lshlrev_b32 v{vF0}, 3, v3"); A(f"v_lshrrev_b32 v{vF0}, v{vF0}, s52")
    lp, lo = L("pz"), L("pzo")
    A(f"s_sleep {sl1}")
    A(f"{lp}:")
    A(f"buffer_load_dword v{R}, v{T[5]}, s[56:59], s62 offen sc1")
    A("s_waitcnt vmcnt(0)")
    anyinv([(R, f"v{vF0}")], T[0], vMK)
    A(f"s_cbranch_vccz {lo}")
    spin_or_end(lp, sl1)
    A(f"{lo}:")
    A("s_movk_i32 s62, 0x80"); A(f"v_bfi_b32 v{R}, v{vMK}, s62, v{R}")
    row_reduce([R])
    rnd(R); silu([R], [T[0]]); rnd(R)
    A(f"v_mov_b32 v{vG}, v{R}")
    A(f"v_lshlrev_b32 v{vXo}, 16, v{vXo}")
    A(f"{lz3}:")
    A(f"v_mov_b32 v{vMK}, 15")
    if SRV:
        assert 2048 - 16*S + 16 <= 768
        lp, lo = L("sv"), L("svo")
        A("s_mov_b32 s60, 0")
        A("s_lshl_b32 s61, s26, 14"); A(f"s_add_u32 s61, s61, {TK}")
        A("s_lshl_b32 s47, s26, 11"); A(f"s_add_u32 s47, s47, {S if PM else 16*S}")
        A(f"s_mov_b32 s92, {2048-16*S}")
        A(f"{lp}:")
        A(f"ds_read_b32 v{T[0]}, v{vLF} offset:{LCNT-512}")
        A("s_waitcnt lgkmcnt(0)")
        A(f"v_readfirstlane_b32 s62, v{T[0]}")
        if sls0:
            lz = L("svz")
            A("s_cmp_lg_u32 s62, 0"); A(f"s_cbranch_scc1 {lz}"); A("s_cmp_eq_u32 s60, 0"); A(f"s_cbranch_scc1 {lz}")
            A(f"s_sleep {sls0}")
            A(f"{lz}:")
        A("s_lshr_b32 s62, s62, 2"); A(f"s_add_u32 s62, s62, {AH}")
        A("s_sub_i32 s62, s62, s60"); A("s_min_i32 s62, s62, 8")
        A(f"s_cmp_gt_i32 s62, 0"); A(f"s_cbranch_scc1 {lo}")
        spin_or_end(lp, sls)
        A(f"{lo}:")
        A("s_mov_b32 s63, s62"); A("s_atomic_add s63, s[24:25], s61 glc")
        A(f"v_add_u32 v{T[1]}, s60, v0"); A(f"v_lshlrev_b32 v{T[1]}, 2, v{T[1]}")
        A("s_add_u32 s60, s60, s62")
        A("s_bfm_b64 s[4:5], s62, 0")
        A(f"v_bfrev_b32 v{T[3]}, 1")
        A("s_waitcnt lgkmcnt(0)")
        A(f"v_add_u32 v{T[0]}, s63, v0")
        if PM:
            A(f"v_and_b32 v{T[2]}, 15, v{T[0]}"); A(f"v_lshrrev_b32 v{T[5]}, 4, v{T[0]}"); A(f"v_lshl_add_u32 v{T[2]}, v{T[2]}, 7, v{T[5]}")
            A(f"v_add_u32 v{T[2]}, s47, v{T[2]}")
        else: A(f"v_add_u32 v{T[2]}, s47, v{T[0]}")
        A(f"v_lshlrev_b32 v{T[2]}, 14, v{T[2]}")
        A(f"v_cmp_gt_u32 vcc, s92, v{T[0]}")
        A(f"v_cndmask_b32 v{T[2]}, v{T[3]}, v{T[2]}, vcc")
        A("s_mov_b64 exec, s[4:5]")
        A(f"ds_write_b32 v{T[1]}, v{T[2]} offset:{LROWS}")
        A("s_mov_b64 exec, -1")
        A("s_add_u32 s63, s63, s62"); A("s_cmp_le_u32 s63, s92"); A(f"s_cbranch_scc1 {lp}")
    A("s_mov_b32 s62, s87")
    A("s_lshl_b32 s63, s26, 10"); A(f"s_add_u32 s63, s63, {ML}")
    A(f"v_lshrrev_b32 v{T[5]}, 2, v0"); A(f"v_lshlrev_b32 v{T[5]}, 4, v{T[5]}")
    A(f"s_mov_b32 s61, {CSC}")
    if WARM & 1:
        for i in range(4): A(f"buffer_load_dword v{R+i}, v{vL16}, s[56:59], s62 offen offset:{1024*i} {WF}")
        A(f"buffer_load_dword v{R+4}, v{vL16}, s[56:59], s63 offen {WF}")
        A("s_cmp_lt_u32 s2, 112"); A("s_cselect_b32 s60, s86, 0x80000000")
        for i in range(4): A(f"buffer_load_dword v{R+8+i}, v{vL16}, s[56:59], s60 offen offset:{1024*i} {WF}")
    if WARM & 8:
        lw = L("w")
        A("s_add_u32 s6, s24, s87"); A("s_addc_u32 s7, s25, 0")
        for i in range(32): A(f"s_load_dword s4, s[6:7], {128*i}")
        A("s_lshl_b32 s60, s27, 6"); A("s_add_u32 s60, s60, s63")
        A("s_load_dword s4, s[24:25], s60")
        A("s_cmp_ge_u32 s2, 112"); A(f"s_cbranch_scc1 {lw}")
        A("s_add_u32 s6, s24, s86"); A("s_addc_u32 s7, s25, 0")
        for i in range(32): A(f"s_load_dword s4, s[6:7], {128*i}")
        A(f"{lw}:")
        A("s_waitcnt lgkmcnt(0)")
    A("s_setprio 3")
    stamp(4)
    A("s_barrier")
    stamp(5)
    PSET = [R, W2]
    def o_issue(k):
        B = PSET[k]
        for i in range(4): A(f"buffer_load_dwordx4 v[{B+16+4*i}:{B+16+4*i+3}], v{T[5]}, s[56:59], s63 offen offset:{256*i} {LDS_}")
        for i in range(4): A(f"buffer_load_dwordx4 v[{B+4*i}:{B+4*i+3}], v{vL16}, s[56:59], s62 offen offset:{1024*i} {LDS_}")
    GSTEPS = ["row_ror:4", "row_ror:8"]
    mx, tt, ls = T[0], T[1], T[2]
    def o_done(kk):
        B = PSET[kk]; MLr = B + 16
        A(f"v_max3_f32 v{mx}, v{MLr}, v{MLr+4}, v{MLr+8}"); A(f"v_max_f32 v{mx}, v{mx}, v{MLr+12}")
        row_reduce([mx], "v_max_f32", GSTEPS); xrow_allreduce([(mx, tt)], "v_max_f32")
        A(f"v_mul_f32 v{mx}, s61, v{mx}")
        for i in range(4): A(f"v_fma_f32 v{MLr+4*i}, v{MLr+4*i}, s61, -v{mx}")
        for i in range(4): A(f"v_exp_f32 v{MLr+4*i}, v{MLr+4*i}")
        A(f"v_mul_f32 v{ls}, v{MLr}, v{MLr+1}")
        for k in range(4): A(f"v_mul_f32 v{O+k}, v{MLr}, v{B+k}")
        for i in range(1, 4):
            A(f"v_fmac_f32 v{ls}, v{MLr+4*i}, v{MLr+4*i+1}")
            for k in range(4): A(f"v_fmac_f32 v{O+k}, v{MLr+4*i}, v{B+4*i+k}")
    O = 12
    def o_issue1(i):
        A(f"buffer_load_dwordx4 v[{R+16+4*i}:{R+16+4*i+3}], v{T[5]}, s[56:59], s63 offen offset:{256*i} {LDS_}")
        A(f"buffer_load_dwordx4 v[{R+4*i}:{R+4*i+3}], v{vL16}, s[56:59], s62 offen offset:{1024*i} {LDS_}")
    if MO:
        masked_poll(o_issue1, lambda i: quad(R + 4*i, 4) + [vMK, R + 16 + 4*i + 2, R + 16 + 4*i + 3], slt, "po", True)
        o_done(0)
    else: pipe_poll(NPT, o_issue, 8, lambda k: anyinv(quad(PSET[k], 16), T[0], vMK, [PSET[k] + 16 + 4*i + kk for i in range(4) for kk in (2, 3)]), o_done, slt, "po")
    stamp(6)
    Rs, R = R, O
    A(f"v_permlane32_swap_b32 v{R}, v{R+2}"); A(f"v_permlane32_swap_b32 v{R+1}, v{R+3}")
    A(f"v_add_f32_dpp v{ls}, v{ls}, v{ls} row_ror:4 {DPPM}")
    A(f"v_add_f32 v{R}, v{R}, v{R+2}"); A(f"v_add_f32 v{R+1}, v{R+1}, v{R+3}")
    A(f"v_add_f32_dpp v{ls}, v{ls}, v{ls} row_ror:8 {DPPM}")
    A(f"v_permlane16_swap_b32 v{R}, v{R+1}")
    A(f"v_mov_b32 v{tt}, v{ls}")
    A(f"v_add_f32 v{R}, v{R}, v{R+1}")
    A(f"v_permlane16_swap_b32 v{ls}, v{tt}")
    A(f"v_add_f32_dpp v{R}, v{R}, v{R} row_ror:4 {DPPM}")
    A(f"v_add_f32 v{ls}, v{ls}, v{tt}")
    A(f"v_mov_b32 v{tt}, v{ls}")
    A(f"v_add_f32_dpp v{R}, v{R}, v{R} row_ror:8 {DPPM}")
    A(f"v_permlane32_swap_b32 v{ls}, v{tt}")
    A(f"v_add_f32 v{ls}, v{ls}, v{tt}")
    A(f"v_rcp_f32 v{ls}, v{ls}")
    A(f"v_mul_f32 v{R}, v{R}, v{ls}")
    A(f"v_mov_b32 v{R+1}, v{R}")
    A(f"v_permlane16_swap_b32 v{R}, v{R+1}")
    A(f"v_cvt_pk_bf16_f32 v{R}, v{R}, v{R+1}")
    for t in range(4):
        A(f"v_readlane_b32 s{SP+2*t}, v{R}, {t}"); A(f"v_readlane_b32 s{SP+2*t+1}, v{R}, {32+t}")
    row_dot()
    A("s_mov_b32 exec_hi, 0x00ffffff")
    A(f"buffer_store_dwordx4 v[{ACC}:{ACC+3}], v{vYv}, s[56:59], s96 offen {STS}")
    A(f"buffer_store_dwordx4 v[{ACC+4}:{ACC+7}], v{vYv}, s[56:59], s97 offen {STS}")
    A("s_mov_b64 exec, -1")
    stamp(7)
    A("s_cmp_ge_u32 s2, 112"); A("s_cbranch_scc1 L_hend")
    YSET = [W, W + 16, W + 32, W + 48]
    def y_issue(k):
        for i in range(4): A(f"buffer_load_dwordx4 v[{YSET[k]+4*i}:{YSET[k]+4*i+3}], v{vL16}, s[56:59], s86 offen offset:{1024*i} {LDS_}")
    R = ACC + 4
    def y_done(kk):
        B = YSET[kk]
        A("s_movk_i32 s62, 0x200")
        for k in range(16): A(f"v_bfi_b32 v{B+k}, v{vMKY}, s62, v{B+k}")
        for k in range(4): A(f"v_add_f32 v{R+k}, v{B+k}, v{B+4+k}"); A(f"v_add_f32 v{R+8+k}, v{B+8+k}, v{B+12+k}")
    if MY:
        masked_poll(lambda i: A(f"buffer_load_dwordx4 v[{W+4*i}:{W+4*i+3}], v{vL16}, s[56:59], s86 offen offset:{1024*i} {LDS_}"),
                    lambda i: quadB(W + 4*i, 4) + [vMKY], sly, "py")
        y_done(0)
    else: pipe_poll(NPY, y_issue, 4, lambda k: anyinv(quadB(YSET[k], 16), T[0], vMKY), y_done, sly, "py")
    stamp(8)
    for k in range(4): A(f"v_add_f32 v{R+k}, v{R+k}, v{R+8+k}")
    reduce4(R); row_reduce([R])
    rnd(R)
    A(f"v_mul_f32 v{R}, v{R}, v{vG}"); rnd(R)
    A(f"v_add_f32 v{R}, v{R}, v{vXo}")
    A(f"v_cvt_pk_bf16_f32 v{R}, v{R}, v{R}")
    A("s_mov_b32 exec_lo, 0x00010001"); A("s_mov_b32 exec_hi, 0x00010001")
    A(f"buffer_store_short v{R}, v{T[4]}, s[48:51], s89 offen sc1")
    A("s_cmp_eq_u32 s2, 0"); A(f"s_mov_b32 s62, {EP}"); A("s_cselect_b32 s62, s62, 0x80000000"); A(f"v_mov_b32 v{T[0]}, s52")
    A("s_mov_b64 exec, 1")
    A(f"buffer_store_dword v{T[0]}, off, s[56:59], s62 sc1")
    A("L_hend:")
    stamp(9)
    dump_stamps(11)
    A("L_end:")
    A("s_endpgm")
    body = A.finish()
    nv = NV
    out = HEADER + "; @launch grid=(256,1,1) block=(320,1,1) lds=%d\n" % (4096 if SRV else 1024) + body
    out += f""".section .rodata,"a"
.p2align 6
.amdhsa_kernel {KN}
  .amdhsa_next_free_vgpr {nv}
  .amdhsa_next_free_sgpr 102
  .amdhsa_accum_offset {nv}
  .amdhsa_group_segment_fixed_size 0
  .amdhsa_kernarg_size 88
  .amdhsa_user_sgpr_count 2
  .amdhsa_user_sgpr_kernarg_segment_ptr 1
  .amdhsa_system_sgpr_workgroup_id_x 1
  .amdhsa_float_denorm_mode_32 3
.end_amdhsa_kernel
"""
    return out

if __name__ == "__main__":
    import json
    kw = json.loads(sys.argv[2]) if len(sys.argv) > 2 else {}
    open(sys.argv[1], "w").write(gen(**kw))
```

```python
import sys, math, struct
from asmlib import Asm
KN = "recurrent_scan__mha_block_cached__dense_activation_silu__decode_kernel"

QS, ML, HS, ZS, EP, OS, YS, TK, DG = 0x0, 0x10000, 0x20000, 0x28000, 0x38000, 0x100000, 0x80000, 0x40000, 0x380000
WS_BYTES = 0x400000
def f2u(x): return struct.unpack("<I", struct.pack("<f", x))[0]
LOG2E = 1.4426950408889634
CSC = f2u(LOG2E / 16.0)

HEADER = """; Kernarg layout for this problem (88 bytes, ptrs only, base s[0:1]):
"""

def gen(S=114, C=1, NB=4, INF=8, LEAD=4, TKW=1, diag=0, spin=200000, codepf=1, noprep=0, skip=0, wnt=1, hfirst=0, sl1=64, sl2=32, early=1, NP=2, slq=16, NPT=1, slt=0, NPY=1, sly=0, MQ=0, MO=1, MY=1, PAIR=0, PL=8, PORD=0, SRV=0, AH=2, sls=8, PM=1, sls0=0, WARM=0, LAY=0, WF='sc1', OF='sc1', FW=8, WOL=1, TRIG=1, slw=8, LDS_='sc1', STS='sc1'):
    A = Asm()
    global YS, TK
    YS, TK = (0x80000, 0x40000) if LAY else (0x200000, 0x300000)
    NT = 8192
    NV = 232
    WNT = ' nt' if wnt else ''
    lab = [0]
    def L(p):
        lab[0] += 1; return f"L_{p}{lab[0]}"
    nst = [0]
    def stamp(k):
        if diag: A(f"s_memrealtime s[{64+2*k}:{65+2*k}]")
    def dump_stamps(n):
        if not diag: return
        A("s_waitcnt vmcnt(0) lgkmcnt(0)")
        A("s_mov_b64 exec, -1")
        A("v_mov_b32 v40, 0")
        for k in range(n): A(f"v_writelane_b32 v40, s{64+2*k}, {k}")
        A("s_getreg_b32 s62, hwreg(HW_REG_XCC_ID)"); A("v_writelane_b32 v40, s62, 15"); A("v_writelane_b32 v40, s61, 14")
        A("s_mul_i32 s62, s2, 5"); A("s_add_u32 s62, s62, s3"); A("s_lshl_b32 s62, s62, 6"); A(f"s_add_u32 s62, s62, {DG}")
        A("v_lshlrev_b32 v41, 2, v0")
        A("s_mov_b64 exec, 0xffff")
        A("buffer_store_dword v40, v41, s[56:59], s62 offen")
        if diag == 2 and n == 6:
            A("s_mov_b64 exec, -1")
            A("s_lshl_b32 s62, s2, 2"); A("s_add_u32 s62, s62, s3"); A("s_lshl_b32 s62, s62, 8"); A(f"s_add_u32 s62, s62, {DG+0x20000}")
            A(f"buffer_store_dword v{NV-2}, v41, s[56:59], s62 offen")
    DPPM = "row_mask:0xf bank_mask:0xf"
    ROWSTEPS = ["quad_perm:[1,0,3,2]", "quad_perm:[2,3,0,1]", "row_half_mirror", "row_mirror"]
    def row_reduce(regs, op="v_add_f32", steps=ROWSTEPS):
        for st in steps:
            for r in regs: A(f"{op}_dpp v{r}, v{r}, v{r} {st} {DPPM}")
    def xrow_allreduce(pairs, op="v_add_f32"):
        for sw in ("v_permlane16_swap_b32", "v_permlane32_swap_b32"):
            for r, t in pairs: A(f"v_mov_b32 v{t}, v{r}")
            for r, t in pairs: A(f"{sw} v{r}, v{t}")
            for r, t in pairs: A(f"{op} v{r}, v{r}, v{t}")
    def rnd(r):
        A(f"v_cvt_pk_bf16_f32 v{r}, v{r}, v{r}"); A(f"v_and_b32 v{r}, 0xffff0000, v{r}")
    def srd(b, p, n):
        A(f"s_mov_b32 s{b}, s{p}"); A(f"s_mov_b32 s{b+1}, s{p+1}"); A(f"s_mov_b32 s{b+2}, {n}"); A(f"s_mov_b32 s{b+3}, 0x20000")

    vJ = NV - 1
    A(f".amdgcn_target \"amdgcn-amd-amdhsa--gfx950\"")
    A(".text"); A(f".globl {KN}"); A(".p2align 8"); A(f".type {KN},@function"); A(f"{KN}:")
    A("s_cmp_ge_u32 s2, 256"); A("s_cbranch_scc1 L_end")
    A("s_load_dwordx16 s[4:19], s[0:1], 0")
    A("s_load_dwordx4 s[20:23], s[0:1], 64")
    A("s_load_dwordx2 s[24:25], s[0:1], 80")
    if codepf:
        A("s_getpc_b64 s[94:95]")
        A("L_pc:")
        A("v_lshlrev_b32 v2, 6, v0"); A("v_min_u32 v2, L_end-L_pc, v2")
        A(f"global_load_dword v{vJ}, v2, s[94:95]")
    stamp(0)
    A("v_lshrrev_b32 v1, 6, v0"); A("v_and_b32 v0, 63, v0")
    A("v_readfirstlane_b32 s3, v1")
    A("s_lshr_b32 s26, s2, 4"); A("s_and_b32 s27, s2, 15")
    A("v_lshrrev_b32 v3, 4, v0"); A("v_and_b32 v4, 15, v0")
    A("s_cmp_eq_u32 s3, 4"); A("s_cbranch_scc1 L_helper")

    sHB, sCUR, sLEFT, sTK, sTKO, sDYN, sT, sC = 40, 41, 42, 43, 44, 45, 46, 47
    sOFF = [48, 49]; sBO, sSTR, sNB = 50, 51, 60
    vM, vNM, vL, vA, vB, vT, vU1, vU2, vU3 = 3, 4, 5, 6, 7, 8, 9, 10, 11
    vQ, vACC, vBUF = 12, 20, 36
    nA = (LEAD + 1) // 2
    if FW: nA = 1 if FW == 8 else 2; LEAD = 0
    A("v_lshlrev_b32 v1, 9, v3"); A("v_lshl_add_u32 v1, v4, 4, v1")
    A(f"s_lshl_b32 s{sHB}, s26, 25")
    sPT, sMODE, sTKP = 36, 37, 38
    NPAIR, NPOOL = 256 - PL - 2*S, 8*PL
    if PAIR:
        assert LEAD == 4 and NPAIR >= 0
        A("s_lshl_b32 s62, s3, 12"); A(f"s_add_u32 s{sHB}, s{sHB}, s62")
        A(f"s_lshr_b32 s{sT}, s27, 1"); A(f"s_lshl_b32 s{sT}, s{sT}, 22"); A(f"s_add_u32 s{sOFF[0]}, s{sT}, s{sHB}")
        A("s_bitcmp1_b32 s27, 0")
        A(f"s_mov_b32 s{sT}, {(PL//2)*16384}"); A(f"s_cselect_b32 s{sT}, {(255-PL//2)*16384}, s{sT}")
        A(f"s_movk_i32 s{sSTR}, 16384"); A(f"s_cselect_b32 s{sSTR}, -16384, s{sSTR}")
        A(f"s_add_u32 s{sOFF[0]}, s{sOFF[0]}, s{sT}")
        A(f"s_add_u32 s{sOFF[1]}, s{sOFF[0]}, s{sSTR}")
        A(f"s_add_u32 s{sBO}, s{sOFF[1]}, s{sSTR}")
    else:
        A(f"s_mul_i32 s{sCUR}, s27, {4*(128 if PM else S)}"); A(f"s_add_u32 s{sCUR}, s{sCUR}, s3")
        A(f"s_lshl_b32 s{sT}, s{sCUR}, 12"); A(f"s_add_u32 s{sOFF[0]}, s{sT}, s{sHB}")
        A(f"s_add_u32 s{sOFF[1]}, s{sOFF[0]}, {4*4096}")
        A(f"s_add_u32 s{sBO}, s{sOFF[0]}, {nA*4*4096}")
    A("s_waitcnt lgkmcnt(0)")
    srd(28, 6, 1 << 29); srd(32, 8, 1 << 29)
    if hfirst: A("s_barrier")
    IOFF = [0, 256, 2048, 2304]
    def kv(st, isv, i): return vBUF + st*32 + isv*16 + i*4
    def load(st, isv, i, so=None):
        b = kv(st, isv, i)
        if so is None: so = sOFF[st]
        A(f"buffer_load_dwordx4 v[{b}:{b+3}], v1, s[{28+4*isv}:{31+4*isv}], s{so} offen offset:{IOFF[i]} nt")
    def pub_voff(dst, t1, t2):
        A(f"v_lshrrev_b32 v{t1}, 1, v3"); A(f"v_lshlrev_b32 v{t1}, 3, v{t1}"); A(f"v_lshrrev_b32 v{t2}, 1, v4"); A(f"v_add_u32 v{t1}, v{t1}, v{t2}")
        A(f"v_lshlrev_b32 v{dst}, 12, v{t1}")
        A(f"v_and_b32 v{t1}, 1, v4"); A(f"v_lshlrev_b32 v{t1}, 5, v{t1}"); A(f"v_and_b32 v{t2}, 1, v3"); A(f"v_lshlrev_b32 v{t2}, 4, v{t2}")
        A(f"v_or3_b32 v{dst}, v{dst}, v{t1}, v{t2}")
    def setup():
        stamp(1)
        srd(56, 24, WS_BYTES)
        pub_voff(2, 6, 7)
        A("s_lshl_b32 s54, s27, 2"); A("s_add_u32 s54, s54, s3")
        A("s_lshl_b32 s52, s26, 16"); A("s_lshl_b32 s55, s54, 6"); A("s_add_u32 s52, s52, s55"); A(f"s_add_u32 s52, s52, {OS}")
        A("s_lshl_b32 s53, s26, 10"); A("s_lshl_b32 s55, s54, 4"); A("s_add_u32 s53, s53, s55"); A(f"s_add_u32 s53, s53, {ML}")
        for i in range(16): A(f"v_mov_b32 v{vACC+i}, 0")
        if PAIR:
            A(f"s_mov_b32 s{sLEFT}, {S-nA-1}"); A(f"s_mov_b32 s{sMODE}, 0")
            A(f"s_lshl_b32 s{sTKP}, s26, 2"); A(f"s_add_u32 s{sTKP}, s{sTKP}, s3"); A(f"s_lshl_b32 s{sTKP}, s{sTKP}, 12"); A(f"s_add_u32 s{sTKP}, s{sTKP}, {TK}")
            A(f"s_lshr_b32 s{sTKO}, s27, 1"); A(f"s_lshl_b32 s{sTKO}, s{sTKO}, 8"); A(f"s_add_u32 s{sTKO}, s{sTKO}, s{sTKP}"); A(f"s_add_u32 s{sTKO}, s{sTKO}, 256")
        else:
            A(f"s_add_u32 s{sCUR}, s{sCUR}, {4*nA}"); A(f"s_mov_b32 s{sLEFT}, {S-nA}"); A(f"s_mov_b32 s{sSTR}, 4"); A(f"s_mov_b32 s{sMODE}, 0")
        if SRV: A(f"s_lshl_b32 s{sCUR}, s{sCUR}, 12"); A(f"s_add_u32 s{sCUR}, s{sCUR}, s{sHB}"); A(f"s_mov_b32 s{sMODE}, 0")
        if PAIR or SRV: pass
        elif TKW:
            A(f"s_add_u32 s{sDYN}, s3, {S*4 if PM else 16*S*4}")
            A(f"s_lshl_b32 s{sTKO}, s26, 2"); A(f"s_add_u32 s{sTKO}, s{sTKO}, s3"); A(f"s_lshl_b32 s{sTKO}, s{sTKO}, 12"); A(f"s_add_u32 s{sTKO}, s{sTKO}, {TK}")
        else:
            A(f"s_mov_b32 s{sDYN}, {16*S*4}")
            A(f"s_lshl_b32 s{sTKO}, s26, 14"); A(f"s_add_u32 s{sTKO}, s{sTKO}, {TK}")
        A(f"s_mov_b32 s{sC}, {CSC}"); A(f"s_mov_b32 s{sNB}, 0"); A(f"s_mov_b32 s63, {1<<22}")
        A("v_lshlrev_b32 v8, 4, v4")
        A("v_mov_b32 v10, 512")
        A(f"v_mov_b32 v{vM}, 0xff7fffff"); A(f"v_mov_b32 v{vL}, 0")
        A(f"v_mul_f32 v{vNM}, s{sC}, v{vM}"); A(f"v_sub_f32 v{vNM}, 0, v{vNM}")
        if not hfirst: A("s_barrier")
    def qcheck():
        A("ds_read_b64 v[6:7], v10")
        A(f"ds_read_b128 v[{vQ}:{vQ+3}], v8"); A(f"ds_read_b128 v[{vQ+4}:{vQ+7}], v8 offset:256")
        A("s_waitcnt lgkmcnt(0)")
        A("v_readfirstlane_b32 s62, v6")
        A("s_cmp_lg_u32 s62, 0"); A("s_cbranch_scc1 L_go")
    NL0 = FW if FW else 4 * LEAD
    items = [(n >> 3, (n >> 2) & 1, n & 3, None) for n in range(NL0)]
    for b in range(NB): items += [(2 + b, n >> 2, n & 3, sBO) for n in range(8)]
    for n, (st, isv, i, so) in enumerate(items):
        if n == min(INF, NL0): setup()
        if so is not None and isv == 0 and i == 0 and early: qcheck()
        if n >= INF: A(f"s_waitcnt vmcnt({INF-1})")
        load(st, isv, i, so)
        if so is not None and isv == 1 and i == 3:
            A(f"s_add_u32 s{sBO}, s{sBO}, " + (f"s{sSTR}" if PAIR else f"{4*4096}")); A(f"s_add_u32 s{sNB}, s{sNB}, 1")
    A("L_qspin:")
    qcheck()
    A("s_sleep 1")
    A("s_sub_u32 s63, s63, 1"); A("s_cbranch_scc0 L_qspin"); A("s_branch L_end")
    A("L_go:")
    A("v_readfirstlane_b32 s54, v7")
    if PAIR or SRV: A(f"s_mov_b32 s{sCUR}, s{sBO}")
    else: A(f"s_lshl_b32 s62, s{sNB}, 2"); A(f"s_add_u32 s{sCUR}, s{sCUR}, s62")
    A(f"s_sub_u32 s{sLEFT}, s{sLEFT}, s{sNB}")
    if diag: A(f"s_mov_b32 s61, s{sNB}"); A(f"s_mov_b32 s74, s{sNB}")
    stamp(2)
    rare = []
    VW = 4 * (LEAD - 1)
    dyns = []; srvs = []
    LCNT, LROWS = 520, 1024
    def newtile(dst):
        lj, ln = L("j"), L("n")
        if SRV:
            ld = L("dyn")
            A(f"s_sub_u32 s{sLEFT}, s{sLEFT}, 1"); A(f"s_cbranch_scc1 {ld}")
            A(f"s_mov_b32 s{dst}, s{sCUR}"); A(f"s_add_u32 s{sCUR}, s{sCUR}, 16384")
            A(f"{ln}:")
            srvs.append((ld, ln, dst))
            return
        if PAIR:
            ld = L("dyn")
            A(f"s_sub_u32 s{sLEFT}, s{sLEFT}, 1"); A(f"s_cbranch_scc1 {ld}")
            A(f"{lj}:")
            A(f"s_mov_b32 s{dst}, s{sCUR}"); A(f"s_add_u32 s{sCUR}, s{sCUR}, s{sSTR}")
            A(f"{ln}:")
            dyns.append((ld, lj, ln, dst))
            return
        A(f"s_cmp_gt_i32 s{sLEFT}, 0"); A(f"s_cbranch_scc1 {lj}")
        A("s_waitcnt lgkmcnt(0)")
        if PM:
            assert C == 1 and TKW
            A(f"s_and_b32 s{sT}, s{sTK}, 15"); A(f"s_lshl_b32 s{sT}, s{sT}, 7"); A(f"s_lshr_b32 s{sCUR}, s{sTK}, 4"); A(f"s_add_u32 s{sCUR}, s{sCUR}, s{sT}")
            A(f"s_lshl_b32 s{sCUR}, s{sCUR}, 2"); A(f"s_add_u32 s{sCUR}, s{sCUR}, s{sDYN}"); A(f"s_mov_b32 s{sLEFT}, {C}")
            A(f"s_cmp_lt_u32 s{sTK}, {16*(128-S)}"); A(f"s_cselect_b32 s{sCUR}, s{sCUR}, {NT}")
        else:
            A(f"s_mul_i32 s{sCUR}, s{sTK}, {(4 if TKW else 1)*C}"); A(f"s_add_u32 s{sCUR}, s{sCUR}, s{sDYN}"); A(f"s_mov_b32 s{sLEFT}, {C}")
        if not TKW: A(f"s_mov_b32 s{sSTR}, 1")
        A(f"s_cmp_lt_u32 s{sCUR}, {NT}"); A(f"s_cselect_b32 s{sLEFT}, s{sLEFT}, 1000")
        if TRIG == 2:
            A(f"s_cbranch_scc1 {lj}")
            A(f"v_mov_b32 v{vT}, {LCNT}"); A(f"ds_write_b32 v{vT}, v{vT}")
        A(f"{lj}:")
        A(f"s_cmp_lg_u32 s{sLEFT}, {C}"); A(f"s_cbranch_scc1 {ln}")
        A(f"s_mov_b32 s{sTK}, 1"); A(f"s_atomic_add s{sTK}, s[24:25], s{sTKO} glc")
        if WARM & 6:
            A(f"s_cmp_lg_u32 s{sMODE}, 0"); A(f"s_cbranch_scc1 {ln}")
            A(f"s_mov_b32 s{sMODE}, 1")
            if WARM & 2:
                A(f"buffer_load_dword v{vBUF+64}, v2, s[56:59], s52 offen sc1")
                A(f"buffer_load_dword v{vBUF+65}, off, s[56:59], s53 sc1")
            if WARM & 4:
                A(f"v_lshlrev_b32 v{vBUF+66}, 4, v0")
                A("s_lshl_b32 s62, s2, 2"); A("s_add_u32 s62, s62, s3"); A("s_lshl_b32 s62, s62, 10"); A(f"s_add_u32 s62, s62, {OS}")
                A(f"buffer_load_dword v{vBUF+67}, v{vBUF+66}, s[56:59], s62 offen sc1")
                A(f"s_add_u32 s62, s62, {YS-OS}"); A("s_cmp_lt_u32 s2, 112"); A("s_cselect_b32 s62, s62, 0x80000000")
                A(f"buffer_load_dword v{vBUF+68}, v{vBUF+66}, s[56:59], s62 offen sc1")
        A(f"{ln}:")
        A(f"s_lshl_b32 s{sT}, s{sCUR}, 12"); A(f"s_add_u32 s{sT}, s{sT}, s{sHB}")
        A(f"s_cmp_lt_u32 s{sCUR}, {NT}"); A(f"s_cselect_b32 s{dst}, s{sT}, 0x80000000")
        A(f"s_add_u32 s{sCUR}, s{sCUR}, s{sSTR}"); A(f"s_sub_i32 s{sLEFT}, s{sLEFT}, 1")
    def body(st, stream):
        o = st ^ 1
        if stream:
            A(f"s_cmp_ge_u32 s{sOFF[st]}, 0x80000000"); A("s_cbranch_scc1 L_sdone")
            if diag: A("s_add_u32 s61, s61, 1")
            if LEAD == 4 or FW > 8: newtile(sOFF[st])
            if LEAD == 2 or FW == 8: newtile(sOFF[o])
            if not FW: A(f"s_waitcnt vmcnt({VW})")
            if LEAD == 3:
                for i in range(4): load(o, 1, i)
            if LEAD == 2:
                for i in range(4): load(o, 0, i)
        def step(p):
            if not (stream and FW): return
            A(f"s_waitcnt vmcnt({FW-1})")
            g = p + FW
            load(o if g < 16 else st, (g >> 2) & 1, g & 3)
        if FW:
            for i in range(4):
                step(i)
                acc, half = (vA, vB)[i >> 1], i & 1
                for d in range(4):
                    c = "0" if (half == 0 and d == 0) else f"v{acc}"
                    A(f"v_dot2_f32_bf16 v{acc}, v{kv(st,0,i)+d}, v{vQ+half*4+d}, {c}")
        else:
          for half in range(2):
            for d in range(4):
                for (acc, i) in ((vA, half), (vB, 2 + half)):
                    c = "0" if (half == 0 and d == 0) else f"v{acc}"
                    A(f"v_dot2_f32_bf16 v{acc}, v{kv(st,0,i)+d}, v{vQ+half*4+d}, {c}")
        if stream and LEAD == 4: load(st, 0, 0); load(st, 0, 1); load(st, 0, 2)
        for k, stp in enumerate(ROWSTEPS):
            A(f"v_add_f32_dpp v{vA}, v{vA}, v{vA} {stp} {DPPM}")
            A(f"v_add_f32_dpp v{vB}, v{vB}, v{vB} {stp} {DPPM}")
            if k == 0 and stream and LEAD == 4: load(st, 0, 3)
        A(f"v_cvt_pk_bf16_f32 v{vT}, v{vA}, v{vB}")
        A(f"v_lshlrev_b32 v{vA}, 16, v{vT}"); A(f"v_and_b32 v{vB}, 0xffff0000, v{vT}")
        A(f"v_max_f32 v{vT}, v{vA}, v{vB}")
        A(f"v_cmp_gt_f32 vcc, v{vT}, v{vM}")
        lr, lb = L("rare"), L("back")
        A(f"s_cbranch_vccnz {lr}")
        A(f"{lb}:")
        rare.append((lr, lb))
        A(f"v_fma_f32 v{vA}, v{vA}, s{sC}, v{vNM}"); A(f"v_fma_f32 v{vB}, v{vB}, s{sC}, v{vNM}")
        A(f"v_exp_f32 v{vA}, v{vA}"); A(f"v_exp_f32 v{vB}, v{vB}")
        if stream:
            if LEAD == 3: newtile(sOFF[st])
            if not FW: A(f"s_waitcnt vmcnt({VW})")
            if LEAD == 3:
                for i in range(4): load(st, 0, i)
            if LEAD == 2:
                for i in range(4): load(o, 1, i)
        A(f"v_cvt_pk_bf16_f32 v{vT}, v{vA}, 0"); A(f"v_cvt_pk_bf16_f32 v{vU1}, 0, v{vA}")
        A(f"v_cvt_pk_bf16_f32 v{vU2}, v{vB}, 0"); A(f"v_cvt_pk_bf16_f32 v{vU3}, 0, v{vB}")
        A(f"v_add_f32 v{vL}, v{vL}, v{vA}"); A(f"v_add_f32 v{vL}, v{vL}, v{vB}")
        for i in range(4):
            lo, hi = (vT, vU1) if i < 2 else (vU2, vU3)
            ab = vACC + (i & 1) * 8
            step(4 + i)
            for d in range(4):
                A(f"v_dot2c_f32_bf16 v{ab+2*d}, v{kv(st,1,i)+d}, v{lo}")
                A(f"v_dot2c_f32_bf16 v{ab+2*d+1}, v{kv(st,1,i)+d}, v{hi}")
            if stream and LEAD == 4: load(st, 1, i)
    A(".p2align 6")
    A("L_loop:")
    if diag == 2:
        A("s_memrealtime s[86:87]"); A("s_lshr_b32 s62, s61, 1"); A("s_min_u32 m0, s62, 63"); A("s_waitcnt lgkmcnt(0)"); A(f"v_writelane_b32 v{vJ-1}, s86, m0")
    body(0, True); body(1, True)
    A(f"s_cmp_eq_u32 s{sNB}, 0"); A("s_cbranch_scc1 L_loop")
    for b in range(NB):
        body(2 + b, False)
        if b < NB - 1: A(f"s_cmp_eq_u32 s{sNB}, {b+1}"); A("s_cbranch_scc1 L_bdone")
    A("L_bdone:")
    A(f"s_mov_b32 s{sNB}, 0")
    A("s_branch L_loop")
    for ld, ln, dst in srvs:
        l1 = L("d")
        A(f"{ld}:")
        A(f"s_mov_b32 s{sLEFT}, 0"); A(f"s_mov_b32 s{dst}, 0x80000000")
        A(f"s_cmp_lg_u32 s{sMODE}, 0"); A(f"s_cbranch_scc1 {ln}")
        A("s_mov_b64 exec, 1")
        A(f"v_mov_b32 v{vT}, {LCNT}"); A(f"v_mov_b32 v{vU1}, 1")
        A(f"ds_add_rtn_u32 v{vU1}, v{vT}, v{vU1}")
        A("s_waitcnt lgkmcnt(0)")
        A(f"v_and_b32 v{vT}, -4, v{vU1}")
        A(f"v_readfirstlane_b32 s{sT}, v{vU1}")
        A(f"{l1}:")
        A(f"ds_read_b32 v{vU1}, v{vT} offset:{LROWS}")
        A(f"s_and_b32 s{sT}, s{sT}, 3")
        A("s_waitcnt lgkmcnt(0)")
        A(f"v_readfirstlane_b32 s62, v{vU1}")
        A("s_sub_u32 s63, s63, 1"); A("s_cbranch_scc1 L_end")
        A(f"s_cmp_eq_u32 s62, 0"); A(f"s_cbranch_scc1 {l1}")
        A("s_mov_b64 exec, -1")
        A(f"s_lshl_b32 s{sT}, s{sT}, 12"); A(f"s_or_b32 s{dst}, s62, s{sT}")
        A(f"s_lshr_b32 s{sMODE}, s62, 31")
        A(f"s_branch {ln}")
    for ld, lj, ln, dst in dyns:
        l1, l2, l3 = L("d"), L("d"), L("d")
        A(f"{ld}:")
        A(f"s_mov_b32 s{sLEFT}, 0")
        A(f"s_cmp_lg_u32 s{sMODE}, 0"); A(f"s_cbranch_scc1 {l1}")
        A(f"s_mov_b32 s{sMODE}, 1"); A(f"s_mov_b32 s{sPT}, 1"); A(f"s_atomic_add s{sPT}, s[24:25], s{sTKP} glc")
        A(f"{l3}:")
        A(f"s_mov_b32 s{sTK}, 1"); A(f"s_atomic_add s{sTK}, s[24:25], s{sTKO} glc")
        A(f"s_branch {lj}")
        A(f"{l1}:")
        A("s_waitcnt lgkmcnt(0)")
        A(f"s_cmp_eq_u32 s{sMODE}, 2"); A(f"s_cbranch_scc1 {l2}")
        A(f"s_cmp_lt_u32 s{sTK}, {NPAIR}"); A(f"s_cbranch_scc1 {l3}")
        A(f"s_mov_b32 s{sMODE}, 2"); A(f"s_mov_b32 s{sTK}, s{sPT}")
        A(f"{l2}:")
        A(f"s_mov_b32 s{dst}, 0x80000000")
        A(f"s_cmp_lt_u32 s{sTK}, {NPOOL}"); A(f"s_cbranch_scc0 {ln}")
        lg = PL.bit_length() - 1
        if PORD == 0:
            A(f"s_lshr_b32 s{sT}, s{sTK}, {lg}"); A(f"s_and_b32 s62, s{sTK}, {PL-1}")
        else:
            A(f"s_and_b32 s{sT}, s{sTK}, 7"); A(f"s_lshr_b32 s62, s{sTK}, 3")
        A(f"s_lshl_b32 s{sT}, s{sT}, 8"); A(f"s_add_u32 s{sT}, s{sT}, s62"); A(f"s_sub_u32 s{sT}, s{sT}, {PL//2}"); A(f"s_and_b32 s{sT}, s{sT}, 2047")
        A(f"s_lshl_b32 s{sT}, s{sT}, 14"); A(f"s_add_u32 s{dst}, s{sT}, s{sHB}")
        A(f"s_mov_b32 s{sTK}, 1"); A(f"s_atomic_add s{sTK}, s[24:25], s{sTKP} glc")
        A(f"s_branch {ln}")
    for lr, lb in rare:
        A(f"{lr}:")
        xrow_allreduce([(vT, vU1)], "v_max_f32")
        A(f"v_max_f32 v{vT}, v{vT}, v{vM}")
        A(f"v_mul_f32 v{vNM}, s{sC}, v{vT}"); A(f"v_sub_f32 v{vNM}, 0, v{vNM}")
        A(f"v_fma_f32 v{vU1}, v{vM}, s{sC}, v{vNM}"); A(f"v_exp_f32 v{vU1}, v{vU1}")
        A(f"v_mov_b32 v{vM}, v{vT}")
        A(f"v_mul_f32 v{vL}, v{vL}, v{vU1}")
        for i in range(0, 16, 2): A(f"v_pk_mul_f32 v[{vACC+i}:{vACC+i+1}], v[{vACC+i}:{vACC+i+1}], v[{vT}:{vU1}] op_sel:[0,1] op_sel_hi:[1,1]")
        A(f"s_branch {lb}")
    A("L_sdone:")
    stamp(3)
    if TRIG in (1, 3): A(f"v_mov_b32 v{vT}, {LCNT}"); A(f"ds_write_b32 v{vT}, v{vT}")
    A("s_lshr_b32 s55, s54, 4"); A("s_lshr_b32 s62, s54, 8"); A("s_lshr_b32 s63, s54, 12")
    for i in range(8): A(f"v_permlane32_swap_b32 v{vACC+i}, v{vACC+8+i}")
    A(f"v_mov_b32 v{vT}, v{vL}")
    for i in range(8): A(f"v_add_f32 v{vACC+i}, v{vACC+i}, v{vACC+8+i}")
    A(f"v_permlane16_swap_b32 v{vL}, v{vT}")
    for i in range(4): A(f"v_permlane16_swap_b32 v{vACC+i}, v{vACC+4+i}")
    A(f"v_add_f32 v{vL}, v{vL}, v{vT}")
    for i in range(4): A(f"v_add_f32 v{vACC+i}, v{vACC+i}, v{vACC+4+i}")
    A(f"v_mov_b32 v{vT}, v{vL}")
    for i, t in enumerate((54, 55, 62, 63)): A(f"v_bfi_b32 v{vACC+i}, 15, s{t}, v{vACC+i}")
    A(f"v_permlane32_swap_b32 v{vL}, v{vT}")
    A(f"buffer_store_dwordx4 v[{vACC}:{vACC+3}], v2, s[56:59], s52 offen {STS}")
    A(f"v_add_f32 v{vU1}, v{vL}, v{vT}")
    A(f"v_mov_b32 v{vT}, v{vM}"); A(f"v_mov_b32 v{vU2}, s54"); A(f"v_mov_b32 v{vU3}, s54")
    A("s_mov_b64 exec, 1")
    A(f"buffer_store_dwordx4 v[{vT}:{vU3}], off, s[56:59], s53 {STS}")
    A("s_barrier")
    stamp(4)
    dump_stamps(6)
    A("s_endpgm")

    A("L_helper:")
    A("s_setprio 3")
    X = 8
    XLO, XHI = 16, 24
    ACC = 32
    W = 48
    R = 112
    vM1 = 144
    vMean, vYv, vZv, vQv, vL4, vRs, vL16 = 148, 149, 150, 151, 152, 153, 154
    T = [156, 157, 158, 159, 160, 161, 162, 163]
    vF0, vF, vLF = 155, 164, 165
    XA, XAF, XB, XBF = 8, 16, 24, 112
    A(f"v_mov_b32 v{T[4]}, 0"); A(f"v_mov_b32 v{T[5]}, 0"); A(f"v_mov_b32 v{vLF}, 512")
    A(f"v_lshlrev_b32 v{vL16}, 4, v0")
    A(f"v_mov_b32 v{T[6]}, 0"); A(f"v_mov_b32 v{T[7]}, 0")
    A(f"ds_write_b128 v{vLF}, v[{T[4]}:{T[7]}]")
    if SRV:
        for i in range(3): A(f"ds_write_b128 v{vL16}, v[{T[4]}:{T[7]}] offset:{LROWS+1024*i}")
    A(f"v_lshrrev_b32 v{T[0]}, 3, v0")
    A(f"v_mul_u32_u24 v{T[1]}, 28, v{T[0]}")
    A(f"v_mul_u32_u24 v{T[2]}, {14*8192}, v{T[0]}")
    A(f"v_and_b32 v{T[3]}, 7, v0")
    A(f"v_lshl_add_u32 v{T[2]}, v{T[3]}, 4, v{T[2]}")
    A("s_lshr_b32 s61, s27, 2")
    A("s_mul_i32 s60, s61, 224")
    A(f"s_mul_i32 s62, s61, {112*8192}"); A("s_lshl_b32 s63, s26, 9"); A("s_add_u32 s62, s62, s63")
    A("s_and_b32 s63, s27, 3"); A("s_lshl_b32 s63, s63, 7"); A("s_add_u32 s62, s62, s63")
    A("s_lshl_b32 s93, s26, 12")
    lnc = L("noclr")
    A("s_cmp_lg_u32 s27, 0")
    A("s_waitcnt lgkmcnt(0)")
    A(f"s_load_dword s52, s[24:25], {EP}")
    srd(56, 24, WS_BYTES)
    A(f"s_cbranch_scc1 {lnc}")
    A(f"v_lshlrev_b32 v{T[4]}, 8, v0")
    A("s_lshl_b32 s61, s26, 14"); A(f"s_add_u32 s61, s61, {TK}")
    if SRV: A("s_mov_b64 exec, 1")
    A(f"buffer_store_dword v{T[5]}, v{T[4]}, s[56:59], s61 offen sc1")
    A("s_mov_b64 exec, -1")
    A(f"{lnc}:")
    srd(28, 4, 896); srd(32, 10, 448*4096*2)
    A(f"buffer_load_dwordx4 v[{XA}:{XA+3}], v{vL16}, s[28:31], 0 offen")
    A(f"buffer_load_dwordx4 v[{XB}:{XB+3}], v{T[1]}, s[28:31], s60 offen")
    A(f"buffer_load_dwordx3 v[{XB+4}:{XB+6}], v{T[1]}, s[28:31], s60 offen offset:16")
    for i in range(14):
        A(f"buffer_load_dwordx4 v[{W+4*i}:{W+4*i+3}], v{T[2]}, s[32:35], s62 offen{WNT}")
        if i < 13: A("s_add_u32 s62, s62, 8192")
    A("s_barrier")
    vMK, vTa, vTb, vMKY = vM1, vM1 + 1, vM1 + 2, vM1 + 3
    A(f"v_mov_b32 v{vMK}, 15"); A(f"v_mov_b32 v{vMKY}, 0x3ff")
    for i in range(8): A(f"v_mov_b32 v{ACC+i}, 0")
    A(f"v_lshlrev_b32 v{vQv}, 5, v{T[3]}"); A(f"v_lshrrev_b32 v{T[4]}, 5, v0"); A(f"v_lshl_add_u32 v{vQv}, v{T[4]}, 4, v{vQv}")
    A(f"v_and_b32 v{T[4]}, 1, v3"); A(f"v_lshl_add_u32 v{vQv}, v{T[4]}, 3, v{vQv}")
    def qpub(src, so):
        A("s_mov_b32 exec_lo, 0x00ff00ff"); A("s_mov_b32 exec_hi, 0x00ff00ff")
        A(f"buffer_store_dwordx2 v[{src}:{src+1}], v{vQv}, s[56:59], s{so} offen sc1")
        A("s_mov_b64 exec, -1")
    NCL = -2
    A("s_lshl_b32 s60, s2, 8")
    A(f"v_lshlrev_b32 v{vTb}, 3, v{T[4]}")
    A(f"s_mov_b32 s90, 0x05040100"); A(f"s_mov_b32 s91, 0x07060302")
    A(f"s_mov_b32 s62, {f2u(1.0/448.0)}"); A(f"s_mov_b32 s63, {f2u(448.0)}")
    A("s_mov_b32 s88, -1"); A("s_mov_b32 s89, 0x00ffffff")
    A(f"s_mov_b32 s99, {spin}")
    A(f"s_waitcnt vmcnt(14)")
    stamp(1)
    def unpack(dst, src):
        return [f"v_lshlrev_b32 v{dst}, 16, v{src}", f"v_and_b32 v{dst+1}, 0xffff0000, v{src}"]
    def pr(r): return f"v[{r}:{r+1}]"
    def weave(chain, fill, k=2):
        fill = list(fill)
        for c in chain:
            A(c)
            for _ in range(k):
                if fill: A(fill.pop(0))
        for f in fill: A(f)
    def allred(r, t):
        ch = [f"v_add_f32_dpp v{r}, v{r}, v{r} {st} {DPPM}" for st in ROWSTEPS]
        for sw in ("v_permlane16_swap_b32", "v_permlane32_swap_b32"):
            ch += [f"v_mov_b32 v{t}, v{r}", f"{sw} v{r}, v{t}", f"v_add_f32 v{r}, v{r}, v{t}"]
        return ch
    def div448(r, t):
        return [f"v_mul_f32 v{t}, s62, v{r}", f"v_fma_f32 v{r}, -v{t}, s63, v{r}", f"v_fma_f32 v{r}, v{r}, s62, v{t}"]
    def rndl(r): return [f"v_cvt_pk_bf16_f32 v{r}, v{r}, v{r}", f"v_and_b32 v{r}, 0xffff0000, v{r}"]
    s_, t_, q_, u_ = T[0], T[1], T[2], T[3]
    for k in range(4):
        for ins in unpack(XAF+2*k, XA+k): A(ins)
    A(f"v_pk_add_f32 {pr(T[4])}, {pr(XAF)}, {pr(XAF+2)}"); A(f"v_pk_add_f32 {pr(T[6])}, {pr(XAF+4)}, {pr(XAF+6)}")
    A(f"v_pk_add_f32 {pr(T[4])}, {pr(T[4])}, {pr(T[6])}")
    A(f"v_add_f32 v{s_}, v{T[4]}, v{T[5]}")
    fillB = []
    for k in range(7): fillB += unpack(XBF+2*k, XB+k)
    weave(allred(s_, t_) + div448(s_, t_), fillB, 2)
    BCST = "op_sel:[0,0] op_sel_hi:[1,0]"
    for k in range(4): A(f"v_pk_add_f32 {pr(XAF+2*k)}, {pr(XAF+2*k)}, {pr(s_)} {BCST} neg_lo:[0,1] neg_hi:[0,1]")
    A(f"v_cvt_pk_bf16_f32 v{vMean}, v{s_}, v{s_}")
    A(f"v_pk_mul_f32 {pr(T[4])}, {pr(XAF)}, {pr(XAF)}"); A(f"v_pk_mul_f32 {pr(T[6])}, {pr(XAF+2)}, {pr(XAF+2)}")
    A(f"v_and_b32 v{vMean}, 0xffff0000, v{vMean}")
    A(f"v_pk_fma_f32 {pr(T[4])}, {pr(XAF+4)}, {pr(XAF+4)}, {pr(T[4])}"); A(f"v_pk_fma_f32 {pr(T[6])}, {pr(XAF+6)}, {pr(XAF+6)}, {pr(T[6])}")
    A(f"v_pk_add_f32 {pr(T[4])}, {pr(T[4])}, {pr(T[6])}")
    A(f"v_add_f32 v{q_}, v{T[4]}, v{T[5]}")
    A(f"v_cndmask_b32 v{q_}, 0, v{q_}, s[88:89]")
    fillB = []
    for k in range(7): fillB.append(f"v_pk_add_f32 {pr(XBF+2*k)}, {pr(XBF+2*k)}, {pr(vMean)} {BCST} neg_lo:[0,1] neg_hi:[0,1]")
    for k in range(7): fillB.append(f"v_cvt_pk_bf16_f32 v{XB+k}, v{XBF+2*k}, v{XBF+2*k+1}")
    for k in range(7): fillB += unpack(XBF+2*k, XB+k)
    chain = allred(q_, t_) + div448(q_, t_) + rndl(q_) + [f"v_add_f32 v{q_}, {f2u(1e-5)}, v{q_}"] + rndl(q_) + [f"v_sqrt_f32 v{q_}, v{q_}"] + rndl(q_) + [f"v_rcp_f32 v{T[4]}, v{q_}"]
    weave(chain, fillB, 2)
    A(f"v_mov_b32 v{vRs}, v{T[4]}")
    for k in range(7): A(f"v_pk_mul_f32 {pr(XBF+2*k)}, {pr(XBF+2*k)}, {pr(T[4])} {BCST}")
    for k in range(7): A(f"v_cvt_pk_bf16_f32 v{XB+k}, v{XBF+2*k}, v{XBF+2*k+1}")
    def slice_dot(Wb, waits):
        for k in range(7):
            if waits: A(f"s_waitcnt vmcnt({14+NCL-2*k})")
            for c in range(4):
                a, b = Wb + 8*k + c, Wb + 8*k + 4 + c
                A(f"v_perm_b32 v{T[c]}, v{b}, v{a}, s90"); A(f"v_perm_b32 v{b}, v{b}, v{a}, s91")
            for c in range(4):
                A(f"v_dot2c_f32_bf16 v{ACC+2*c}, v{T[c]}, v{XB+k}")
                A(f"v_dot2c_f32_bf16 v{ACC+2*c+1}, v{Wb+8*k+4+c}, v{XB+k}")
        for i in range(4): A(f"v_permlane32_swap_b32 v{ACC+i}, v{ACC+4+i}")
        for i in range(4): A(f"v_add_f32 v{ACC+i}, v{ACC+i}, v{ACC+4+i}")
        for i in range(2): A(f"v_permlane16_swap_b32 v{ACC+i}, v{ACC+2+i}")
        for i in range(2): A(f"v_add_f32 v{ACC+i}, v{ACC+i}, v{ACC+2+i}")
        for i in range(2): A(f"v_add_f32_dpp v{ACC+i}, v{ACC+i}, v{ACC+i} row_ror:8 {DPPM}")
        for i, t in enumerate((vTa, vTb)): A(f"v_bfi_b32 v{ACC+i}, v{vMK}, v{t}, v{ACC+i}")
    A("s_waitcnt lgkmcnt(0)")
    A("s_add_u32 s52, s52, 0x11111111")
    A("s_lshr_b32 s53, s52, 8"); A("s_lshr_b32 s54, s52, 16"); A("s_lshr_b32 s55, s52, 24")
    A("s_lshr_b32 s100, s52, 4"); A("s_lshr_b32 s101, s52, 12")
    A(f"v_lshrrev_b32 v{vTa}, v{vTb}, s52"); A(f"v_lshrrev_b32 v{vTb}, v{vTb}, s100")
    slice_dot(W, True)
    qpub(ACC, 60)
    stamp(2)
    def anyinv(pairs, t, mask, full=()):
        def chain(ps, a0, a1):
            cur = [a0, a1]
            for k, (r, tg) in enumerate(ps):
                if k < 2: A(f"v_xor_b32 v{cur[k]}, {tg}, v{r}")
                else: A(f"v_bitop3_b32 v{cur[k&1]}, v{cur[k&1]}, v{r}, {tg} bitop3:0xf6")
        pairs = list(pairs)
        if len(pairs) == 1:
            A(f"v_xor_b32 v{t}, {pairs[0][1]}, v{pairs[0][0]}"); A(f"v_and_b32 v{t}, v{mask}, v{t}")
        else:
            chain(pairs, t, t + 1)
            if full: chain([(r, "s52") for r in full], t + 2, t + 3)
            A(f"v_bitop3_b32 v{t}, v{t}, v{t+1}, v{mask} bitop3:0xa8")
            if full: A(f"v_or3_b32 v{t}, v{t}, v{t+2}, v{t+3}")
        A(f"v_cmp_ne_u32 vcc, 0, v{t}")
    def quadB(b, n): return [(b + i, f"s{52 + (i & 3)}") for i in range(n)]
    def quad(b, n): return [(b + i, f"s{(52, 100, 53, 101)[i & 3]}") for i in range(n)]
    def pipe_poll(nsets, issue, nld, check, done, sleep, name):
        lp, lo = L(name), L(name + "o")
        ok = [L(name + "k") for _ in range(nsets)]
        for k in range(nsets - 1):
            issue(k)
            if sleep: A(f"s_sleep {sleep}")
        A(f"{lp}:")
        for k in range(nsets):
            issue((k + nsets - 1) % nsets)
            A(f"s_waitcnt vmcnt({nld*(nsets-1)})")
            check(k)
            A(f"s_cbranch_vccz {ok[k]}")
        A("s_sub_u32 s99, s99, 1"); A(f"s_cbranch_scc0 {lp}"); A("s_branch L_end")
        for k in range(nsets):
            A(f"{ok[k]}:")
            done(k)
            if k < nsets - 1: A(f"s_branch {lo}")
        A(f"{lo}:")
    def masked_poll(issue, check, sleep, name, quads=False, side=None):
        lp, lo = L(name), L(name + "o")
        def iss():
            for i in range(4):
                A(f"s_mov_b64 exec, s[{4+2*i}:{5+2*i}]")
                issue(i)
            A("s_mov_b64 exec, -1")
        def chk():
            for i in range(4):
                prs = check(i)
                A(f"v_xor_b32 v{T[i]}, {prs[0][1]}, v{prs[0][0]}")
            for k in range(1, 4):
                for i in range(4):
                    r, tg = check(i)[k]
                    A(f"v_bitop3_b32 v{T[i]}, v{T[i]}, v{r}, {tg} bitop3:0xf6")
            for i in range(4): A(f"v_and_b32 v{T[i]}, v{check(i)[4]}, v{T[i]}")
            for k in range(5, len(check(0))):
                for i in range(4): A(f"v_bitop3_b32 v{T[i]}, v{T[i]}, v{check(i)[k]}, s52 bitop3:0xf6")
            if quads:
                for st in ROWSTEPS[:2]:
                    for i in range(4): A(f"v_or_b32_dpp v{T[i]}, v{T[i]}, v{T[i]} {st} {DPPM}")
            for i in range(4): A(f"v_cmp_ne_u32 s[{4+2*i}:{5+2*i}], 0, v{T[i]}")
        for i in range(4): A(f"s_mov_b64 s[{4+2*i}:{5+2*i}], -1")
        if side:
            l2 = L(name + "s")
            loads, nl, npoll, work = side
            iss()
            if loads:
                loads()
                A(f"s_waitcnt vmcnt({nl})")
                chk(); iss()
            A(f"s_waitcnt vmcnt({npoll})")
            work()
            A(f"s_branch {l2}")
        A(f"{lp}:")
        iss()
        if side: A(f"{l2}:")
        A("s_waitcnt vmcnt(0)")
        chk()
        A("s_or_b64 vcc, s[4:5], s[6:7]"); A("s_or_b64 vcc, vcc, s[8:9]"); A("s_or_b64 vcc, vcc, s[10:11]")
        A(f"s_cbranch_scc0 {lo}")
        if sleep: A(f"s_sleep {sleep}")
        A("s_sub_u32 s99, s99, 1"); A(f"s_cbranch_scc0 {lp}"); A("s_branch L_end")
        A(f"{lo}:")
    def q_issue(k):
        for i in range(4): A(f"buffer_load_dwordx4 v[{W+16*k+4*i}:{W+16*k+4*i+3}], v{vL16}, s[56:59], s93 offen offset:{1024*i} sc1")
    def q_done(kk):
        B = W + 16*kk
        for k in range(0, 4, 2):
            A(f"v_pk_add_f32 {pr(R+k)}, {pr(B+k)}, {pr(B+4+k)}"); A(f"v_pk_add_f32 {pr(R+8+k)}, {pr(B+8+k)}, {pr(B+12+k)}")
    A(f"v_lshlrev_b32 v{vF}, 3, v0")
    A(f"v_mov_b32 v{T[4]}, 1"); A(f"v_mov_b32 v{T[5]}, s52")
    if MQ:
        masked_poll(lambda i: A(f"buffer_load_dwordx4 v[{W+4*i}:{W+4*i+3}], v{vL16}, s[56:59], s93 offen offset:{1024*i} sc1"),
                    lambda i: quad(W + 4*i, 4) + [vMK], slq, "pq", True)
        q_done(0)
    else: pipe_poll(NP, q_issue, 4, lambda k: anyinv(quad(W + 16*k, 16), T[0], vMK), q_done, slq, "pq")
    for k in range(0, 4, 2): A(f"v_pk_add_f32 {pr(R+k)}, {pr(R+k)}, {pr(R+8+k)}")
    A(f"v_cvt_pk_bf16_f32 v{T[0]}, v{R}, v{R+1}"); A(f"v_cvt_pk_bf16_f32 v{T[1]}, v{R+2}, v{R+3}")
    A(f"ds_write_b64 v{vF}, v[{T[0]}:{T[1]}]")
    A(f"ds_write_b64 v{vLF}, v[{T[4]}:{T[5]}]")
    stamp(10)
    stamp(3)
    A("s_setprio 0")
    if noprep:
        for k in range(4, 10): stamp(k)
        A("s_barrier"); A("s_branch L_hend")
    W2 = 168
    srd(36, 12, 4096*448*2); srd(48, 20, 896)
    A(f"v_lshlrev_b32 v{vYv}, 13, v0")
    A(f"v_lshlrev_b32 v{vL4}, 2, v0")
    A("s_lshl_b32 s62, s2, 12"); A(f"s_add_u32 s86, s62, {YS}"); A(f"s_add_u32 s87, s62, {OS}")
    A("s_lshr_b32 s61, s27, 2")
    A("s_lshl_b32 s62, s26, 2"); A("s_and_b32 s63, s27, 3"); A("s_add_u32 s62, s62, s63")
    A(f"s_mul_i32 s44, s61, {112*3584}"); A("s_lshl_b32 s63, s62, 7"); A("s_add_u32 s44, s44, s63")
    A("s_mul_i32 s45, s61, 7168"); A("s_lshl_b32 s63, s62, 8"); A("s_add_u32 s45, s45, s63"); A(f"s_add_u32 s45, s45, {HS}")
    A("s_sub_u32 s62, s26, 7")
    A(f"s_mul_i32 s60, s27, {112*896}"); A("s_lshl_b32 s63, s62, 7"); A("s_add_u32 s60, s60, s63")
    A("s_mul_i32 s61, s27, 1792"); A("s_lshl_b32 s63, s62, 8"); A("s_add_u32 s61, s61, s63"); A(f"s_add_u32 s61, s61, {ZS}")
    A("s_cmp_lt_u32 s2, 112")
    A("s_cselect_b32 s40, s16, s18"); A("s_cselect_b32 s41, s17, s19")
    A("s_cselect_b32 s44, s44, s60"); A("s_cselect_b32 s45, s45, s61")
    A("s_movk_i32 s46, 896"); A("s_cselect_b32 s46, 3584, s46")
    NR = 0 if skip & 4 else 224
    A(f"s_cmp_lt_u32 s2, {NR}")
    A(f"s_cselect_b32 s42, {448*1792*2}, 0"); A("s_mov_b32 s43, 0x20000")
    A("s_cselect_b32 s45, s45, 0x80000000")
    A(f"v_lshrrev_b32 v{T[0]}, 3, v0"); A(f"v_mul_u32_u24 v{T[1]}, 14, v{T[0]}"); A(f"v_mul_u32_u24 v{T[2]}, s46, v{T[1]}")
    A(f"v_and_b32 v{T[3]}, 7, v0"); A(f"v_lshl_add_u32 v{T[2]}, v{T[3]}, 4, v{T[2]}")
    for i in range(14):
        A(f"buffer_load_dwordx4 v[{W2+4*i}:{W2+4*i+3}], v{T[2]}, s[40:43], s44 offen{WNT}")
        if i < 13: A("s_add_u32 s44, s44, s46")
    if skip & 8: A("s_mov_b32 s38, 0")
    def wo_loads():
        A(f"s_mul_i32 s60, s2, {16*896}")
        A("s_mov_b32 exec_hi, 0x00ffffff")
        for r in range(16):
            A(f"buffer_load_dwordx4 v[{W+4*r}:{W+4*r+3}], v{vL16}, s[36:39], s60 offen offset:{(r%4)*896}{WNT}")
            if r % 4 == 3 and r < 15: A(f"s_add_u32 s60, s60, {4*896}")
        A("s_mov_b32 exec_hi, -1")
    def wo_perm():
        for k in range(8):
            for c in range(4):
                a, b = W + 8*k + c, W + 8*k + 4 + c
                A(f"v_perm_b32 v{T[6]}, v{b}, v{a}, s90"); A(f"v_perm_b32 v{b}, v{b}, v{a}, s91"); A(f"v_mov_b32 v{a}, v{T[6]}")
    if not WOL: wo_loads()
    A("s_lshl_b32 s96, s2, 4"); A(f"s_add_u32 s97, s96, {YS+4096}"); A(f"s_add_u32 s96, s96, {YS}")
    for i in range(8): A(f"v_mov_b32 v{ACC+i}, 0")
    A("s_waitcnt vmcnt(0)")
    if not WOL: wo_perm()
    A(f"v_lshlrev_b32 v{T[6]}, 1, v{T[1]}")
    def spin_or_end(lp, sleep):
        if sleep: A(f"s_sleep {sleep}")
        A("s_sub_u32 s99, s99, 1"); A(f"s_cbranch_scc0 {lp}"); A("s_branch L_end")
    SP = 4
    def row_dot():
        for k in range(8):
            for c in range(4):
                cc = ["0", "0"] if k == 0 else [f"v{ACC+2*c}", f"v{ACC+2*c+1}"]
                A(f"v_dot2_f32_bf16 v{ACC+2*c}, v{W+8*k+c}, s{SP+k}, {cc[0]}")
                A(f"v_dot2_f32_bf16 v{ACC+2*c+1}, v{W+8*k+4+c}, s{SP+k}, {cc[1]}")
        for i in range(8): A(f"v_bfi_b32 v{ACC+i}, v{vMKY}, s{52+(i&3)}, v{ACC+i}")
    def silu(regs, tmps):
        A(f"s_mov_b32 s62, {f2u(-LOG2E)}")
        for r, t in zip(regs, tmps): A(f"v_mul_f32 v{t}, s62, v{r}")
        for r, t in zip(regs, tmps): A(f"v_exp_f32 v{t}, v{t}")
        for r, t in zip(regs, tmps): A(f"v_add_f32 v{t}, 1.0, v{t}")
        for r, t in zip(regs, tmps): A(f"v_rcp_f32 v{t}, v{t}")
        for r, t in zip(regs, tmps): A(f"v_mul_f32 v{r}, v{r}, v{t}")
    vG, vXo = 8, 9
    def reduce4(a):
        A(f"v_permlane32_swap_b32 v{a}, v{a+2}"); A(f"v_permlane32_swap_b32 v{a+1}, v{a+3}")
        A(f"v_add_f32 v{a}, v{a}, v{a+2}"); A(f"v_add_f32 v{a+1}, v{a+1}, v{a+3}")
        A(f"v_permlane16_swap_b32 v{a}, v{a+1}")
        A(f"v_add_f32 v{a}, v{a}, v{a+1}")
    lz3, lr1 = L("noz"), L("r1")
    A(f"v_lshlrev_b32 v{T[4]}, 1, v3")
    A("s_lshl_b32 s89, s2, 3")
    A(f"s_cmp_ge_u32 s2, {NR}"); A(f"s_cbranch_scc1 {lz3}")
    A("s_cmp_lt_u32 s2, 112"); A(f"s_cbranch_scc1 {lr1}")
    A("s_mul_i32 s62, s27, 448"); A(f"s_add_u32 s62, s62, {HS}"); A("s_add_u32 s63, s62, 14336")
    A(f"v_min_u32 v{T[5]}, 55, v0"); A(f"v_lshlrev_b32 v{T[5]}, 3, v{T[5]}"); A(f"v_add_u32 v{T[7]}, 7168, v{T[5]}")
    A(f"v_and_b32 v{vF0}, 8, v{T[5]}")
    A(f"v_lshrrev_b32 v{vF}, v{vF0}, s100"); A(f"v_lshrrev_b32 v{vF0}, v{vF0}, s52")
    lp, lo = L("ph"), L("pho")
    A(f"{lp}:")
    A(f"buffer_load_dwordx2 v[{R}:{R+1}], v{T[5]}, s[56:59], s62 offen sc1")
    A(f"buffer_load_dwordx2 v[{R+2}:{R+3}], v{T[7]}, s[56:59], s62 offen sc1")
    A(f"buffer_load_dwordx2 v[{R+4}:{R+5}], v{T[5]}, s[56:59], s63 offen sc1")
    A(f"buffer_load_dwordx2 v[{R+6}:{R+7}], v{T[7]}, s[56:59], s63 offen sc1")
    A("s_waitcnt vmcnt(0)")
    anyinv([(R + i, f"v{vF if i & 1 else vF0}") for i in range(8)], T[0], vMK)
    A(f"s_cbranch_vccz {lo}")
    spin_or_end(lp, sl2)
    A(f"{lo}:")
    A(f"v_pk_add_f32 {pr(R)}, {pr(R)}, {pr(R+2)}"); A(f"v_pk_add_f32 {pr(R+4)}, {pr(R+4)}, {pr(R+6)}")
    A(f"v_pk_add_f32 {pr(R)}, {pr(R)}, {pr(R+4)}")
    rnd(R); rnd(R+1)
    silu([R, R+1], T[:2])
    A(f"v_cvt_pk_bf16_f32 v{R}, v{R}, v{R+1}")
    for k in range(7): A(f"ds_bpermute_b32 v{XB+k}, v{T[6]}, v{R} offset:{4*k}")
    A(f"v_and_b32 v{vTb}, 1, v3"); A(f"v_lshlrev_b32 v{vTb}, 4, v{vTb}"); A(f"v_mov_b32 v{vMK}, 0xff")
    A(f"v_lshrrev_b32 v{vTa}, v{vTb}, s52"); A(f"v_lshrrev_b32 v{vTb}, v{vTb}, s53")
    A("s_waitcnt lgkmcnt(0)")
    A(f"{lr1}:")
    slice_dot(W2, False)
    qpub(ACC, 45)
    A(f"v_mov_b32 v{vMK}, 0xff")
    A("s_cmp_ge_u32 s2, 112"); A(f"s_cbranch_scc1 {lz3}")
    A(f"buffer_load_ushort v{vXo}, v{T[4]}, s[28:31], s89 offen")
    A(f"v_mul_u32_u24 v{T[5]}, 1792, v4"); A(f"v_lshl_add_u32 v{T[5]}, v3, 2, v{T[5]}")
    A("s_lshl_b32 s62, s2, 4"); A(f"s_add_u32 s62, s62, {ZS}")
    A(f"v_lshlrev_b32 v{vF0}, 3, v3"); A(f"v_lshrrev_b32 v{vF0}, v{vF0}, s52")
    lp, lo = L("pz"), L("pzo")
    A(f"s_sleep {sl1}")
    A(f"{lp}:")
    A(f"buffer_load_dword v{R}, v{T[5]}, s[56:59], s62 offen sc1")
    A("s_waitcnt vmcnt(0)")
    anyinv([(R, f"v{vF0}")], T[0], vMK)
    A(f"s_cbranch_vccz {lo}")
    spin_or_end(lp, sl1)
    A(f"{lo}:")
    A("s_movk_i32 s62, 0x80"); A(f"v_bfi_b32 v{R}, v{vMK}, s62, v{R}")
    row_reduce([R])
    rnd(R); silu([R], [T[0]]); rnd(R)
    A(f"v_mov_b32 v{vG}, v{R}")
    A(f"v_lshlrev_b32 v{vXo}, 16, v{vXo}")
    A(f"{lz3}:")
    A(f"v_mov_b32 v{vMK}, 15")
    if SRV:
        assert 2048 - 16*S + 16 <= 768
        lp, lo = L("sv"), L("svo")
        A("s_mov_b32 s60, 0")
        A("s_lshl_b32 s61, s26, 14"); A(f"s_add_u32 s61, s61, {TK}")
        A("s_lshl_b32 s47, s26, 11"); A(f"s_add_u32 s47, s47, {S if PM else 16*S}")
        A(f"s_mov_b32 s92, {2048-16*S}")
        A(f"{lp}:")
        A(f"ds_read_b32 v{T[0]}, v{vLF} offset:{LCNT-512}")
        A("s_waitcnt lgkmcnt(0)")
        A(f"v_readfirstlane_b32 s62, v{T[0]}")
        if sls0:
            lz = L("svz")
            A("s_cmp_lg_u32 s62, 0"); A(f"s_cbranch_scc1 {lz}"); A("s_cmp_eq_u32 s60, 0"); A(f"s_cbranch_scc1 {lz}")
            A(f"s_sleep {sls0}")
            A(f"{lz}:")
        A("s_lshr_b32 s62, s62, 2"); A(f"s_add_u32 s62, s62, {AH}")
        A("s_sub_i32 s62, s62, s60"); A("s_min_i32 s62, s62, 8")
        A(f"s_cmp_gt_i32 s62, 0"); A(f"s_cbranch_scc1 {lo}")
        spin_or_end(lp, sls)
        A(f"{lo}:")
        A("s_mov_b32 s63, s62"); A("s_atomic_add s63, s[24:25], s61 glc")
        A(f"v_add_u32 v{T[1]}, s60, v0"); A(f"v_lshlrev_b32 v{T[1]}, 2, v{T[1]}")
        A("s_add_u32 s60, s60, s62")
        A("s_bfm_b64 s[4:5], s62, 0")
        A(f"v_bfrev_b32 v{T[3]}, 1")
        A("s_waitcnt lgkmcnt(0)")
        A(f"v_add_u32 v{T[0]}, s63, v0")
        if PM:
            A(f"v_and_b32 v{T[2]}, 15, v{T[0]}"); A(f"v_lshrrev_b32 v{T[5]}, 4, v{T[0]}"); A(f"v_lshl_add_u32 v{T[2]}, v{T[2]}, 7, v{T[5]}")
            A(f"v_add_u32 v{T[2]}, s47, v{T[2]}")
        else: A(f"v_add_u32 v{T[2]}, s47, v{T[0]}")
        A(f"v_lshlrev_b32 v{T[2]}, 14, v{T[2]}")
        A(f"v_cmp_gt_u32 vcc, s92, v{T[0]}")
        A(f"v_cndmask_b32 v{T[2]}, v{T[3]}, v{T[2]}, vcc")
        A("s_mov_b64 exec, s[4:5]")
        A(f"ds_write_b32 v{T[1]}, v{T[2]} offset:{LROWS}")
        A("s_mov_b64 exec, -1")
        A("s_add_u32 s63, s63, s62"); A("s_cmp_le_u32 s63, s92"); A(f"s_cbranch_scc1 {lp}")
    A("s_mov_b32 s62, s87")
    A("s_lshl_b32 s63, s26, 10"); A(f"s_add_u32 s63, s63, {ML}")
    A(f"v_lshrrev_b32 v{T[5]}, 2, v0"); A(f"v_lshlrev_b32 v{T[5]}, 4, v{T[5]}")
    A(f"s_mov_b32 s61, {CSC}")
    if WARM & 1:
        for i in range(4): A(f"buffer_load_dword v{R+i}, v{vL16}, s[56:59], s62 offen offset:{1024*i} {WF}")
        A(f"buffer_load_dword v{R+4}, v{vL16}, s[56:59], s63 offen {WF}")
        A("s_cmp_lt_u32 s2, 112"); A("s_cselect_b32 s60, s86, 0x80000000")
        for i in range(4): A(f"buffer_load_dword v{R+8+i}, v{vL16}, s[56:59], s60 offen offset:{1024*i} {WF}")
    if WARM & 8:
        lw = L("w")
        A("s_add_u32 s6, s24, s87"); A("s_addc_u32 s7, s25, 0")
        for i in range(32): A(f"s_load_dword s4, s[6:7], {128*i}")
        A("s_lshl_b32 s60, s27, 6"); A("s_add_u32 s60, s60, s63")
        A("s_load_dword s4, s[24:25], s60")
        A("s_cmp_ge_u32 s2, 112"); A(f"s_cbranch_scc1 {lw}")
        A("s_add_u32 s6, s24, s86"); A("s_addc_u32 s7, s25, 0")
        for i in range(32): A(f"s_load_dword s4, s[6:7], {128*i}")
        A(f"{lw}:")
        A("s_waitcnt lgkmcnt(0)")
    if TRIG:
        lp, lo = L("tw"), L("two")
        A(f"{lp}:")
        A(f"ds_read_b32 v{T[0]}, v{vLF} offset:{LCNT-512}")
        A("s_waitcnt lgkmcnt(0)")
        A(f"v_cmp_eq_u32 vcc, 0, v{T[0]}")
        A(f"s_cbranch_vccz {lo}")
        spin_or_end(lp, slw)
        A(f"{lo}:")
        wo_loads()
        if TRIG != 3:
            A("s_waitcnt vmcnt(0)")
            wo_perm()
    A("s_setprio 3")
    stamp(4)
    A("s_barrier")
    stamp(5)
    PSET = [R, W2]
    def o_issue(k):
        B = PSET[k]
        for i in range(4): A(f"buffer_load_dwordx4 v[{B+16+4*i}:{B+16+4*i+3}], v{T[5]}, s[56:59], s63 offen offset:{256*i} {LDS_}")
        for i in range(4): A(f"buffer_load_dwordx4 v[{B+4*i}:{B+4*i+3}], v{vL16}, s[56:59], s62 offen offset:{1024*i} {LDS_}")
    GSTEPS = ["row_ror:4", "row_ror:8"]
    mx, tt, ls = T[0], T[1], T[2]
    def o_done(kk):
        B = PSET[kk]; MLr = B + 16
        A(f"v_max3_f32 v{mx}, v{MLr}, v{MLr+4}, v{MLr+8}"); A(f"v_max_f32 v{mx}, v{mx}, v{MLr+12}")
        row_reduce([mx], "v_max_f32", GSTEPS); xrow_allreduce([(mx, tt)], "v_max_f32")
        A(f"v_mul_f32 v{mx}, s61, v{mx}")
        for i in range(4): A(f"v_fma_f32 v{MLr+4*i}, v{MLr+4*i}, s61, -v{mx}")
        for i in range(4): A(f"v_exp_f32 v{MLr+4*i}, v{MLr+4*i}")
        A(f"v_mul_f32 v{ls}, v{MLr}, v{MLr+1}")
        for k in range(4): A(f"v_mul_f32 v{O+k}, v{MLr}, v{B+k}")
        for i in range(1, 4):
            A(f"v_fmac_f32 v{ls}, v{MLr+4*i}, v{MLr+4*i+1}")
            for k in range(4): A(f"v_fmac_f32 v{O+k}, v{MLr+4*i}, v{B+4*i+k}")
    O = 12
    def o_issue1(i):
        A(f"buffer_load_dwordx4 v[{R+16+4*i}:{R+16+4*i+3}], v{T[5]}, s[56:59], s63 offen offset:{256*i} {LDS_}")
        A(f"buffer_load_dwordx4 v[{R+4*i}:{R+4*i+3}], v{vL16}, s[56:59], s62 offen offset:{1024*i} {LDS_}")
    if MO:
        masked_poll(o_issue1, lambda i: quad(R + 4*i, 4) + [vMK, R + 16 + 4*i + 2, R + 16 + 4*i + 3], slt, "po", True, (None, 0, 8, wo_perm) if TRIG == 3 else (wo_loads, 16, 8, wo_perm) if WOL and not TRIG else None)
        o_done(0)
    else: pipe_poll(NPT, o_issue, 8, lambda k: anyinv(quad(PSET[k], 16), T[0], vMK, [PSET[k] + 16 + 4*i + kk for i in range(4) for kk in (2, 3)]), o_done, slt, "po")
    stamp(6)
    Rs, R = R, O
    A(f"v_permlane32_swap_b32 v{R}, v{R+2}"); A(f"v_permlane32_swap_b32 v{R+1}, v{R+3}")
    A(f"v_add_f32_dpp v{ls}, v{ls}, v{ls} row_ror:4 {DPPM}")
    A(f"v_add_f32 v{R}, v{R}, v{R+2}"); A(f"v_add_f32 v{R+1}, v{R+1}, v{R+3}")
    A(f"v_add_f32_dpp v{ls}, v{ls}, v{ls} row_ror:8 {DPPM}")
    A(f"v_permlane16_swap_b32 v{R}, v{R+1}")
    A(f"v_mov_b32 v{tt}, v{ls}")
    A(f"v_add_f32 v{R}, v{R}, v{R+1}")
    A(f"v_permlane16_swap_b32 v{ls}, v{tt}")
    A(f"v_add_f32_dpp v{R}, v{R}, v{R} row_ror:4 {DPPM}")
    A(f"v_add_f32 v{ls}, v{ls}, v{tt}")
    A(f"v_mov_b32 v{tt}, v{ls}")
    A(f"v_add_f32_dpp v{R}, v{R}, v{R} row_ror:8 {DPPM}")
    A(f"v_permlane32_swap_b32 v{ls}, v{tt}")
    A(f"v_add_f32 v{ls}, v{ls}, v{tt}")
    A(f"v_rcp_f32 v{ls}, v{ls}")
    A(f"v_mul_f32 v{R}, v{R}, v{ls}")
    A(f"v_mov_b32 v{R+1}, v{R}")
    A(f"v_permlane16_swap_b32 v{R}, v{R+1}")
    A(f"v_cvt_pk_bf16_f32 v{R}, v{R}, v{R+1}")
    for t in range(4):
        A(f"v_readlane_b32 s{SP+2*t}, v{R}, {t}"); A(f"v_readlane_b32 s{SP+2*t+1}, v{R}, {32+t}")
    row_dot()
    A("s_mov_b32 exec_hi, 0x00ffffff")
    A(f"buffer_store_dwordx4 v[{ACC}:{ACC+3}], v{vYv}, s[56:59], s96 offen {STS}")
    A(f"buffer_store_dwordx4 v[{ACC+4}:{ACC+7}], v{vYv}, s[56:59], s97 offen {STS}")
    A("s_mov_b64 exec, -1")
    stamp(7)
    A("s_cmp_ge_u32 s2, 112"); A("s_cbranch_scc1 L_hend")
    YSET = [W, W + 16, W + 32, W + 48]
    def y_issue(k):
        for i in range(4): A(f"buffer_load_dwordx4 v[{YSET[k]+4*i}:{YSET[k]+4*i+3}], v{vL16}, s[56:59], s86 offen offset:{1024*i} {LDS_}")
    R = ACC + 4
    def y_done(kk):
        B = YSET[kk]
        A("s_movk_i32 s62, 0x200")
        for k in range(16): A(f"v_bfi_b32 v{B+k}, v{vMKY}, s62, v{B+k}")
        for k in range(4): A(f"v_add_f32 v{R+k}, v{B+k}, v{B+4+k}"); A(f"v_add_f32 v{R+8+k}, v{B+8+k}, v{B+12+k}")
    if MY:
        masked_poll(lambda i: A(f"buffer_load_dwordx4 v[{W+4*i}:{W+4*i+3}], v{vL16}, s[56:59], s86 offen offset:{1024*i} {LDS_}"),
                    lambda i: quadB(W + 4*i, 4) + [vMKY], sly, "py")
        y_done(0)
    else: pipe_poll(NPY, y_issue, 4, lambda k: anyinv(quadB(YSET[k], 16), T[0], vMKY), y_done, sly, "py")
    stamp(8)
    for k in range(4): A(f"v_add_f32 v{R+k}, v{R+k}, v{R+8+k}")
    reduce4(R); row_reduce([R])
    rnd(R)
    A(f"v_mul_f32 v{R}, v{R}, v{vG}"); rnd(R)
    A(f"v_add_f32 v{R}, v{R}, v{vXo}")
    A(f"v_cvt_pk_bf16_f32 v{R}, v{R}, v{R}")
    A("s_mov_b32 exec_lo, 0x00010001"); A("s_mov_b32 exec_hi, 0x00010001")
    A(f"buffer_store_short v{R}, v{T[4]}, s[48:51], s89 offen {OF}")
    A("s_cmp_eq_u32 s2, 0"); A(f"s_mov_b32 s62, {EP}"); A("s_cselect_b32 s62, s62, 0x80000000"); A(f"v_mov_b32 v{T[0]}, s52")
    A("s_mov_b64 exec, 1")
    A(f"buffer_store_dword v{T[0]}, off, s[56:59], s62 {OF}")
    A("L_hend:")
    stamp(9)
    dump_stamps(11)
    A("L_end:")
    A("s_endpgm")
    body = A.finish()
    nv = NV
    out = HEADER + "; @launch grid=(256,1,1) block=(320,1,1) lds=%d\n" % (4096 if SRV else 1024) + body
    out += f""".section .rodata,"a"
.p2align 6
.amdhsa_kernel {KN}
  .amdhsa_next_free_vgpr {nv}
  .amdhsa_next_free_sgpr 102
  .amdhsa_accum_offset {nv}
  .amdhsa_group_segment_fixed_size 0
  .amdhsa_kernarg_size 88
  .amdhsa_user_sgpr_count 2
  .amdhsa_user_sgpr_kernarg_segment_ptr 1
  .amdhsa_system_sgpr_workgroup_id_x 1
  .amdhsa_float_denorm_mode_32 3
.end_amdhsa_kernel
"""
    return out

if __name__ == "__main__":
    import json
    kw = json.loads(sys.argv[2]) if len(sys.argv) > 2 else {}
    open(sys.argv[1], "w").write(gen(**kw))
```

```python
import sys, math, struct
from asmlib import Asm
KN = "recurrent_scan__mha_block_cached__dense_activation_silu__decode_kernel"

QS, ML, HS, ZS, EP, OS, YS, TK, DG = 0x0, 0x10000, 0x20000, 0x28000, 0x38000, 0x100000, 0x80000, 0x40000, 0x380000
WS_BYTES = 0x400000
def f2u(x): return struct.unpack("<I", struct.pack("<f", x))[0]
LOG2E = 1.4426950408889634
CSC = f2u(LOG2E / 16.0)

HEADER = """; Kernarg layout for this problem (88 bytes, ptrs only, base s[0:1]):
"""

def gen(S=114, C=1, NB=4, INF=8, LEAD=4, TKW=1, diag=0, spin=200000, codepf=1, noprep=0, skip=0, wnt=1, hfirst=0, sl1=64, sl2=32, early=1, NP=2, slq=16, NPT=1, slt=0, NPY=1, sly=0, MQ=0, MO=1, MY=1, PAIR=0, PL=8, PORD=0, SRV=0, AH=2, sls=8, PM=1, sls0=0, WARM=0, LAY=0, WF='sc1', OF='sc1', FW=8, WOL=1, TRIG=1, probe=0, slw=8, LDS_='sc1', STS='sc1', BT=0, XW=0, XD=0, XF=' nt', XI=8, XS=0, FPO=0, FPY=0, THO=16, THY=8, FGAP=2, OT=0, YT=0, MT=0, TN=1, KF='nt', SEP=0):
    A = Asm()
    global YS, TK
    YS, TK = (0x80000, 0x40000) if LAY else (0x200000, 0x300000)
    NT = 8192
    NV = 232
    WNT = ' nt' if wnt else ''
    lab = [0]
    def L(p):
        lab[0] += 1; return f"L_{p}{lab[0]}"
    nst = [0]
    def stamp(k):
        if diag: A(f"s_memrealtime s[{64+2*k}:{65+2*k}]")
    def dump_stamps(n):
        if not diag: return
        A("s_waitcnt vmcnt(0) lgkmcnt(0)")
        A("s_mov_b64 exec, -1")
        A("v_mov_b32 v40, 0")
        for k in range(n): A(f"v_writelane_b32 v40, s{64+2*k}, {k}")
        A("s_getreg_b32 s62, hwreg(HW_REG_XCC_ID)"); A("v_writelane_b32 v40, s62, 15"); A("v_writelane_b32 v40, s61, 14")
        A("s_mul_i32 s62, s2, 5"); A("s_add_u32 s62, s62, s3"); A("s_lshl_b32 s62, s62, 6"); A(f"s_add_u32 s62, s62, {DG}")
        A("v_lshlrev_b32 v41, 2, v0")
        A("s_mov_b64 exec, 0xffff")
        A("buffer_store_dword v40, v41, s[56:59], s62 offen")
        if diag == 2 and n == 6:
            A("s_mov_b64 exec, -1")
            A("s_lshl_b32 s62, s2, 2"); A("s_add_u32 s62, s62, s3"); A("s_lshl_b32 s62, s62, 8"); A(f"s_add_u32 s62, s62, {DG+0x20000}")
            A(f"buffer_store_dword v{NV-2}, v41, s[56:59], s62 offen")
    DPPM = "row_mask:0xf bank_mask:0xf"
    ROWSTEPS = ["quad_perm:[1,0,3,2]", "quad_perm:[2,3,0,1]", "row_half_mirror", "row_mirror"]
    def row_reduce(regs, op="v_add_f32", steps=ROWSTEPS):
        for st in steps:
            for r in regs: A(f"{op}_dpp v{r}, v{r}, v{r} {st} {DPPM}")
    def xrow_allreduce(pairs, op="v_add_f32"):
        for sw in ("v_permlane16_swap_b32", "v_permlane32_swap_b32"):
            for r, t in pairs: A(f"v_mov_b32 v{t}, v{r}")
            for r, t in pairs: A(f"{sw} v{r}, v{t}")
            for r, t in pairs: A(f"{op} v{r}, v{r}, v{t}")
    def rnd(r):
        A(f"v_cvt_pk_bf16_f32 v{r}, v{r}, v{r}"); A(f"v_and_b32 v{r}, 0xffff0000, v{r}")
    def srd(b, p, n):
        A(f"s_mov_b32 s{b}, s{p}"); A(f"s_mov_b32 s{b+1}, s{p+1}"); A(f"s_mov_b32 s{b+2}, {n}"); A(f"s_mov_b32 s{b+3}, 0x20000")

    vJ = NV - 1
    A(f".amdgcn_target \"amdgcn-amd-amdhsa--gfx950\"")
    A(".text"); A(f".globl {KN}"); A(".p2align 8"); A(f".type {KN},@function"); A(f"{KN}:")
    A("s_cmp_ge_u32 s2, 256"); A("s_cbranch_scc1 L_end")
    A("s_load_dwordx16 s[4:19], s[0:1], 0")
    A("s_load_dwordx4 s[20:23], s[0:1], 64")
    A("s_load_dwordx2 s[24:25], s[0:1], 80")
    if codepf:
        A("s_getpc_b64 s[94:95]")
        A("L_pc:")
        A("v_lshlrev_b32 v2, 6, v0"); A("v_min_u32 v2, L_end-L_pc, v2")
        A(f"global_load_dword v{vJ}, v2, s[94:95]")
    stamp(0)
    A("v_lshrrev_b32 v1, 6, v0"); A("v_and_b32 v0, 63, v0")
    A("v_readfirstlane_b32 s3, v1")
    A("s_lshr_b32 s26, s2, 4"); A("s_and_b32 s27, s2, 15")
    A("v_lshrrev_b32 v3, 4, v0"); A("v_and_b32 v4, 15, v0")
    A("s_cmp_eq_u32 s3, 4"); A("s_cbranch_scc1 L_helper")
    if XW: A("s_cmp_gt_u32 s3, 4"); A("s_cbranch_scc1 L_xw")

    sHB, sCUR, sLEFT, sTK, sTKO, sDYN, sT, sC = 40, 41, 42, 43, 44, 45, 46, 47
    sOFF = [48, 49]; sBO, sSTR, sNB = 50, 51, 60
    vM, vNM, vL, vA, vB, vT, vU1, vU2, vU3 = 3, 4, 5, 6, 7, 8, 9, 10, 11
    vQ, vACC, vBUF = 12, 20, 36
    nA = (LEAD + 1) // 2
    if FW: nA = 1 if FW == 8 else 2; LEAD = 0
    A("v_lshlrev_b32 v1, 9, v3"); A("v_lshl_add_u32 v1, v4, 4, v1")
    A(f"s_lshl_b32 s{sHB}, s26, 25")
    sPT, sMODE, sTKP = 36, 37, 38
    NPAIR, NPOOL = 256 - PL - 2*S, 8*PL
    if PAIR:
        assert LEAD == 4 and NPAIR >= 0
        A("s_lshl_b32 s62, s3, 12"); A(f"s_add_u32 s{sHB}, s{sHB}, s62")
        A(f"s_lshr_b32 s{sT}, s27, 1"); A(f"s_lshl_b32 s{sT}, s{sT}, 22"); A(f"s_add_u32 s{sOFF[0]}, s{sT}, s{sHB}")
        A("s_bitcmp1_b32 s27, 0")
        A(f"s_mov_b32 s{sT}, {(PL//2)*16384}"); A(f"s_cselect_b32 s{sT}, {(255-PL//2)*16384}, s{sT}")
        A(f"s_movk_i32 s{sSTR}, 16384"); A(f"s_cselect_b32 s{sSTR}, -16384, s{sSTR}")
        A(f"s_add_u32 s{sOFF[0]}, s{sOFF[0]}, s{sT}")
        A(f"s_add_u32 s{sOFF[1]}, s{sOFF[0]}, s{sSTR}")
        A(f"s_add_u32 s{sBO}, s{sOFF[1]}, s{sSTR}")
    else:
        A(f"s_mul_i32 s{sCUR}, s27, {4*(128 if PM else S)}"); A(f"s_add_u32 s{sCUR}, s{sCUR}, s3")
        A(f"s_lshl_b32 s{sT}, s{sCUR}, 12"); A(f"s_add_u32 s{sOFF[0]}, s{sT}, s{sHB}")
        A(f"s_add_u32 s{sOFF[1]}, s{sOFF[0]}, {4*4096}")
        A(f"s_add_u32 s{sBO}, s{sOFF[0]}, {(2 if SEP else nA)*4*4096}")
        if SEP: A(f"s_add_u32 s39, s{sOFF[0]}, {3*4*4096}"); A(f"s_mov_b32 s36, s{sOFF[0]}")
    A("s_waitcnt lgkmcnt(0)")
    srd(28, 6, 1 << 29); srd(32, 8, 1 << 29)
    if hfirst: A("s_barrier")
    IOFF = [0, 256, 2048, 2304]
    def kv(st, isv, i): return vBUF + st*32 + isv*16 + i*4
    def load(st, isv, i, so=None):
        b = kv(st, isv, i)
        if so is None: so = sOFF[st]
        A(f"buffer_load_dwordx4 v[{b}:{b+3}], v1, s[{28+4*isv}:{31+4*isv}], s{so} offen offset:{IOFF[i]} {KF}")
    def pub_voff(dst, t1, t2):
        A(f"v_lshrrev_b32 v{t1}, 1, v3"); A(f"v_lshlrev_b32 v{t1}, 3, v{t1}"); A(f"v_lshrrev_b32 v{t2}, 1, v4"); A(f"v_add_u32 v{t1}, v{t1}, v{t2}")
        A(f"v_lshlrev_b32 v{dst}, {6 if OT else 12}, v{t1}")
        A(f"v_and_b32 v{t1}, 1, v4"); A(f"v_lshlrev_b32 v{t1}, 5, v{t1}"); A(f"v_and_b32 v{t2}, 1, v3"); A(f"v_lshlrev_b32 v{t2}, 4, v{t2}")
        A(f"v_or3_b32 v{dst}, v{dst}, v{t1}, v{t2}")
    def setup():
        stamp(1)
        srd(56, 24, WS_BYTES)
        pub_voff(2, 6, 7)
        A("s_lshl_b32 s54, s27, 2"); A("s_add_u32 s54, s54, s3")
        A("s_lshl_b32 s52, s26, 16"); A(f"s_lshl_b32 s55, s54, {10 if OT else 6}"); A("s_add_u32 s52, s52, s55"); A(f"s_add_u32 s52, s52, {OS}")
        if MT: A("s_lshl_b32 s53, s26, 13"); A("s_lshl_b32 s55, s54, 7"); A("s_add_u32 s53, s53, s55"); A(f"s_add_u32 s53, s53, {0x280000}")
        else: A("s_lshl_b32 s53, s26, 10"); A("s_lshl_b32 s55, s54, 4"); A("s_add_u32 s53, s53, s55"); A(f"s_add_u32 s53, s53, {ML}")
        for i in range(16): A(f"v_mov_b32 v{vACC+i}, 0")
        if PAIR:
            A(f"s_mov_b32 s{sLEFT}, {S-nA-1}"); A(f"s_mov_b32 s{sMODE}, 0")
            A(f"s_lshl_b32 s{sTKP}, s26, 2"); A(f"s_add_u32 s{sTKP}, s{sTKP}, s3"); A(f"s_lshl_b32 s{sTKP}, s{sTKP}, 12"); A(f"s_add_u32 s{sTKP}, s{sTKP}, {TK}")
            A(f"s_lshr_b32 s{sTKO}, s27, 1"); A(f"s_lshl_b32 s{sTKO}, s{sTKO}, 8"); A(f"s_add_u32 s{sTKO}, s{sTKO}, s{sTKP}"); A(f"s_add_u32 s{sTKO}, s{sTKO}, 256")
        else:
            A(f"s_add_u32 s{sCUR}, s{sCUR}, {4*nA}"); A(f"s_mov_b32 s{sLEFT}, {S-nA}"); A(f"s_mov_b32 s{sSTR}, 4"); A(f"s_mov_b32 s{sMODE}, 0")
        if SRV: A(f"s_lshl_b32 s{sCUR}, s{sCUR}, 12"); A(f"s_add_u32 s{sCUR}, s{sCUR}, s{sHB}"); A(f"s_mov_b32 s{sMODE}, 0")
        if PAIR or SRV: pass
        elif TKW:
            A(f"s_add_u32 s{sDYN}, s3, {S*4 if PM else 16*S*4}")
            A(f"s_lshl_b32 s{sTKO}, s26, 2"); A(f"s_add_u32 s{sTKO}, s{sTKO}, s3"); A(f"s_lshl_b32 s{sTKO}, s{sTKO}, 12"); A(f"s_add_u32 s{sTKO}, s{sTKO}, {TK}")
        else:
            A(f"s_mov_b32 s{sDYN}, {16*S*4}")
            A(f"s_lshl_b32 s{sTKO}, s26, 14"); A(f"s_add_u32 s{sTKO}, s{sTKO}, {TK}")
        A(f"s_mov_b32 s{sC}, {CSC}"); A(f"s_mov_b32 s{sNB}, 0"); A(f"s_mov_b32 s63, {1<<22}")
        A("v_lshlrev_b32 v8, 4, v4")
        A("v_mov_b32 v10, 512")
        A(f"v_mov_b32 v{vM}, 0xff7fffff"); A(f"v_mov_b32 v{vL}, 0")
        A(f"v_mul_f32 v{vNM}, s{sC}, v{vM}"); A(f"v_sub_f32 v{vNM}, 0, v{vNM}")
        if not hfirst: A("s_barrier")
    def qcheck():
        A("ds_read_b64 v[6:7], v10")
        A(f"ds_read_b128 v[{vQ}:{vQ+3}], v8"); A(f"ds_read_b128 v[{vQ+4}:{vQ+7}], v8 offset:256")
        A("s_waitcnt lgkmcnt(0)")
        A("v_readfirstlane_b32 s62, v6")
        A("s_cmp_lg_u32 s62, 0"); A("s_cbranch_scc1 L_go")
    NL0 = FW if FW else 4 * LEAD
    items = [(n >> 3, (n >> 2) & 1, n & 3, None) for n in range(NL0)]
    for b in range(NB): items += [(2 + b, n >> 2, n & 3, sBO) for n in range(8)]
    for n, (st, isv, i, so) in enumerate(items):
        if n == min(INF, NL0): setup()
        if so is not None and isv == 0 and i == 0 and early: qcheck()
        if n >= INF: A(f"s_waitcnt vmcnt({INF-1})")
        if SEP:
            sk = (sOFF[isv] if so is None else (sBO, 39)[isv])
            A(f"buffer_load_dwordx4 v[{kv(st,isv,i)}:{kv(st,isv,i)+3}], v1, s[28:31], s{sk} offen offset:{IOFF[i]} {KF}")
        else: load(st, isv, i, so)
        if so is not None and isv == 1 and i == 3:
            A(f"s_add_u32 s{sBO}, s{sBO}, " + (f"s{sSTR}" if PAIR else f"{(8 if SEP else 4)*4096}")); A(f"s_add_u32 s{sNB}, s{sNB}, 1")
            if SEP: A(f"s_add_u32 s39, s39, {8*4096}")
    A("L_qspin:")
    qcheck()
    A("s_sleep 1")
    A("s_sub_u32 s63, s63, 1"); A("s_cbranch_scc0 L_qspin"); A("s_branch L_end")
    A("L_go:")
    A("v_readfirstlane_b32 s54, v7")
    if PAIR or SRV: A(f"s_mov_b32 s{sCUR}, s{sBO}")
    else: A(f"s_lshl_b32 s62, s{sNB}, 2"); A(f"s_add_u32 s{sCUR}, s{sCUR}, s62")
    A(f"s_sub_u32 s{sLEFT}, s{sLEFT}, s{sNB}")
    if diag: A(f"s_mov_b32 s61, s{sNB}"); A(f"s_mov_b32 s74, s{sNB}")
    stamp(2)
    rare = []
    VW = 4 * (LEAD - 1)
    dyns = []; srvs = []
    LCNT, LROWS = 520, 1024
    def newtile(dst):
        lj, ln = L("j"), L("n")
        if SRV:
            ld = L("dyn")
            A(f"s_sub_u32 s{sLEFT}, s{sLEFT}, 1"); A(f"s_cbranch_scc1 {ld}")
            A(f"s_mov_b32 s{dst}, s{sCUR}"); A(f"s_add_u32 s{sCUR}, s{sCUR}, 16384")
            A(f"{ln}:")
            srvs.append((ld, ln, dst))
            return
        if PAIR:
            ld = L("dyn")
            A(f"s_sub_u32 s{sLEFT}, s{sLEFT}, 1"); A(f"s_cbranch_scc1 {ld}")
            A(f"{lj}:")
            A(f"s_mov_b32 s{dst}, s{sCUR}"); A(f"s_add_u32 s{sCUR}, s{sCUR}, s{sSTR}")
            A(f"{ln}:")
            dyns.append((ld, lj, ln, dst))
            return
        A(f"s_cmp_gt_i32 s{sLEFT}, 0"); A(f"s_cbranch_scc1 {lj}")
        A("s_waitcnt lgkmcnt(0)")
        if PM:
            assert C == 1 and TKW
            A(f"s_and_b32 s{sT}, s{sTK}, 15"); A(f"s_lshl_b32 s{sT}, s{sT}, 7"); A(f"s_lshr_b32 s{sCUR}, s{sTK}, 4"); A(f"s_add_u32 s{sCUR}, s{sCUR}, s{sT}")
            A(f"s_lshl_b32 s{sCUR}, s{sCUR}, 2"); A(f"s_add_u32 s{sCUR}, s{sCUR}, s{sDYN}"); A(f"s_mov_b32 s{sLEFT}, {C}")
            A(f"s_cmp_lt_u32 s{sTK}, {16*(128-S)}"); A(f"s_cselect_b32 s{sCUR}, s{sCUR}, {NT}")
            if BT: A(f"s_cmp_ge_u32 s{sTK}, {max(16*(128-S)-BT, 0)}"); A(f"s_cselect_b32 s{sMODE}, 1, 0")
        else:
            A(f"s_mul_i32 s{sCUR}, s{sTK}, {(4 if TKW else 1)*C}"); A(f"s_add_u32 s{sCUR}, s{sCUR}, s{sDYN}"); A(f"s_mov_b32 s{sLEFT}, {C}")
        if not TKW: A(f"s_mov_b32 s{sSTR}, 1")
        A(f"s_cmp_lt_u32 s{sCUR}, {NT}"); A(f"s_cselect_b32 s{sLEFT}, s{sLEFT}, 1000")
        if TRIG == 2:
            A(f"s_cbranch_scc1 {lj}")
            A(f"v_mov_b32 v{vT}, {LCNT}"); A(f"ds_write_b32 v{vT}, v{vT}")
        A(f"{lj}:")
        A(f"s_cmp_lg_u32 s{sLEFT}, {C}"); A(f"s_cbranch_scc1 {ln}")
        A(f"s_mov_b32 s{sTK}, 1"); A(f"s_atomic_add s{sTK}, s[24:25], s{sTKO} glc")
        if WARM & 6:
            A(f"s_cmp_lg_u32 s{sMODE}, 0"); A(f"s_cbranch_scc1 {ln}")
            A(f"s_mov_b32 s{sMODE}, 1")
            if WARM & 2:
                A(f"buffer_load_dword v{vBUF+64}, v2, s[56:59], s52 offen sc1")
                A(f"buffer_load_dword v{vBUF+65}, off, s[56:59], s53 sc1")
            if WARM & 4:
                A(f"v_lshlrev_b32 v{vBUF+66}, 4, v0")
                A("s_lshl_b32 s62, s2, 2"); A("s_add_u32 s62, s62, s3"); A("s_lshl_b32 s62, s62, 10"); A(f"s_add_u32 s62, s62, {OS}")
                A(f"buffer_load_dword v{vBUF+67}, v{vBUF+66}, s[56:59], s62 offen sc1")
                A(f"s_add_u32 s62, s62, {YS-OS}"); A("s_cmp_lt_u32 s2, 112"); A("s_cselect_b32 s62, s62, 0x80000000")
                A(f"buffer_load_dword v{vBUF+68}, v{vBUF+66}, s[56:59], s62 offen sc1")
        A(f"{ln}:")
        A(f"s_lshl_b32 s{sT}, s{sCUR}, 12"); A(f"s_add_u32 s{sT}, s{sT}, s{sHB}")
        A(f"s_cmp_lt_u32 s{sCUR}, {NT}"); A(f"s_cselect_b32 s{dst}, s{sT}, 0x80000000")
        A(f"s_add_u32 s{sCUR}, s{sCUR}, s{sSTR}"); A(f"s_sub_i32 s{sLEFT}, s{sLEFT}, 1")
    def body(st, stream, burst=False):
        o = st ^ 1
        if burst:
            A(f"L_burst{st}:")
            for g in range(8): load(o, g >> 2, g & 3)
        if stream:
            A(f"L_body{st}:")
            A(f"s_cmp_ge_u32 s{sOFF[st]}, 0x80000000"); A("s_cbranch_scc1 L_sdone")
            if diag: A("s_add_u32 s61, s61, 1")
            if LEAD == 4 or FW > 8: newtile(sOFF[st])
            if LEAD == 2 or FW == 8: newtile(sOFF[o])
            if BT: A(f"s_cmp_lg_u32 s{sMODE}, 0"); A(f"s_cbranch_scc1 L_burst{st}")
            if not FW: A(f"s_waitcnt vmcnt({VW})")
            if LEAD == 3:
                for i in range(4): load(o, 1, i)
            if LEAD == 2:
                for i in range(4): load(o, 0, i)
        def step(p):
            if burst: A(f"s_waitcnt vmcnt({15-p})")
            if not (stream and FW): return
            A(f"s_waitcnt vmcnt({FW-1})")
            g = p + FW
            load(o if g < 16 else st, (g >> 2) & 1, g & 3)
        if FW:
            for i in range(4):
                step(i)
                acc, half = (vA, vB)[i >> 1], i & 1
                for d in range(4):
                    c = "0" if (half == 0 and d == 0) else f"v{acc}"
                    A(f"v_dot2_f32_bf16 v{acc}, v{kv(st,0,i)+d}, v{vQ+half*4+d}, {c}")
        else:
          for half in range(2):
            for d in range(4):
                for (acc, i) in ((vA, half), (vB, 2 + half)):
                    c = "0" if (half == 0 and d == 0) else f"v{acc}"
                    A(f"v_dot2_f32_bf16 v{acc}, v{kv(st,0,i)+d}, v{vQ+half*4+d}, {c}")
        if stream and LEAD == 4: load(st, 0, 0); load(st, 0, 1); load(st, 0, 2)
        for k, stp in enumerate(ROWSTEPS):
            A(f"v_add_f32_dpp v{vA}, v{vA}, v{vA} {stp} {DPPM}")
            A(f"v_add_f32_dpp v{vB}, v{vB}, v{vB} {stp} {DPPM}")
            if k == 0 and stream and LEAD == 4: load(st, 0, 3)
        A(f"v_cvt_pk_bf16_f32 v{vT}, v{vA}, v{vB}")
        A(f"v_lshlrev_b32 v{vA}, 16, v{vT}"); A(f"v_and_b32 v{vB}, 0xffff0000, v{vT}")
        A(f"v_max_f32 v{vT}, v{vA}, v{vB}")
        A(f"v_cmp_gt_f32 vcc, v{vT}, v{vM}")
        lr, lb = L("rare"), L("back")
        A(f"s_cbranch_vccnz {lr}")
        A(f"{lb}:")
        rare.append((lr, lb))
        A(f"v_fma_f32 v{vA}, v{vA}, s{sC}, v{vNM}"); A(f"v_fma_f32 v{vB}, v{vB}, s{sC}, v{vNM}")
        A(f"v_exp_f32 v{vA}, v{vA}"); A(f"v_exp_f32 v{vB}, v{vB}")
        if stream:
            if LEAD == 3: newtile(sOFF[st])
            if not FW: A(f"s_waitcnt vmcnt({VW})")
            if LEAD == 3:
                for i in range(4): load(st, 0, i)
            if LEAD == 2:
                for i in range(4): load(o, 1, i)
        A(f"v_cvt_pk_bf16_f32 v{vT}, v{vA}, 0"); A(f"v_cvt_pk_bf16_f32 v{vU1}, 0, v{vA}")
        A(f"v_cvt_pk_bf16_f32 v{vU2}, v{vB}, 0"); A(f"v_cvt_pk_bf16_f32 v{vU3}, 0, v{vB}")
        A(f"v_add_f32 v{vL}, v{vL}, v{vA}"); A(f"v_add_f32 v{vL}, v{vL}, v{vB}")
        for i in range(4):
            lo, hi = (vT, vU1) if i < 2 else (vU2, vU3)
            ab = vACC + (i & 1) * 8
            step(4 + i)
            for d in range(4):
                A(f"v_dot2c_f32_bf16 v{ab+2*d}, v{kv(st,1,i)+d}, v{lo}")
                A(f"v_dot2c_f32_bf16 v{ab+2*d+1}, v{kv(st,1,i)+d}, v{hi}")
            if stream and LEAD == 4: load(st, 1, i)
    if SEP:
        assert FW == 8 and PM and S % 2 == 0 and S // 2 <= 64 and not BT and diag != 2
        H = S // 2
        sOF2, sSL, vLA, vX, vY = [96, 97], [98, 99], 230, 228, 229
        def dload(st, g):
            b = kv(st, g >> 2, g & 3)
            A(f"buffer_load_dwordx4 v[{b}:{b+3}], v1, s[{88+4*(g>>2)}:{91+4*(g>>2)}], s{(sOFF, sOF2)[g>>2][st]} offen offset:{IOFF[g&3]} {KF}")
        def dstep(st, g, stream):
            if stream: A("s_waitcnt vmcnt(7)"); dload(st ^ 1, g)
        stubs = []
        def head(st, ph):
            o = st ^ 1
            A(f"L_{ph}{st}:")
            if diag: A("s_add_u32 s61, s61, 1")
            A(f"s_sub_u32 s{sLEFT}, s{sLEFT}, 1"); A(f"s_cbranch_scc1 L_{ph}l{st}")
            if ph == "v":
                A(f"s_cmp_lg_u32 s{sLEFT}, 0"); A(f"s_cbranch_scc1 L_vn{st}")
                A(f"s_mov_b32 s{sTK}, 1"); A(f"s_atomic_add s{sTK}, s[24:25], s{sTKO} glc")
                A(f"L_vn{st}:")
            A(f"s_mov_b32 s{sOFF[o]}, s{sBO}"); A(f"s_add_u32 s{sOF2[o]}, s{sBO}, 16384"); A(f"s_add_u32 s{sBO}, s{sBO}, 32768")
            if ph == "k": A(f"s_mov_b32 s{sSL[o]}, s38"); A("s_add_u32 s38, s38, 32")
            A(f"L_{ph}b{st}:")
        def kbody(st, stream):
            if stream: head(st, "k"); A(f"v_add_u32 v{vX}, s{sSL[st]}, v{vLA}")
            for t in range(2):
                for i in range(4):
                    dstep(st, 4*t + i, stream)
                    acc, half = (vA, vB)[i >> 1], i & 1
                    for d in range(4):
                        c = "0" if (half == 0 and d == 0) else f"v{acc}"
                        A(f"v_dot2_f32_bf16 v{acc}, v{kv(st,t,i)+d}, v{vQ+half*4+d}, {c}")
                row_reduce([vA, vB])
                A(f"v_cvt_pk_bf16_f32 v{vT}, v{vA}, v{vB}")
                if stream: A(f"ds_write_b32 v{vX}, v{vT} offset:{16*t}")
                else: A(f"ds_write_b32 v{vLA}, v{vT} offset:{32*(st-1)+16*t}")
                A(f"v_lshlrev_b32 v{vA}, 16, v{vT}"); A(f"v_and_b32 v{vB}, 0xffff0000, v{vT}")
                A(f"v_max3_f32 v{vM}, v{vA}, v{vB}, v{vM}")
            if stream: A(f"s_cmp_lg_u32 s{sMODE}, 0"); A(f"s_cbranch_scc1 L_k2v{st^1}")
        def vbody(st):
            A(f"L_vt{st}:")
            A(f"ds_read_b32 v{vX}, v{vLA}"); A(f"ds_read_b32 v{vY}, v{vLA} offset:16")
            A(f"v_add_u32 v{vLA}, 32, v{vLA}")
            A("s_waitcnt lgkmcnt(0)")
            head(st, "v")
            for t in range(2):
                sc = (vX, vY)[t]
                A(f"v_lshlrev_b32 v{vA}, 16, v{sc}"); A(f"v_and_b32 v{vB}, 0xffff0000, v{sc}")
                A(f"v_fma_f32 v{vA}, v{vA}, s{sC}, v{vNM}"); A(f"v_fma_f32 v{vB}, v{vB}, s{sC}, v{vNM}")
                A(f"v_exp_f32 v{vA}, v{vA}"); A(f"v_exp_f32 v{vB}, v{vB}")
                A(f"v_cvt_pk_bf16_f32 v{vT}, v{vA}, 0"); A(f"v_cvt_pk_bf16_f32 v{vU1}, 0, v{vA}")
                A(f"v_cvt_pk_bf16_f32 v{vU2}, v{vB}, 0"); A(f"v_cvt_pk_bf16_f32 v{vU3}, 0, v{vB}")
                A(f"v_add_f32 v{vL}, v{vL}, v{vA}"); A(f"v_add_f32 v{vL}, v{vL}, v{vB}")
                for i in range(4):
                    lo, hi = (vT, vU1) if i < 2 else (vU2, vU3)
                    ab = vACC + (i & 1) * 8
                    dstep(st, 4*t + i, True)
                    for d in range(4):
                        A(f"v_dot2c_f32_bf16 v{ab+2*d}, v{kv(st,t,i)+d}, v{lo}")
                        A(f"v_dot2c_f32_bf16 v{ab+2*d+1}, v{kv(st,t,i)+d}, v{hi}")
            A(f"s_cmp_lg_u32 s{sMODE}, 0"); A(f"s_cbranch_scc1 L_body{st^1}")
        A(f"s_sub_u32 s{sLEFT}, {H-1}, s{sNB}"); A(f"s_mov_b32 s{sSL[0]}, 0")
        A(f"s_lshl_b32 s38, s{sNB}, 5"); A("s_add_u32 s38, s38, 32")
        A("s_mov_b64 s[88:89], s[28:29]"); A("s_mov_b64 s[90:91], s[30:31]"); A("s_mov_b64 s[92:93], s[28:29]"); A("s_mov_b64 s[94:95], s[30:31]")
        A("s_lshl_b32 s62, s3, 11"); A("s_add_u32 s62, s62, 1024")
        A(f"v_lshrrev_b32 v{vLA}, 4, v0"); A(f"v_lshl_add_u32 v{vLA}, v{vLA}, 2, s62")
        A(".p2align 6")
        kbody(0, True); kbody(1, True)
        A(f"s_cmp_eq_u32 s{sNB}, 0"); A("s_cbranch_scc1 L_k0")
        for b in range(NB):
            kbody(2 + b, False)
            if b < NB - 1: A(f"s_cmp_eq_u32 s{sNB}, {b+1}"); A("s_cbranch_scc1 L_kdone")
        A("L_kdone:")
        A(f"s_mov_b32 s{sNB}, 0")
        A("s_branch L_k0")
        for st in range(2):
            o = st ^ 1
            A(f"L_kl{st}:")
            A("s_mov_b64 s[88:89], s[32:33]"); A("s_mov_b64 s[92:93], s[32:33]")
            A(f"s_mov_b32 s{sOFF[o]}, s36"); A(f"s_add_u32 s{sOF2[o]}, s36, 16384"); A(f"s_add_u32 s{sBO}, s36, 32768")
            A(f"s_mov_b32 s{sMODE}, 1"); A(f"s_branch L_kb{st}")
            A(f"L_k2v{st}:")
            A(f"v_mov_b32 v{vT}, v{vM}")
            xrow_allreduce([(vM, vU1)], "v_max_f32")
            A(f"v_mul_f32 v{vNM}, s{sC}, v{vM}"); A(f"v_sub_f32 v{vNM}, 0, v{vNM}")
            A(f"s_mov_b32 s{sMODE}, 0"); A(f"s_mov_b32 s{sLEFT}, {H-1}")
            A(f"s_branch L_vt{st}")
            A(f"L_vl{st}:")
            A("s_mov_b64 s[88:89], s[28:29]")
            A(f"s_mov_b32 s{sLEFT}, 0")
            newtile(sOFF[o])
            A(f"s_mov_b32 s{sOF2[o]}, s{sOFF[o]}"); A(f"s_mov_b32 s{sMODE}, 1"); A(f"s_branch L_vb{st}")
        A(".p2align 6")
        vbody(0); vbody(1)
        A("s_branch L_vt0")
    A(".p2align 6")
    A("L_loop:")
    if diag == 2:
        A("s_memrealtime s[86:87]"); A("s_lshr_b32 s62, s61, 1"); A("s_min_u32 m0, s62, 63"); A("s_waitcnt lgkmcnt(0)"); A(f"v_writelane_b32 v{vJ-1}, s86, m0")
    body(0, True); body(1, True)
    A(f"s_cmp_eq_u32 s{sNB}, 0"); A("s_cbranch_scc1 L_loop")
    for b in range(0 if SEP else NB):
        body(2 + b, False)
        if b < NB - 1: A(f"s_cmp_eq_u32 s{sNB}, {b+1}"); A("s_cbranch_scc1 L_bdone")
    A("L_bdone:")
    A(f"s_mov_b32 s{sNB}, 0")
    A("s_branch L_loop")
    if BT:
        assert FW == 8 and PM and not (WARM & 6)
        for st in range(2):
            body(st, False, True)
            A(f"s_branch L_body{st^1}")
    for ld, ln, dst in srvs:
        l1 = L("d")
        A(f"{ld}:")
        A(f"s_mov_b32 s{sLEFT}, 0"); A(f"s_mov_b32 s{dst}, 0x80000000")
        A(f"s_cmp_lg_u32 s{sMODE}, 0"); A(f"s_cbranch_scc1 {ln}")
        A("s_mov_b64 exec, 1")
        A(f"v_mov_b32 v{vT}, {LCNT}"); A(f"v_mov_b32 v{vU1}, 1")
        A(f"ds_add_rtn_u32 v{vU1}, v{vT}, v{vU1}")
        A("s_waitcnt lgkmcnt(0)")
        A(f"v_and_b32 v{vT}, -4, v{vU1}")
        A(f"v_readfirstlane_b32 s{sT}, v{vU1}")
        A(f"{l1}:")
        A(f"ds_read_b32 v{vU1}, v{vT} offset:{LROWS}")
        A(f"s_and_b32 s{sT}, s{sT}, 3")
        A("s_waitcnt lgkmcnt(0)")
        A(f"v_readfirstlane_b32 s62, v{vU1}")
        A("s_sub_u32 s63, s63, 1"); A("s_cbranch_scc1 L_end")
        A(f"s_cmp_eq_u32 s62, 0"); A(f"s_cbranch_scc1 {l1}")
        A("s_mov_b64 exec, -1")
        A(f"s_lshl_b32 s{sT}, s{sT}, 12"); A(f"s_or_b32 s{dst}, s62, s{sT}")
        A(f"s_lshr_b32 s{sMODE}, s62, 31")
        A(f"s_branch {ln}")
    for ld, lj, ln, dst in dyns:
        l1, l2, l3 = L("d"), L("d"), L("d")
        A(f"{ld}:")
        A(f"s_mov_b32 s{sLEFT}, 0")
        A(f"s_cmp_lg_u32 s{sMODE}, 0"); A(f"s_cbranch_scc1 {l1}")
        A(f"s_mov_b32 s{sMODE}, 1"); A(f"s_mov_b32 s{sPT}, 1"); A(f"s_atomic_add s{sPT}, s[24:25], s{sTKP} glc")
        A(f"{l3}:")
        A(f"s_mov_b32 s{sTK}, 1"); A(f"s_atomic_add s{sTK}, s[24:25], s{sTKO} glc")
        A(f"s_branch {lj}")
        A(f"{l1}:")
        A("s_waitcnt lgkmcnt(0)")
        A(f"s_cmp_eq_u32 s{sMODE}, 2"); A(f"s_cbranch_scc1 {l2}")
        A(f"s_cmp_lt_u32 s{sTK}, {NPAIR}"); A(f"s_cbranch_scc1 {l3}")
        A(f"s_mov_b32 s{sMODE}, 2"); A(f"s_mov_b32 s{sTK}, s{sPT}")
        A(f"{l2}:")
        A(f"s_mov_b32 s{dst}, 0x80000000")
        A(f"s_cmp_lt_u32 s{sTK}, {NPOOL}"); A(f"s_cbranch_scc0 {ln}")
        lg = PL.bit_length() - 1
        if PORD == 0:
            A(f"s_lshr_b32 s{sT}, s{sTK}, {lg}"); A(f"s_and_b32 s62, s{sTK}, {PL-1}")
        else:
            A(f"s_and_b32 s{sT}, s{sTK}, 7"); A(f"s_lshr_b32 s62, s{sTK}, 3")
        A(f"s_lshl_b32 s{sT}, s{sT}, 8"); A(f"s_add_u32 s{sT}, s{sT}, s62"); A(f"s_sub_u32 s{sT}, s{sT}, {PL//2}"); A(f"s_and_b32 s{sT}, s{sT}, 2047")
        A(f"s_lshl_b32 s{sT}, s{sT}, 14"); A(f"s_add_u32 s{dst}, s{sT}, s{sHB}")
        A(f"s_mov_b32 s{sTK}, 1"); A(f"s_atomic_add s{sTK}, s[24:25], s{sTKP} glc")
        A(f"s_branch {ln}")
    for lr, lb in rare:
        A(f"{lr}:")
        xrow_allreduce([(vT, vU1)], "v_max_f32")
        A(f"v_max_f32 v{vT}, v{vT}, v{vM}")
        A(f"v_mul_f32 v{vNM}, s{sC}, v{vT}"); A(f"v_sub_f32 v{vNM}, 0, v{vNM}")
        A(f"v_fma_f32 v{vU1}, v{vM}, s{sC}, v{vNM}"); A(f"v_exp_f32 v{vU1}, v{vU1}")
        A(f"v_mov_b32 v{vM}, v{vT}")
        A(f"v_mul_f32 v{vL}, v{vL}, v{vU1}")
        for i in range(0, 16, 2): A(f"v_pk_mul_f32 v[{vACC+i}:{vACC+i+1}], v[{vACC+i}:{vACC+i+1}], v[{vT}:{vU1}] op_sel:[0,1] op_sel_hi:[1,1]")
        A(f"s_branch {lb}")
    A("L_sdone:")
    stamp(3)
    if TRIG in (1, 3) and TN == 1: A(f"v_mov_b32 v{vT}, {LCNT}"); A(f"ds_write_b32 v{vT}, v{vT}")
    if TRIG in (1, 3) and TN > 1: A(f"v_mov_b32 v{vT}, {LCNT}"); A(f"v_mov_b32 v{vU1}, 1"); A(f"ds_add_u32 v{vT}, v{vU1}")
    A("s_lshr_b32 s55, s54, 4"); A("s_lshr_b32 s62, s54, 8"); A("s_lshr_b32 s63, s54, 12")
    for i in range(8): A(f"v_permlane32_swap_b32 v{vACC+i}, v{vACC+8+i}")
    A(f"v_mov_b32 v{vT}, v{vL}")
    for i in range(8): A(f"v_add_f32 v{vACC+i}, v{vACC+i}, v{vACC+8+i}")
    A(f"v_permlane16_swap_b32 v{vL}, v{vT}")
    for i in range(4): A(f"v_permlane16_swap_b32 v{vACC+i}, v{vACC+4+i}")
    A(f"v_add_f32 v{vL}, v{vL}, v{vT}")
    for i in range(4): A(f"v_add_f32 v{vACC+i}, v{vACC+i}, v{vACC+4+i}")
    A(f"v_mov_b32 v{vT}, v{vL}")
    for i, t in enumerate((54, 55, 62, 63)): A(f"v_bfi_b32 v{vACC+i}, 15, s{t}, v{vACC+i}")
    A(f"v_permlane32_swap_b32 v{vL}, v{vT}")
    A(f"buffer_store_dwordx4 v[{vACC}:{vACC+3}], v2, s[56:59], s52 offen {STS}")
    A(f"v_add_f32 v{vU1}, v{vL}, v{vT}")
    A(f"v_mov_b32 v{vT}, v{vM}"); A(f"v_mov_b32 v{vU2}, s54"); A(f"v_mov_b32 v{vU3}, s54")
    if MT:
        A(f"v_lshlrev_b32 v{vA}, 4, v0")
        A("s_mov_b64 exec, 0xff")
        A(f"buffer_store_dwordx4 v[{vT}:{vU3}], v{vA}, s[56:59], s53 offen {STS}")
    else:
        A("s_mov_b64 exec, 1")
        A(f"buffer_store_dwordx4 v[{vT}:{vU3}], off, s[56:59], s53 {STS}")
    A("s_barrier")
    stamp(4)
    dump_stamps(6)
    A("s_endpgm")

    if XW:
        A("L_xw:")
        A("s_barrier")
        A("s_waitcnt lgkmcnt(0)")
        srd(28, 12, 4096*896)
        A("v_lshlrev_b32 v1, 4, v0")
        A("s_mul_i32 s40, s26, 229376"); A("s_sub_u32 s41, s3, 5"); A("s_mul_i32 s41, s41, 76800"); A("s_add_u32 s40, s40, s41")
        if XD:
            A(f"s_movk_i32 s42, {XD}")
            A("L_xd:"); A("s_sleep 32"); A("s_sub_u32 s42, s42, 1"); A("s_cbranch_scc0 L_xd")
        for i in range(75):
            if i >= XI: A(f"s_waitcnt vmcnt({XI-1})")
            if XS: A(f"s_sleep {XS}")
            A(f"buffer_load_dwordx4 v[{8+4*(i%48)}:{8+4*(i%48)+3}], v1, s[28:31], s40 offen{XF}")
            A("s_add_u32 s40, s40, 1024")
        A("s_waitcnt vmcnt(0)")
        A("s_endpgm")
    A("L_helper:")
    A("s_setprio 3")
    X = 8
    XLO, XHI = 16, 24
    ACC = 32
    W = 48
    R = 112
    vM1 = 144
    vMean, vYv, vZv, vQv, vL4, vRs, vL16 = 148, 149, 150, 151, 152, 153, 154
    T = [156, 157, 158, 159, 160, 161, 162, 163]
    vF0, vF, vLF = 155, 164, 165
    XA, XAF, XB, XBF = 8, 16, 24, 112
    A(f"v_mov_b32 v{T[4]}, 0"); A(f"v_mov_b32 v{T[5]}, 0"); A(f"v_mov_b32 v{vLF}, 512")
    A(f"v_lshlrev_b32 v{vL16}, 4, v0")
    A(f"v_mov_b32 v{T[6]}, 0"); A(f"v_mov_b32 v{T[7]}, 0")
    A(f"ds_write_b128 v{vLF}, v[{T[4]}:{T[7]}]")
    if SRV:
        for i in range(3): A(f"ds_write_b128 v{vL16}, v[{T[4]}:{T[7]}] offset:{LROWS+1024*i}")
    A(f"v_lshrrev_b32 v{T[0]}, 3, v0")
    A(f"v_mul_u32_u24 v{T[1]}, 28, v{T[0]}")
    A(f"v_mul_u32_u24 v{T[2]}, {14*8192}, v{T[0]}")
    A(f"v_and_b32 v{T[3]}, 7, v0")
    A(f"v_lshl_add_u32 v{T[2]}, v{T[3]}, 4, v{T[2]}")
    A("s_lshr_b32 s61, s27, 2")
    A("s_mul_i32 s60, s61, 224")
    A(f"s_mul_i32 s62, s61, {112*8192}"); A("s_lshl_b32 s63, s26, 9"); A("s_add_u32 s62, s62, s63")
    A("s_and_b32 s63, s27, 3"); A("s_lshl_b32 s63, s63, 7"); A("s_add_u32 s62, s62, s63")
    A("s_lshl_b32 s93, s26, 12")
    lnc = L("noclr")
    A("s_cmp_lg_u32 s27, 0")
    A("s_waitcnt lgkmcnt(0)")
    A(f"s_load_dword s52, s[24:25], {EP}")
    srd(56, 24, WS_BYTES)
    A(f"s_cbranch_scc1 {lnc}")
    A(f"v_lshlrev_b32 v{T[4]}, 8, v0")
    A("s_lshl_b32 s61, s26, 14"); A(f"s_add_u32 s61, s61, {TK}")
    if SRV: A("s_mov_b64 exec, 1")
    A(f"buffer_store_dword v{T[5]}, v{T[4]}, s[56:59], s61 offen sc1")
    A("s_mov_b64 exec, -1")
    A(f"{lnc}:")
    srd(28, 4, 896); srd(32, 10, 448*4096*2)
    A(f"buffer_load_dwordx4 v[{XA}:{XA+3}], v{vL16}, s[28:31], 0 offen")
    A(f"buffer_load_dwordx4 v[{XB}:{XB+3}], v{T[1]}, s[28:31], s60 offen")
    A(f"buffer_load_dwordx3 v[{XB+4}:{XB+6}], v{T[1]}, s[28:31], s60 offen offset:16")
    for i in range(14):
        A(f"buffer_load_dwordx4 v[{W+4*i}:{W+4*i+3}], v{T[2]}, s[32:35], s62 offen{WNT}")
        if i < 13: A("s_add_u32 s62, s62, 8192")
    A("s_barrier")
    vMK, vTa, vTb, vMKY = vM1, vM1 + 1, vM1 + 2, vM1 + 3
    A(f"v_mov_b32 v{vMK}, 15"); A(f"v_mov_b32 v{vMKY}, 0x3ff")
    for i in range(8): A(f"v_mov_b32 v{ACC+i}, 0")
    A(f"v_lshlrev_b32 v{vQv}, 5, v{T[3]}"); A(f"v_lshrrev_b32 v{T[4]}, 5, v0"); A(f"v_lshl_add_u32 v{vQv}, v{T[4]}, 4, v{vQv}")
    A(f"v_and_b32 v{T[4]}, 1, v3"); A(f"v_lshl_add_u32 v{vQv}, v{T[4]}, 3, v{vQv}")
    def qpub(src, so):
        A("s_mov_b32 exec_lo, 0x00ff00ff"); A("s_mov_b32 exec_hi, 0x00ff00ff")
        A(f"buffer_store_dwordx2 v[{src}:{src+1}], v{vQv}, s[56:59], s{so} offen sc1")
        A("s_mov_b64 exec, -1")
    NCL = -2
    A("s_lshl_b32 s60, s2, 8")
    A(f"v_lshlrev_b32 v{vTb}, 3, v{T[4]}")
    A(f"s_mov_b32 s90, 0x05040100"); A(f"s_mov_b32 s91, 0x07060302")
    A(f"s_mov_b32 s62, {f2u(1.0/448.0)}"); A(f"s_mov_b32 s63, {f2u(448.0)}")
    A("s_mov_b32 s88, -1"); A("s_mov_b32 s89, 0x00ffffff")
    A(f"s_mov_b32 s99, {spin}")
    A(f"s_waitcnt vmcnt(14)")
    stamp(1)
    def unpack(dst, src):
        return [f"v_lshlrev_b32 v{dst}, 16, v{src}", f"v_and_b32 v{dst+1}, 0xffff0000, v{src}"]
    def pr(r): return f"v[{r}:{r+1}]"
    def weave(chain, fill, k=2):
        fill = list(fill)
        for c in chain:
            A(c)
            for _ in range(k):
                if fill: A(fill.pop(0))
        for f in fill: A(f)
    def allred(r, t):
        ch = [f"v_add_f32_dpp v{r}, v{r}, v{r} {st} {DPPM}" for st in ROWSTEPS]
        for sw in ("v_permlane16_swap_b32", "v_permlane32_swap_b32"):
            ch += [f"v_mov_b32 v{t}, v{r}", f"{sw} v{r}, v{t}", f"v_add_f32 v{r}, v{r}, v{t}"]
        return ch
    def div448(r, t):
        return [f"v_mul_f32 v{t}, s62, v{r}", f"v_fma_f32 v{r}, -v{t}, s63, v{r}", f"v_fma_f32 v{r}, v{r}, s62, v{t}"]
    def rndl(r): return [f"v_cvt_pk_bf16_f32 v{r}, v{r}, v{r}", f"v_and_b32 v{r}, 0xffff0000, v{r}"]
    s_, t_, q_, u_ = T[0], T[1], T[2], T[3]
    for k in range(4):
        for ins in unpack(XAF+2*k, XA+k): A(ins)
    A(f"v_pk_add_f32 {pr(T[4])}, {pr(XAF)}, {pr(XAF+2)}"); A(f"v_pk_add_f32 {pr(T[6])}, {pr(XAF+4)}, {pr(XAF+6)}")
    A(f"v_pk_add_f32 {pr(T[4])}, {pr(T[4])}, {pr(T[6])}")
    A(f"v_add_f32 v{s_}, v{T[4]}, v{T[5]}")
    fillB = []
    for k in range(7): fillB += unpack(XBF+2*k, XB+k)
    weave(allred(s_, t_) + div448(s_, t_), fillB, 2)
    BCST = "op_sel:[0,0] op_sel_hi:[1,0]"
    for k in range(4): A(f"v_pk_add_f32 {pr(XAF+2*k)}, {pr(XAF+2*k)}, {pr(s_)} {BCST} neg_lo:[0,1] neg_hi:[0,1]")
    A(f"v_cvt_pk_bf16_f32 v{vMean}, v{s_}, v{s_}")
    A(f"v_pk_mul_f32 {pr(T[4])}, {pr(XAF)}, {pr(XAF)}"); A(f"v_pk_mul_f32 {pr(T[6])}, {pr(XAF+2)}, {pr(XAF+2)}")
    A(f"v_and_b32 v{vMean}, 0xffff0000, v{vMean}")
    A(f"v_pk_fma_f32 {pr(T[4])}, {pr(XAF+4)}, {pr(XAF+4)}, {pr(T[4])}"); A(f"v_pk_fma_f32 {pr(T[6])}, {pr(XAF+6)}, {pr(XAF+6)}, {pr(T[6])}")
    A(f"v_pk_add_f32 {pr(T[4])}, {pr(T[4])}, {pr(T[6])}")
    A(f"v_add_f32 v{q_}, v{T[4]}, v{T[5]}")
    A(f"v_cndmask_b32 v{q_}, 0, v{q_}, s[88:89]")
    fillB = []
    for k in range(7): fillB.append(f"v_pk_add_f32 {pr(XBF+2*k)}, {pr(XBF+2*k)}, {pr(vMean)} {BCST} neg_lo:[0,1] neg_hi:[0,1]")
    for k in range(7): fillB.append(f"v_cvt_pk_bf16_f32 v{XB+k}, v{XBF+2*k}, v{XBF+2*k+1}")
    for k in range(7): fillB += unpack(XBF+2*k, XB+k)
    chain = allred(q_, t_) + div448(q_, t_) + rndl(q_) + [f"v_add_f32 v{q_}, {f2u(1e-5)}, v{q_}"] + rndl(q_) + [f"v_sqrt_f32 v{q_}, v{q_}"] + rndl(q_) + [f"v_rcp_f32 v{T[4]}, v{q_}"]
    weave(chain, fillB, 2)
    A(f"v_mov_b32 v{vRs}, v{T[4]}")
    for k in range(7): A(f"v_pk_mul_f32 {pr(XBF+2*k)}, {pr(XBF+2*k)}, {pr(T[4])} {BCST}")
    for k in range(7): A(f"v_cvt_pk_bf16_f32 v{XB+k}, v{XBF+2*k}, v{XBF+2*k+1}")
    def slice_dot(Wb, waits):
        for k in range(7):
            if waits: A(f"s_waitcnt vmcnt({14+NCL-2*k})")
            for c in range(4):
                a, b = Wb + 8*k + c, Wb + 8*k + 4 + c
                A(f"v_perm_b32 v{T[c]}, v{b}, v{a}, s90"); A(f"v_perm_b32 v{b}, v{b}, v{a}, s91")
            for c in range(4):
                A(f"v_dot2c_f32_bf16 v{ACC+2*c}, v{T[c]}, v{XB+k}")
                A(f"v_dot2c_f32_bf16 v{ACC+2*c+1}, v{Wb+8*k+4+c}, v{XB+k}")
        for i in range(4): A(f"v_permlane32_swap_b32 v{ACC+i}, v{ACC+4+i}")
        for i in range(4): A(f"v_add_f32 v{ACC+i}, v{ACC+i}, v{ACC+4+i}")
        for i in range(2): A(f"v_permlane16_swap_b32 v{ACC+i}, v{ACC+2+i}")
        for i in range(2): A(f"v_add_f32 v{ACC+i}, v{ACC+i}, v{ACC+2+i}")
        for i in range(2): A(f"v_add_f32_dpp v{ACC+i}, v{ACC+i}, v{ACC+i} row_ror:8 {DPPM}")
        for i, t in enumerate((vTa, vTb)): A(f"v_bfi_b32 v{ACC+i}, v{vMK}, v{t}, v{ACC+i}")
    A("s_waitcnt lgkmcnt(0)")
    A("s_add_u32 s52, s52, 0x11111111")
    A("s_lshr_b32 s53, s52, 8"); A("s_lshr_b32 s54, s52, 16"); A("s_lshr_b32 s55, s52, 24")
    A("s_lshr_b32 s100, s52, 4"); A("s_lshr_b32 s101, s52, 12")
    A(f"v_lshrrev_b32 v{vTa}, v{vTb}, s52"); A(f"v_lshrrev_b32 v{vTb}, v{vTb}, s100")
    slice_dot(W, True)
    qpub(ACC, 60)
    stamp(2)
    def anyinv(pairs, t, mask, full=()):
        def chain(ps, a0, a1):
            cur = [a0, a1]
            for k, (r, tg) in enumerate(ps):
                if k < 2: A(f"v_xor_b32 v{cur[k]}, {tg}, v{r}")
                else: A(f"v_bitop3_b32 v{cur[k&1]}, v{cur[k&1]}, v{r}, {tg} bitop3:0xf6")
        pairs = list(pairs)
        if len(pairs) == 1:
            A(f"v_xor_b32 v{t}, {pairs[0][1]}, v{pairs[0][0]}"); A(f"v_and_b32 v{t}, v{mask}, v{t}")
        else:
            chain(pairs, t, t + 1)
            if full: chain([(r, "s52") for r in full], t + 2, t + 3)
            A(f"v_bitop3_b32 v{t}, v{t}, v{t+1}, v{mask} bitop3:0xa8")
            if full: A(f"v_or3_b32 v{t}, v{t}, v{t+2}, v{t+3}")
        A(f"v_cmp_ne_u32 vcc, 0, v{t}")
    def quadB(b, n): return [(b + i, f"s{52 + (i & 3)}") for i in range(n)]
    def quad(b, n): return [(b + i, f"s{(52, 100, 53, 101)[i & 3]}") for i in range(n)]
    def pipe_poll(nsets, issue, nld, check, done, sleep, name):
        lp, lo = L(name), L(name + "o")
        ok = [L(name + "k") for _ in range(nsets)]
        for k in range(nsets - 1):
            issue(k)
            if sleep: A(f"s_sleep {sleep}")
        A(f"{lp}:")
        for k in range(nsets):
            issue((k + nsets - 1) % nsets)
            A(f"s_waitcnt vmcnt({nld*(nsets-1)})")
            check(k)
            A(f"s_cbranch_vccz {ok[k]}")
        A("s_sub_u32 s99, s99, 1"); A(f"s_cbranch_scc0 {lp}"); A("s_branch L_end")
        for k in range(nsets):
            A(f"{ok[k]}:")
            done(k)
            if k < nsets - 1: A(f"s_branch {lo}")
        A(f"{lo}:")
    def masked_poll(issue, check, sleep, name, quads=False, side=None, fast=0, thr=0, nl1=0):
        lp, lo = L(name), L(name + "o")
        def iss():
            for i in range(4):
                A(f"s_mov_b64 exec, s[{4+2*i}:{5+2*i}]")
                issue(i)
            A("s_mov_b64 exec, -1")
        def chk():
            for i in range(4):
                prs = check(i)
                A(f"v_xor_b32 v{T[i]}, {prs[0][1]}, v{prs[0][0]}")
            for k in range(1, 4):
                for i in range(4):
                    r, tg = check(i)[k]
                    A(f"v_bitop3_b32 v{T[i]}, v{T[i]}, v{r}, {tg} bitop3:0xf6")
            for i in range(4): A(f"v_and_b32 v{T[i]}, v{check(i)[4]}, v{T[i]}")
            for k in range(5, len(check(0))):
                for i in range(4): A(f"v_bitop3_b32 v{T[i]}, v{T[i]}, v{check(i)[k]}, s52 bitop3:0xf6")
            if quads:
                for st in ROWSTEPS[:2]:
                    for i in range(4): A(f"v_or_b32_dpp v{T[i]}, v{T[i]}, v{T[i]} {st} {DPPM}")
            for i in range(4): A(f"v_cmp_ne_u32 s[{4+2*i}:{5+2*i}], 0, v{T[i]}")
        for i in range(4): A(f"s_mov_b64 s[{4+2*i}:{5+2*i}], -1")
        if side:
            l2 = L(name + "s")
            loads, nl, npoll, work = side
            iss()
            if loads:
                loads()
                A(f"s_waitcnt vmcnt({nl})")
                chk(); iss()
            A(f"s_waitcnt vmcnt({npoll})")
            work()
            A(f"s_branch {l2}")
        A(f"{lp}:")
        iss()
        if side: A(f"{l2}:")
        A("s_waitcnt vmcnt(0)")
        chk()
        A("s_or_b64 vcc, s[4:5], s[6:7]"); A("s_or_b64 vcc, vcc, s[8:9]"); A("s_or_b64 vcc, vcc, s[10:11]")
        A(f"s_cbranch_scc0 {lo}")
        if fast:
            lf = L(name + "f")
            for i in range(4): A(f"s_bcnt1_i32_b64 s{12+i}, s[{4+2*i}:{5+2*i}]")
            A("s_add_u32 s12, s12, s13"); A("s_add_u32 s14, s14, s15"); A("s_add_u32 s12, s12, s14")
            A(f"s_cmp_le_u32 s12, {thr}"); A(f"s_cbranch_scc1 {lf}")
        if sleep: A(f"s_sleep {sleep}")
        A("s_sub_u32 s99, s99, 1"); A(f"s_cbranch_scc0 {lp}"); A("s_branch L_end")
        if fast:
            l3 = L(name + "g")
            A(f"{lf}:")
            for d in range(fast - 1):
                iss()
                A(f"s_sleep {FGAP}")
            A(f"{l3}:")
            iss()
            A(f"s_waitcnt vmcnt({nl1*(fast-1)})")
            chk()
            A("s_or_b64 vcc, s[4:5], s[6:7]"); A("s_or_b64 vcc, vcc, s[8:9]"); A("s_or_b64 vcc, vcc, s[10:11]")
            A(f"s_cbranch_scc0 {lo}")
            A("s_sub_u32 s99, s99, 1"); A(f"s_cbranch_scc0 {l3}"); A("s_branch L_end")
        A(f"{lo}:")
    def q_issue(k):
        for i in range(4): A(f"buffer_load_dwordx4 v[{W+16*k+4*i}:{W+16*k+4*i+3}], v{vL16}, s[56:59], s93 offen offset:{1024*i} sc1")
    def q_done(kk):
        B = W + 16*kk
        for k in range(0, 4, 2):
            A(f"v_pk_add_f32 {pr(R+k)}, {pr(B+k)}, {pr(B+4+k)}"); A(f"v_pk_add_f32 {pr(R+8+k)}, {pr(B+8+k)}, {pr(B+12+k)}")
    A(f"v_lshlrev_b32 v{vF}, 3, v0")
    A(f"v_mov_b32 v{T[4]}, 1"); A(f"v_mov_b32 v{T[5]}, s52")
    if MQ:
        masked_poll(lambda i: A(f"buffer_load_dwordx4 v[{W+4*i}:{W+4*i+3}], v{vL16}, s[56:59], s93 offen offset:{1024*i} sc1"),
                    lambda i: quad(W + 4*i, 4) + [vMK], slq, "pq", True)
        q_done(0)
    else: pipe_poll(NP, q_issue, 4, lambda k: anyinv(quad(W + 16*k, 16), T[0], vMK), q_done, slq, "pq")
    for k in range(0, 4, 2): A(f"v_pk_add_f32 {pr(R+k)}, {pr(R+k)}, {pr(R+8+k)}")
    A(f"v_cvt_pk_bf16_f32 v{T[0]}, v{R}, v{R+1}"); A(f"v_cvt_pk_bf16_f32 v{T[1]}, v{R+2}, v{R+3}")
    A(f"ds_write_b64 v{vF}, v[{T[0]}:{T[1]}]")
    A(f"ds_write_b64 v{vLF}, v[{T[4]}:{T[5]}]")
    stamp(10)
    stamp(3)
    A("s_setprio 0")
    if noprep:
        for k in range(4, 10): stamp(k)
        A("s_barrier"); A("s_branch L_hend")
    W2 = 168
    srd(36, 12, 4096*448*2); srd(48, 20, 896)
    A(f"v_lshlrev_b32 v{vYv}, 13, v0")
    A(f"v_lshlrev_b32 v{vL4}, 2, v0")
    A("s_lshl_b32 s62, s2, 12"); A(f"s_add_u32 s86, s62, {YS}"); A(f"s_add_u32 s87, s62, {OS}")
    A("s_lshr_b32 s61, s27, 2")
    A("s_lshl_b32 s62, s26, 2"); A("s_and_b32 s63, s27, 3"); A("s_add_u32 s62, s62, s63")
    A(f"s_mul_i32 s44, s61, {112*3584}"); A("s_lshl_b32 s63, s62, 7"); A("s_add_u32 s44, s44, s63")
    A("s_mul_i32 s45, s61, 7168"); A("s_lshl_b32 s63, s62, 8"); A("s_add_u32 s45, s45, s63"); A(f"s_add_u32 s45, s45, {HS}")
    A("s_sub_u32 s62, s26, 7")
    A(f"s_mul_i32 s60, s27, {112*896}"); A("s_lshl_b32 s63, s62, 7"); A("s_add_u32 s60, s60, s63")
    A("s_mul_i32 s61, s27, 1792"); A("s_lshl_b32 s63, s62, 8"); A("s_add_u32 s61, s61, s63"); A(f"s_add_u32 s61, s61, {ZS}")
    A("s_cmp_lt_u32 s2, 112")
    A("s_cselect_b32 s40, s16, s18"); A("s_cselect_b32 s41, s17, s19")
    A("s_cselect_b32 s44, s44, s60"); A("s_cselect_b32 s45, s45, s61")
    A("s_movk_i32 s46, 896"); A("s_cselect_b32 s46, 3584, s46")
    NR = 0 if skip & 4 else 224
    A(f"s_cmp_lt_u32 s2, {NR}")
    A(f"s_cselect_b32 s42, {448*1792*2}, 0"); A("s_mov_b32 s43, 0x20000")
    A("s_cselect_b32 s45, s45, 0x80000000")
    A(f"v_lshrrev_b32 v{T[0]}, 3, v0"); A(f"v_mul_u32_u24 v{T[1]}, 14, v{T[0]}"); A(f"v_mul_u32_u24 v{T[2]}, s46, v{T[1]}")
    A(f"v_and_b32 v{T[3]}, 7, v0"); A(f"v_lshl_add_u32 v{T[2]}, v{T[3]}, 4, v{T[2]}")
    for i in range(14):
        A(f"buffer_load_dwordx4 v[{W2+4*i}:{W2+4*i+3}], v{T[2]}, s[40:43], s44 offen{WNT}")
        if i < 13: A("s_add_u32 s44, s44, s46")
    if skip & 8: A("s_mov_b32 s38, 0")
    def wo_loads():
        A(f"s_mul_i32 s60, s2, {16*896}")
        A("s_mov_b32 exec_hi, 0x00ffffff")
        for r in range(16):
            A(f"buffer_load_dwordx4 v[{W+4*r}:{W+4*r+3}], v{vL16}, s[36:39], s60 offen offset:{(r%4)*896}{WNT}")
            if r % 4 == 3 and r < 15: A(f"s_add_u32 s60, s60, {4*896}")
        A("s_mov_b32 exec_hi, -1")
    def wo_perm():
        for k in range(8):
            for c in range(4):
                a, b = W + 8*k + c, W + 8*k + 4 + c
                A(f"v_perm_b32 v{T[6]}, v{b}, v{a}, s90"); A(f"v_perm_b32 v{b}, v{b}, v{a}, s91"); A(f"v_mov_b32 v{a}, v{T[6]}")
    if not WOL: wo_loads()
    A("s_lshl_b32 s96, s2, 4"); A(f"s_add_u32 s97, s96, {YS+4096}"); A(f"s_add_u32 s96, s96, {YS}")
    for i in range(8): A(f"v_mov_b32 v{ACC+i}, 0")
    A("s_waitcnt vmcnt(0)")
    if not WOL: wo_perm()
    A(f"v_lshlrev_b32 v{T[6]}, 1, v{T[1]}")
    def spin_or_end(lp, sleep):
        if sleep: A(f"s_sleep {sleep}")
        A("s_sub_u32 s99, s99, 1"); A(f"s_cbranch_scc0 {lp}"); A("s_branch L_end")
    SP = 4
    def row_dot():
        for k in range(8):
            for c in range(4):
                cc = ["0", "0"] if k == 0 else [f"v{ACC+2*c}", f"v{ACC+2*c+1}"]
                A(f"v_dot2_f32_bf16 v{ACC+2*c}, v{W+8*k+c}, s{SP+k}, {cc[0]}")
                A(f"v_dot2_f32_bf16 v{ACC+2*c+1}, v{W+8*k+4+c}, s{SP+k}, {cc[1]}")
        for i in range(8): A(f"v_bfi_b32 v{ACC+i}, v{vMKY}, s{52+(i&3)}, v{ACC+i}")
    def silu(regs, tmps):
        A(f"s_mov_b32 s62, {f2u(-LOG2E)}")
        for r, t in zip(regs, tmps): A(f"v_mul_f32 v{t}, s62, v{r}")
        for r, t in zip(regs, tmps): A(f"v_exp_f32 v{t}, v{t}")
        for r, t in zip(regs, tmps): A(f"v_add_f32 v{t}, 1.0, v{t}")
        for r, t in zip(regs, tmps): A(f"v_rcp_f32 v{t}, v{t}")
        for r, t in zip(regs, tmps): A(f"v_mul_f32 v{r}, v{r}, v{t}")
    vG, vXo = 8, 9
    def reduce4(a):
        A(f"v_permlane32_swap_b32 v{a}, v{a+2}"); A(f"v_permlane32_swap_b32 v{a+1}, v{a+3}")
        A(f"v_add_f32 v{a}, v{a}, v{a+2}"); A(f"v_add_f32 v{a+1}, v{a+1}, v{a+3}")
        A(f"v_permlane16_swap_b32 v{a}, v{a+1}")
        A(f"v_add_f32 v{a}, v{a}, v{a+1}")
    lz3, lr1 = L("noz"), L("r1")
    A(f"v_lshlrev_b32 v{T[4]}, 1, v3")
    A("s_lshl_b32 s89, s2, 3")
    A(f"s_cmp_ge_u32 s2, {NR}"); A(f"s_cbranch_scc1 {lz3}")
    A("s_cmp_lt_u32 s2, 112"); A(f"s_cbranch_scc1 {lr1}")
    A("s_mul_i32 s62, s27, 448"); A(f"s_add_u32 s62, s62, {HS}"); A("s_add_u32 s63, s62, 14336")
    A(f"v_min_u32 v{T[5]}, 55, v0"); A(f"v_lshlrev_b32 v{T[5]}, 3, v{T[5]}"); A(f"v_add_u32 v{T[7]}, 7168, v{T[5]}")
    A(f"v_and_b32 v{vF0}, 8, v{T[5]}")
    A(f"v_lshrrev_b32 v{vF}, v{vF0}, s100"); A(f"v_lshrrev_b32 v{vF0}, v{vF0}, s52")
    lp, lo = L("ph"), L("pho")
    A(f"{lp}:")
    A(f"buffer_load_dwordx2 v[{R}:{R+1}], v{T[5]}, s[56:59], s62 offen sc1")
    A(f"buffer_load_dwordx2 v[{R+2}:{R+3}], v{T[7]}, s[56:59], s62 offen sc1")
    A(f"buffer_load_dwordx2 v[{R+4}:{R+5}], v{T[5]}, s[56:59], s63 offen sc1")
    A(f"buffer_load_dwordx2 v[{R+6}:{R+7}], v{T[7]}, s[56:59], s63 offen sc1")
    A("s_waitcnt vmcnt(0)")
    anyinv([(R + i, f"v{vF if i & 1 else vF0}") for i in range(8)], T[0], vMK)
    A(f"s_cbranch_vccz {lo}")
    spin_or_end(lp, sl2)
    A(f"{lo}:")
    A(f"v_pk_add_f32 {pr(R)}, {pr(R)}, {pr(R+2)}"); A(f"v_pk_add_f32 {pr(R+4)}, {pr(R+4)}, {pr(R+6)}")
    A(f"v_pk_add_f32 {pr(R)}, {pr(R)}, {pr(R+4)}")
    rnd(R); rnd(R+1)
    silu([R, R+1], T[:2])
    A(f"v_cvt_pk_bf16_f32 v{R}, v{R}, v{R+1}")
    for k in range(7): A(f"ds_bpermute_b32 v{XB+k}, v{T[6]}, v{R} offset:{4*k}")
    A(f"v_and_b32 v{vTb}, 1, v3"); A(f"v_lshlrev_b32 v{vTb}, 4, v{vTb}"); A(f"v_mov_b32 v{vMK}, 0xff")
    A(f"v_lshrrev_b32 v{vTa}, v{vTb}, s52"); A(f"v_lshrrev_b32 v{vTb}, v{vTb}, s53")
    A("s_waitcnt lgkmcnt(0)")
    A(f"{lr1}:")
    slice_dot(W2, False)
    qpub(ACC, 45)
    A(f"v_mov_b32 v{vMK}, 0xff")
    A("s_cmp_ge_u32 s2, 112"); A(f"s_cbranch_scc1 {lz3}")
    A(f"buffer_load_ushort v{vXo}, v{T[4]}, s[28:31], s89 offen")
    A(f"v_mul_u32_u24 v{T[5]}, 1792, v4"); A(f"v_lshl_add_u32 v{T[5]}, v3, 2, v{T[5]}")
    A("s_lshl_b32 s62, s2, 4"); A(f"s_add_u32 s62, s62, {ZS}")
    A(f"v_lshlrev_b32 v{vF0}, 3, v3"); A(f"v_lshrrev_b32 v{vF0}, v{vF0}, s52")
    lp, lo = L("pz"), L("pzo")
    A(f"s_sleep {sl1}")
    A(f"{lp}:")
    A(f"buffer_load_dword v{R}, v{T[5]}, s[56:59], s62 offen sc1")
    A("s_waitcnt vmcnt(0)")
    anyinv([(R, f"v{vF0}")], T[0], vMK)
    A(f"s_cbranch_vccz {lo}")
    spin_or_end(lp, sl1)
    A(f"{lo}:")
    A("s_movk_i32 s62, 0x80"); A(f"v_bfi_b32 v{R}, v{vMK}, s62, v{R}")
    row_reduce([R])
    rnd(R); silu([R], [T[0]]); rnd(R)
    A(f"v_mov_b32 v{vG}, v{R}")
    A(f"v_lshlrev_b32 v{vXo}, 16, v{vXo}")
    A(f"{lz3}:")
    A(f"v_mov_b32 v{vMK}, 15")
    if SRV:
        assert 2048 - 16*S + 16 <= 768
        lp, lo = L("sv"), L("svo")
        A("s_mov_b32 s60, 0")
        A("s_lshl_b32 s61, s26, 14"); A(f"s_add_u32 s61, s61, {TK}")
        A("s_lshl_b32 s47, s26, 11"); A(f"s_add_u32 s47, s47, {S if PM else 16*S}")
        A(f"s_mov_b32 s92, {2048-16*S}")
        A(f"{lp}:")
        A(f"ds_read_b32 v{T[0]}, v{vLF} offset:{LCNT-512}")
        A("s_waitcnt lgkmcnt(0)")
        A(f"v_readfirstlane_b32 s62, v{T[0]}")
        if sls0:
            lz = L("svz")
            A("s_cmp_lg_u32 s62, 0"); A(f"s_cbranch_scc1 {lz}"); A("s_cmp_eq_u32 s60, 0"); A(f"s_cbranch_scc1 {lz}")
            A(f"s_sleep {sls0}")
            A(f"{lz}:")
        A("s_lshr_b32 s62, s62, 2"); A(f"s_add_u32 s62, s62, {AH}")
        A("s_sub_i32 s62, s62, s60"); A("s_min_i32 s62, s62, 8")
        A(f"s_cmp_gt_i32 s62, 0"); A(f"s_cbranch_scc1 {lo}")
        spin_or_end(lp, sls)
        A(f"{lo}:")
        A("s_mov_b32 s63, s62"); A("s_atomic_add s63, s[24:25], s61 glc")
        A(f"v_add_u32 v{T[1]}, s60, v0"); A(f"v_lshlrev_b32 v{T[1]}, 2, v{T[1]}")
        A("s_add_u32 s60, s60, s62")
        A("s_bfm_b64 s[4:5], s62, 0")
        A(f"v_bfrev_b32 v{T[3]}, 1")
        A("s_waitcnt lgkmcnt(0)")
        A(f"v_add_u32 v{T[0]}, s63, v0")
        if PM:
            A(f"v_and_b32 v{T[2]}, 15, v{T[0]}"); A(f"v_lshrrev_b32 v{T[5]}, 4, v{T[0]}"); A(f"v_lshl_add_u32 v{T[2]}, v{T[2]}, 7, v{T[5]}")
            A(f"v_add_u32 v{T[2]}, s47, v{T[2]}")
        else: A(f"v_add_u32 v{T[2]}, s47, v{T[0]}")
        A(f"v_lshlrev_b32 v{T[2]}, 14, v{T[2]}")
        A(f"v_cmp_gt_u32 vcc, s92, v{T[0]}")
        A(f"v_cndmask_b32 v{T[2]}, v{T[3]}, v{T[2]}, vcc")
        A("s_mov_b64 exec, s[4:5]")
        A(f"ds_write_b32 v{T[1]}, v{T[2]} offset:{LROWS}")
        A("s_mov_b64 exec, -1")
        A("s_add_u32 s63, s63, s62"); A("s_cmp_le_u32 s63, s92"); A(f"s_cbranch_scc1 {lp}")
    A("s_mov_b32 s62, s87")
    A("s_lshl_b32 s63, s26, 10"); A(f"s_add_u32 s63, s63, {ML}")
    A(f"v_lshrrev_b32 v{T[5]}, 2, v0"); A(f"v_lshlrev_b32 v{T[5]}, 4, v{T[5]}")
    A(f"s_mov_b32 s61, {CSC}")
    if OT:
        A("s_lshl_b32 s16, s26, 16"); A("s_lshl_b32 s17, s27, 6"); A("s_add_u32 s16, s16, s17"); A(f"s_add_u32 s16, s16, {OS}")
        for i in range(1, 4): A(f"s_add_u32 s{16+i}, s16, {16384*i}")
        A("v_lshrrev_b32 v20, 2, v0"); A("v_and_b32 v21, 3, v0"); A("v_lshlrev_b32 v20, 10, v20"); A("v_lshl_add_u32 v20, v21, 4, v20")
    if MT:
        A("s_lshl_b32 s63, s26, 13"); A(f"s_add_u32 s63, s63, {0x280000}"); A("s_add_u32 s47, s63, 4096")
        A(f"v_lshlrev_b32 v{T[5]}, 3, v{T[5]}")
    if YT:
        A("s_and_b32 s12, s2, 1"); A("s_lshl_b32 s12, s12, 10"); A("s_lshr_b32 s13, s2, 1"); A("s_lshl_b32 s13, s13, 4")
        A("s_add_u32 s12, s12, s13"); A(f"s_add_u32 s12, s12, {YS}")
        for i in range(1, 4): A(f"s_add_u32 s{12+i}, s12, {131072*i}")
        A("v_lshlrev_b32 v21, 11, v0")
        A(f"s_lshl_b32 s96, s2, 11"); A(f"s_add_u32 s96, s96, {YS}"); A("s_add_u32 s97, s96, 1024")
        A(f"v_mov_b32 v{vYv}, v{vL16}")
    if WARM & 1:
        for i in range(4): A(f"buffer_load_dword v{R+i}, v{vL16}, s[56:59], s62 offen offset:{1024*i} {WF}")
        A(f"buffer_load_dword v{R+4}, v{vL16}, s[56:59], s63 offen {WF}")
        A("s_cmp_lt_u32 s2, 112"); A("s_cselect_b32 s60, s86, 0x80000000")
        for i in range(4): A(f"buffer_load_dword v{R+8+i}, v{vL16}, s[56:59], s60 offen offset:{1024*i} {WF}")
    if WARM & 8:
        lw = L("w")
        A("s_add_u32 s6, s24, s87"); A("s_addc_u32 s7, s25, 0")
        for i in range(32): A(f"s_load_dword s4, s[6:7], {128*i}")
        A("s_lshl_b32 s60, s27, 6"); A("s_add_u32 s60, s60, s63")
        A("s_load_dword s4, s[24:25], s60")
        A("s_cmp_ge_u32 s2, 112"); A(f"s_cbranch_scc1 {lw}")
        A("s_add_u32 s6, s24, s86"); A("s_addc_u32 s7, s25, 0")
        for i in range(32): A(f"s_load_dword s4, s[6:7], {128*i}")
        A(f"{lw}:")
        A("s_waitcnt lgkmcnt(0)")
    if TRIG:
        lp, lo = L("tw"), L("two")
        A(f"{lp}:")
        A(f"ds_read_b32 v{T[0]}, v{vLF} offset:{LCNT-512}")
        A("s_waitcnt lgkmcnt(0)")
        A(f"v_cmp_eq_u32 vcc, 0, v{T[0]}" if TN == 1 else f"v_cmp_ge_u32 vcc, {64*(TN-1)}, v{T[0]}")
        A(f"s_cbranch_vccz {lo}")
        spin_or_end(lp, slw)
        A(f"{lo}:")
        wo_loads()
        if TRIG != 3:
            A("s_waitcnt vmcnt(0)")
            wo_perm()
    A("s_setprio 3")
    stamp(4)
    A("s_barrier")
    stamp(5)
    PSET = [R, W2]
    def o_issue(k):
        B = PSET[k]
        for i in range(4): A(f"buffer_load_dwordx4 v[{B+16+4*i}:{B+16+4*i+3}], v{T[5]}, s[56:59], s63 offen offset:{256*i} {LDS_}")
        for i in range(4): A(f"buffer_load_dwordx4 v[{B+4*i}:{B+4*i+3}], v{vL16}, s[56:59], s62 offen offset:{1024*i} {LDS_}")
    GSTEPS = ["row_ror:4", "row_ror:8"]
    mx, tt, ls = T[0], T[1], T[2]
    def o_done(kk):
        B = PSET[kk]; MLr = B + 16
        E = [MLr + 4*i for i in range(4)] if not FPO else [16, 17, 18, 19]
        A(f"v_max3_f32 v{mx}, v{MLr}, v{MLr+4}, v{MLr+8}"); A(f"v_max_f32 v{mx}, v{mx}, v{MLr+12}")
        row_reduce([mx], "v_max_f32", GSTEPS); xrow_allreduce([(mx, tt)], "v_max_f32")
        A(f"v_mul_f32 v{mx}, s61, v{mx}")
        for i in range(4): A(f"v_fma_f32 v{E[i]}, v{MLr+4*i}, s61, -v{mx}")
        for i in range(4): A(f"v_exp_f32 v{E[i]}, v{E[i]}")
        A(f"v_mul_f32 v{ls}, v{E[0]}, v{MLr+1}")
        for k in range(4): A(f"v_mul_f32 v{O+k}, v{E[0]}, v{B+k}")
        for i in range(1, 4):
            A(f"v_fmac_f32 v{ls}, v{E[i]}, v{MLr+4*i+1}")
            for k in range(4): A(f"v_fmac_f32 v{O+k}, v{E[i]}, v{B+4*i+k}")
    O = 12
    def o_issue1(i):
        if MT: A(f"buffer_load_dwordx4 v[{R+16+4*i}:{R+16+4*i+3}], v{T[5]}, s[56:59], s{63 if i < 2 else 47} offen offset:{2048*(i&1)} {LDS_}")
        else: A(f"buffer_load_dwordx4 v[{R+16+4*i}:{R+16+4*i+3}], v{T[5]}, s[56:59], s63 offen offset:{256*i} {LDS_}")
        if OT: A(f"buffer_load_dwordx4 v[{R+4*i}:{R+4*i+3}], v20, s[56:59], s{16+i} offen {LDS_}")
        else: A(f"buffer_load_dwordx4 v[{R+4*i}:{R+4*i+3}], v{vL16}, s[56:59], s62 offen offset:{1024*i} {LDS_}")
    if MO:
        masked_poll(o_issue1, lambda i: quad(R + 4*i, 4) + [vMK, R + 16 + 4*i + 2, R + 16 + 4*i + 3], slt, "po", True, (None, 0, 8, wo_perm) if TRIG == 3 else (wo_loads, 16, 8, wo_perm) if WOL and not TRIG else None, FPO, THO, 8)
        o_done(0)
    else: pipe_poll(NPT, o_issue, 8, lambda k: anyinv(quad(PSET[k], 16), T[0], vMK, [PSET[k] + 16 + 4*i + kk for i in range(4) for kk in (2, 3)]), o_done, slt, "po")
    stamp(6)
    Rs, R = R, O
    A(f"v_permlane32_swap_b32 v{R}, v{R+2}"); A(f"v_permlane32_swap_b32 v{R+1}, v{R+3}")
    A(f"v_add_f32_dpp v{ls}, v{ls}, v{ls} row_ror:4 {DPPM}")
    A(f"v_add_f32 v{R}, v{R}, v{R+2}"); A(f"v_add_f32 v{R+1}, v{R+1}, v{R+3}")
    A(f"v_add_f32_dpp v{ls}, v{ls}, v{ls} row_ror:8 {DPPM}")
    A(f"v_permlane16_swap_b32 v{R}, v{R+1}")
    A(f"v_mov_b32 v{tt}, v{ls}")
    A(f"v_add_f32 v{R}, v{R}, v{R+1}")
    A(f"v_permlane16_swap_b32 v{ls}, v{tt}")
    A(f"v_add_f32_dpp v{R}, v{R}, v{R} row_ror:4 {DPPM}")
    A(f"v_add_f32 v{ls}, v{ls}, v{tt}")
    A(f"v_mov_b32 v{tt}, v{ls}")
    A(f"v_add_f32_dpp v{R}, v{R}, v{R} row_ror:8 {DPPM}")
    A(f"v_permlane32_swap_b32 v{ls}, v{tt}")
    A(f"v_add_f32 v{ls}, v{ls}, v{tt}")
    A(f"v_rcp_f32 v{ls}, v{ls}")
    A(f"v_mul_f32 v{R}, v{R}, v{ls}")
    A(f"v_mov_b32 v{R+1}, v{R}")
    A(f"v_permlane16_swap_b32 v{R}, v{R+1}")
    A(f"v_cvt_pk_bf16_f32 v{R}, v{R}, v{R+1}")
    for t in range(4):
        A(f"v_readlane_b32 s{SP+2*t}, v{R}, {t}"); A(f"v_readlane_b32 s{SP+2*t+1}, v{R}, {32+t}")
    row_dot()
    A("s_mov_b32 exec_hi, 0x00ffffff")
    A(f"buffer_store_dwordx4 v[{ACC}:{ACC+3}], v{vYv}, s[56:59], s96 offen {STS}")
    A(f"buffer_store_dwordx4 v[{ACC+4}:{ACC+7}], v{vYv}, s[56:59], s97 offen {STS}")
    A("s_mov_b64 exec, -1")
    stamp(7)
    A("s_cmp_ge_u32 s2, 112"); A("s_cbranch_scc1 L_hend")
    YSET = [W, W + 16, W + 32, W + 48]
    def y_issue(k):
        for i in range(4): A(f"buffer_load_dwordx4 v[{YSET[k]+4*i}:{YSET[k]+4*i+3}], v{vL16}, s[56:59], s86 offen offset:{1024*i} {LDS_}")
    R = ACC + 4
    def y_done(kk):
        B = YSET[kk]; D = B + 16 if FPY else B
        A("s_movk_i32 s62, 0x200")
        for k in range(16): A(f"v_bfi_b32 v{D+k}, v{vMKY}, s62, v{B+k}")
        for k in range(4): A(f"v_add_f32 v{R+k}, v{D+k}, v{D+4+k}"); A(f"v_add_f32 v{R+8+k}, v{D+8+k}, v{D+12+k}")
    if MY:
        masked_poll(lambda i: A(f"buffer_load_dwordx4 v[{W+4*i}:{W+4*i+3}], v21, s[56:59], s{12+i} offen {LDS_}" if YT else f"buffer_load_dwordx4 v[{W+4*i}:{W+4*i+3}], v{vL16}, s[56:59], s86 offen offset:{1024*i} {LDS_}"),
                    lambda i: quadB(W + 4*i, 4) + [vMKY], sly, "py", False, None, FPY, THY, 4)
        y_done(0)
    else: pipe_poll(NPY, y_issue, 4, lambda k: anyinv(quadB(YSET[k], 16), T[0], vMKY), y_done, sly, "py")
    stamp(8)
    for k in range(4): A(f"v_add_f32 v{R+k}, v{R+k}, v{R+8+k}")
    reduce4(R); row_reduce([R])
    rnd(R)
    A(f"v_mul_f32 v{R}, v{R}, v{vG}"); rnd(R)
    A(f"v_add_f32 v{R}, v{R}, v{vXo}")
    A(f"v_cvt_pk_bf16_f32 v{R}, v{R}, v{R}")
    if probe:
        A("s_getreg_b32 s62, hwreg(HW_REG_XCC_ID)"); A("s_and_b32 s62, s62, 7"); A("s_and_b32 s63, s2, 7")
        A("s_cmp_eq_u32 s62, s63"); A("s_cbranch_scc1 L_pr1")
        A("s_movk_i32 s62, 20")
        A("L_pr0:"); A("s_sleep 100"); A("s_sub_u32 s62, s62, 1"); A("s_cbranch_scc0 L_pr0")
        A("L_pr1:")
    A("s_mov_b32 exec_lo, 0x00010001"); A("s_mov_b32 exec_hi, 0x00010001")
    A(f"buffer_store_short v{R}, v{T[4]}, s[48:51], s89 offen {OF}")
    A("s_cmp_eq_u32 s2, 0"); A(f"s_mov_b32 s62, {EP}"); A("s_cselect_b32 s62, s62, 0x80000000"); A(f"v_mov_b32 v{T[0]}, s52")
    A("s_mov_b64 exec, 1")
    A(f"buffer_store_dword v{T[0]}, off, s[56:59], s62 {OF}")
    A("L_hend:")
    stamp(9)
    dump_stamps(11)
    A("L_end:")
    A("s_endpgm")
    body = A.finish()
    nv = NV
    out = HEADER + "; @launch grid=(256,1,1) block=(%d,1,1) lds=%d\n" % (512 if XW else 320, 9216 if SEP else 4096 if SRV else 1024) + body
    out += f""".section .rodata,"a"
.p2align 6
.amdhsa_kernel {KN}
  .amdhsa_next_free_vgpr {nv}
  .amdhsa_next_free_sgpr 102
  .amdhsa_accum_offset {nv}
  .amdhsa_group_segment_fixed_size 0
  .amdhsa_kernarg_size 88
  .amdhsa_user_sgpr_count 2
  .amdhsa_user_sgpr_kernarg_segment_ptr 1
  .amdhsa_system_sgpr_workgroup_id_x 1
  .amdhsa_float_denorm_mode_32 3
.end_amdhsa_kernel
"""
    return out

if __name__ == "__main__":
    import json
    kw = json.loads(sys.argv[2]) if len(sys.argv) > 2 else {}
    open(sys.argv[1], "w").write(gen(**kw))
```

```python
import sys, math, struct
from asmlib import Asm
KN = "recurrent_scan__mha_block_cached__dense_activation_silu__decode_kernel"

QS, ML, HS, ZS, EP, OS, YS, TK, DG = 0x0, 0x10000, 0x20000, 0x28000, 0x38000, 0x100000, 0x80000, 0x40000, 0x380000
WS_BYTES = 0x400000
def f2u(x): return struct.unpack("<I", struct.pack("<f", x))[0]
LOG2E = 1.4426950408889634
CSC = f2u(LOG2E / 16.0)

HEADER = """; Kernarg layout for this problem (88 bytes, ptrs only, base s[0:1]):
"""

def gen(S=114, C=1, NB=4, INF=8, LEAD=4, TKW=1, diag=0, spin=200000, codepf=1, noprep=0, skip=0, wnt=1, hfirst=0, sl1=64, sl2=32, early=1, NP=2, slq=16, NPT=1, slt=0, NPY=1, sly=0, MQ=0, MO=1, MY=1, PAIR=0, PL=8, PORD=0, SRV=0, AH=2, sls=8, PM=1, sls0=0, WARM=0, LAY=0, WF='sc1', OF='sc1', FW=8, WOL=1, TRIG=1, probe=0, slw=8, LDS_='sc1', STS='sc1', BT=0, XW=0, XD=0, XF=' nt', XI=8, XS=0, FPO=0, FPY=0, THO=16, THY=8, FGAP=2, OT=0, YT=0, MT=0, TN=1, KF='nt', SEP=0, CT=0, KP=0):
    A = Asm()
    global YS, TK
    YS, TK = (0x80000, 0x40000) if LAY else (0x200000, 0x300000)
    NT = 8192
    NV = 232
    WNT = ' nt' if wnt else ''
    lab = [0]
    def L(p):
        lab[0] += 1; return f"L_{p}{lab[0]}"
    nst = [0]
    def stamp(k):
        if diag: A(f"s_memrealtime s[{64+2*k}:{65+2*k}]")
    def dump_stamps(n):
        if not diag: return
        A("s_waitcnt vmcnt(0) lgkmcnt(0)")
        A("s_mov_b64 exec, -1")
        A("v_mov_b32 v40, 0")
        for k in range(n): A(f"v_writelane_b32 v40, s{64+2*k}, {k}")
        A("s_getreg_b32 s62, hwreg(HW_REG_XCC_ID)"); A("v_writelane_b32 v40, s62, 15"); A("v_writelane_b32 v40, s61, 14")
        A("s_mul_i32 s62, s2, 5"); A("s_add_u32 s62, s62, s3"); A("s_lshl_b32 s62, s62, 6"); A(f"s_add_u32 s62, s62, {DG}")
        A("v_lshlrev_b32 v41, 2, v0")
        A("s_mov_b64 exec, 0xffff")
        A("buffer_store_dword v40, v41, s[56:59], s62 offen")
        if diag == 2 and n == 6:
            A("s_mov_b64 exec, -1")
            A("s_lshl_b32 s62, s2, 2"); A("s_add_u32 s62, s62, s3"); A("s_lshl_b32 s62, s62, 8"); A(f"s_add_u32 s62, s62, {DG+0x20000}")
            A(f"buffer_store_dword v{NV-2}, v41, s[56:59], s62 offen")
    DPPM = "row_mask:0xf bank_mask:0xf"
    ROWSTEPS = ["quad_perm:[1,0,3,2]", "quad_perm:[2,3,0,1]", "row_half_mirror", "row_mirror"]
    def row_reduce(regs, op="v_add_f32", steps=ROWSTEPS):
        for st in steps:
            for r in regs: A(f"{op}_dpp v{r}, v{r}, v{r} {st} {DPPM}")
    def xrow_allreduce(pairs, op="v_add_f32"):
        for sw in ("v_permlane16_swap_b32", "v_permlane32_swap_b32"):
            for r, t in pairs: A(f"v_mov_b32 v{t}, v{r}")
            for r, t in pairs: A(f"{sw} v{r}, v{t}")
            for r, t in pairs: A(f"{op} v{r}, v{r}, v{t}")
    def rnd(r):
        A(f"v_cvt_pk_bf16_f32 v{r}, v{r}, v{r}"); A(f"v_and_b32 v{r}, 0xffff0000, v{r}")
    def srd(b, p, n):
        A(f"s_mov_b32 s{b}, s{p}"); A(f"s_mov_b32 s{b+1}, s{p+1}"); A(f"s_mov_b32 s{b+2}, {n}"); A(f"s_mov_b32 s{b+3}, 0x20000")

    vJ = NV - 1
    A(f".amdgcn_target \"amdgcn-amd-amdhsa--gfx950\"")
    A(".text"); A(f".globl {KN}"); A(".p2align 8"); A(f".type {KN},@function"); A(f"{KN}:")
    A("s_cmp_ge_u32 s2, 256"); A("s_cbranch_scc1 L_end")
    A("s_load_dwordx16 s[4:19], s[0:1], 0")
    A("s_load_dwordx4 s[20:23], s[0:1], 64")
    A("s_load_dwordx2 s[24:25], s[0:1], 80")
    if codepf:
        A("s_getpc_b64 s[94:95]")
        A("L_pc:")
        A("v_lshlrev_b32 v2, 6, v0"); A("v_min_u32 v2, L_end-L_pc, v2")
        A(f"global_load_dword v{vJ}, v2, s[94:95]")
    stamp(0)
    A("v_lshrrev_b32 v1, 6, v0"); A("v_and_b32 v0, 63, v0")
    A("v_readfirstlane_b32 s3, v1")
    A("s_lshr_b32 s26, s2, 4"); A("s_and_b32 s27, s2, 15")
    A("v_lshrrev_b32 v3, 4, v0"); A("v_and_b32 v4, 15, v0")
    A("s_cmp_eq_u32 s3, 4"); A("s_cbranch_scc1 L_helper")
    if XW: A("s_cmp_gt_u32 s3, 4"); A("s_cbranch_scc1 L_xw")

    sHB, sCUR, sLEFT, sTK, sTKO, sDYN, sT, sC = 40, 41, 42, 43, 44, 45, 46, 47
    sOFF = [48, 49]; sBO, sSTR, sNB = 50, 51, 60
    vM, vNM, vL, vA, vB, vT, vU1, vU2, vU3 = 3, 4, 5, 6, 7, 8, 9, 10, 11
    vQ, vACC, vBUF = 12, 20, 36
    nA = (LEAD + 1) // 2
    if FW: nA = 1 if FW == 8 else 2; LEAD = 0
    A("v_lshlrev_b32 v1, 9, v3"); A("v_lshl_add_u32 v1, v4, 4, v1")
    A(f"s_lshl_b32 s{sHB}, s26, 25")
    sPT, sMODE, sTKP = 36, 37, 38
    NPAIR, NPOOL = 256 - PL - 2*S, 8*PL
    if PAIR:
        assert LEAD == 4 and NPAIR >= 0
        A("s_lshl_b32 s62, s3, 12"); A(f"s_add_u32 s{sHB}, s{sHB}, s62")
        A(f"s_lshr_b32 s{sT}, s27, 1"); A(f"s_lshl_b32 s{sT}, s{sT}, 22"); A(f"s_add_u32 s{sOFF[0]}, s{sT}, s{sHB}")
        A("s_bitcmp1_b32 s27, 0")
        A(f"s_mov_b32 s{sT}, {(PL//2)*16384}"); A(f"s_cselect_b32 s{sT}, {(255-PL//2)*16384}, s{sT}")
        A(f"s_movk_i32 s{sSTR}, 16384"); A(f"s_cselect_b32 s{sSTR}, -16384, s{sSTR}")
        A(f"s_add_u32 s{sOFF[0]}, s{sOFF[0]}, s{sT}")
        A(f"s_add_u32 s{sOFF[1]}, s{sOFF[0]}, s{sSTR}")
        A(f"s_add_u32 s{sBO}, s{sOFF[1]}, s{sSTR}")
    else:
        A(f"s_mul_i32 s{sCUR}, s27, {4*(128 if PM else S)}"); A(f"s_add_u32 s{sCUR}, s{sCUR}, s3")
        A(f"s_lshl_b32 s{sT}, s{sCUR}, 12"); A(f"s_add_u32 s{sOFF[0]}, s{sT}, s{sHB}")
        D2 = 4096 if CT else 16384
        if CT: A(f"s_lshl_b32 s{sT}, s3, 12"); A(f"s_add_u32 s{sOFF[0]}, s{sOFF[0]}, s{sT}")
        A(f"s_add_u32 s{sOFF[1]}, s{sOFF[0]}, {D2}")
        A(f"s_add_u32 s{sBO}, s{sOFF[0]}, {(2 if SEP else nA)*4*4096}")
        if SEP: A(f"s_add_u32 s39, s{sOFF[0]}, {32768+D2}"); A(f"s_mov_b32 s36, s{sOFF[0]}")
    A("s_waitcnt lgkmcnt(0)")
    srd(28, 6, 1 << 29); srd(32, 8, 1 << 29)
    if hfirst: A("s_barrier")
    IOFF = [0, 256, 2048, 2304]
    def kv(st, isv, i): return vBUF + st*32 + isv*16 + i*4
    def load(st, isv, i, so=None):
        b = kv(st, isv, i)
        if so is None: so = sOFF[st]
        A(f"buffer_load_dwordx4 v[{b}:{b+3}], v1, s[{28+4*isv}:{31+4*isv}], s{so} offen offset:{IOFF[i]} {KF}")
    def pub_voff(dst, t1, t2):
        A(f"v_lshrrev_b32 v{t1}, 1, v3"); A(f"v_lshlrev_b32 v{t1}, 3, v{t1}"); A(f"v_lshrrev_b32 v{t2}, 1, v4"); A(f"v_add_u32 v{t1}, v{t1}, v{t2}")
        A(f"v_lshlrev_b32 v{dst}, {6 if OT else 12}, v{t1}")
        A(f"v_and_b32 v{t1}, 1, v4"); A(f"v_lshlrev_b32 v{t1}, 5, v{t1}"); A(f"v_and_b32 v{t2}, 1, v3"); A(f"v_lshlrev_b32 v{t2}, 4, v{t2}")
        A(f"v_or3_b32 v{dst}, v{dst}, v{t1}, v{t2}")
    def setup():
        stamp(1)
        srd(56, 24, WS_BYTES)
        pub_voff(2, 6, 7)
        A("s_lshl_b32 s54, s27, 2"); A("s_add_u32 s54, s54, s3")
        A("s_lshl_b32 s52, s26, 16"); A(f"s_lshl_b32 s55, s54, {10 if OT else 6}"); A("s_add_u32 s52, s52, s55"); A(f"s_add_u32 s52, s52, {OS}")
        if MT: A("s_lshl_b32 s53, s26, 13"); A("s_lshl_b32 s55, s54, 7"); A("s_add_u32 s53, s53, s55"); A(f"s_add_u32 s53, s53, {0x280000}")
        else: A("s_lshl_b32 s53, s26, 10"); A("s_lshl_b32 s55, s54, 4"); A("s_add_u32 s53, s53, s55"); A(f"s_add_u32 s53, s53, {ML}")
        for i in range(16): A(f"v_mov_b32 v{vACC+i}, 0")
        if PAIR:
            A(f"s_mov_b32 s{sLEFT}, {S-nA-1}"); A(f"s_mov_b32 s{sMODE}, 0")
            A(f"s_lshl_b32 s{sTKP}, s26, 2"); A(f"s_add_u32 s{sTKP}, s{sTKP}, s3"); A(f"s_lshl_b32 s{sTKP}, s{sTKP}, 12"); A(f"s_add_u32 s{sTKP}, s{sTKP}, {TK}")
            A(f"s_lshr_b32 s{sTKO}, s27, 1"); A(f"s_lshl_b32 s{sTKO}, s{sTKO}, 8"); A(f"s_add_u32 s{sTKO}, s{sTKO}, s{sTKP}"); A(f"s_add_u32 s{sTKO}, s{sTKO}, 256")
        else:
            A(f"s_add_u32 s{sCUR}, s{sCUR}, {4*nA}"); A(f"s_mov_b32 s{sLEFT}, {S-nA}"); A(f"s_mov_b32 s{sSTR}, 4"); A(f"s_mov_b32 s{sMODE}, 0")
        if SRV: A(f"s_lshl_b32 s{sCUR}, s{sCUR}, 12"); A(f"s_add_u32 s{sCUR}, s{sCUR}, s{sHB}"); A(f"s_mov_b32 s{sMODE}, 0")
        if PAIR or SRV: pass
        elif TKW:
            A(f"s_add_u32 s{sDYN}, s3, {S*4 if PM else 16*S*4}")
            A(f"s_lshl_b32 s{sTKO}, s26, 2"); A(f"s_add_u32 s{sTKO}, s{sTKO}, s3"); A(f"s_lshl_b32 s{sTKO}, s{sTKO}, 12"); A(f"s_add_u32 s{sTKO}, s{sTKO}, {TK}")
        else:
            A(f"s_mov_b32 s{sDYN}, {16*S*4}")
            A(f"s_lshl_b32 s{sTKO}, s26, 14"); A(f"s_add_u32 s{sTKO}, s{sTKO}, {TK}")
        A(f"s_mov_b32 s{sC}, {CSC}"); A(f"s_mov_b32 s{sNB}, 0"); A(f"s_mov_b32 s63, {1<<22}")
        A("v_lshlrev_b32 v8, 4, v4")
        A("v_mov_b32 v10, 512")
        A(f"v_mov_b32 v{vM}, 0xff7fffff"); A(f"v_mov_b32 v{vL}, 0")
        A(f"v_mul_f32 v{vNM}, s{sC}, v{vM}"); A(f"v_sub_f32 v{vNM}, 0, v{vNM}")
        if not hfirst: A("s_barrier")
    def qcheck():
        A("ds_read_b64 v[6:7], v10")
        A(f"ds_read_b128 v[{vQ}:{vQ+3}], v8"); A(f"ds_read_b128 v[{vQ+4}:{vQ+7}], v8 offset:256")
        A("s_waitcnt lgkmcnt(0)")
        A("v_readfirstlane_b32 s62, v6")
        A("s_cmp_lg_u32 s62, 0"); A("s_cbranch_scc1 L_go")
    NL0 = FW if FW else 4 * LEAD
    items = [(n >> 3, (n >> 2) & 1, n & 3, None) for n in range(NL0)]
    for b in range(NB): items += [(2 + b, n >> 2, n & 3, sBO) for n in range(8)]
    for n, (st, isv, i, so) in enumerate(items):
        if n == min(INF, NL0): setup()
        if so is not None and isv == 0 and i == 0 and early: qcheck()
        if n >= INF: A(f"s_waitcnt vmcnt({INF-1})")
        if SEP:
            sk = (sOFF[isv] if so is None else (sBO, 39)[isv])
            A(f"buffer_load_dwordx4 v[{kv(st,isv,i)}:{kv(st,isv,i)+3}], v1, s[28:31], s{sk} offen offset:{IOFF[i]} {KF}")
        else: load(st, isv, i, so)
        if so is not None and isv == 1 and i == 3:
            A(f"s_add_u32 s{sBO}, s{sBO}, " + (f"s{sSTR}" if PAIR else f"{(8 if SEP else 4)*4096}")); A(f"s_add_u32 s{sNB}, s{sNB}, 1")
            if SEP: A(f"s_add_u32 s39, s39, {8*4096}")
    A("L_qspin:")
    qcheck()
    A("s_sleep 1")
    A("s_sub_u32 s63, s63, 1"); A("s_cbranch_scc0 L_qspin"); A("s_branch L_end")
    A("L_go:")
    A("v_readfirstlane_b32 s54, v7")
    if PAIR or SRV: A(f"s_mov_b32 s{sCUR}, s{sBO}")
    else: A(f"s_lshl_b32 s62, s{sNB}, 2"); A(f"s_add_u32 s{sCUR}, s{sCUR}, s62")
    A(f"s_sub_u32 s{sLEFT}, s{sLEFT}, s{sNB}")
    if diag: A(f"s_mov_b32 s61, s{sNB}"); A(f"s_mov_b32 s74, s{sNB}")
    stamp(2)
    rare = []
    VW = 4 * (LEAD - 1)
    dyns = []; srvs = []
    LCNT, LROWS = 520, 1024
    def newtile(dst):
        lj, ln = L("j"), L("n")
        if SRV:
            ld = L("dyn")
            A(f"s_sub_u32 s{sLEFT}, s{sLEFT}, 1"); A(f"s_cbranch_scc1 {ld}")
            A(f"s_mov_b32 s{dst}, s{sCUR}"); A(f"s_add_u32 s{sCUR}, s{sCUR}, 16384")
            A(f"{ln}:")
            srvs.append((ld, ln, dst))
            return
        if PAIR:
            ld = L("dyn")
            A(f"s_sub_u32 s{sLEFT}, s{sLEFT}, 1"); A(f"s_cbranch_scc1 {ld}")
            A(f"{lj}:")
            A(f"s_mov_b32 s{dst}, s{sCUR}"); A(f"s_add_u32 s{sCUR}, s{sCUR}, s{sSTR}")
            A(f"{ln}:")
            dyns.append((ld, lj, ln, dst))
            return
        A(f"s_cmp_gt_i32 s{sLEFT}, 0"); A(f"s_cbranch_scc1 {lj}")
        A("s_waitcnt lgkmcnt(0)")
        if PM:
            assert C == 1 and TKW
            A(f"s_and_b32 s{sT}, s{sTK}, 15"); A(f"s_lshl_b32 s{sT}, s{sT}, 7"); A(f"s_lshr_b32 s{sCUR}, s{sTK}, 4"); A(f"s_add_u32 s{sCUR}, s{sCUR}, s{sT}")
            A(f"s_lshl_b32 s{sCUR}, s{sCUR}, 2"); A(f"s_add_u32 s{sCUR}, s{sCUR}, s{sDYN}"); A(f"s_mov_b32 s{sLEFT}, {C}")
            A(f"s_cmp_lt_u32 s{sTK}, {16*(128-S)}"); A(f"s_cselect_b32 s{sCUR}, s{sCUR}, {NT}")
            if BT: A(f"s_cmp_ge_u32 s{sTK}, {max(16*(128-S)-BT, 0)}"); A(f"s_cselect_b32 s{sMODE}, 1, 0")
        else:
            A(f"s_mul_i32 s{sCUR}, s{sTK}, {(4 if TKW else 1)*C}"); A(f"s_add_u32 s{sCUR}, s{sCUR}, s{sDYN}"); A(f"s_mov_b32 s{sLEFT}, {C}")
        if not TKW: A(f"s_mov_b32 s{sSTR}, 1")
        A(f"s_cmp_lt_u32 s{sCUR}, {NT}"); A(f"s_cselect_b32 s{sLEFT}, s{sLEFT}, 1000")
        if TRIG == 2:
            A(f"s_cbranch_scc1 {lj}")
            A(f"v_mov_b32 v{vT}, {LCNT}"); A(f"ds_write_b32 v{vT}, v{vT}")
        A(f"{lj}:")
        A(f"s_cmp_lg_u32 s{sLEFT}, {C}"); A(f"s_cbranch_scc1 {ln}")
        A(f"s_mov_b32 s{sTK}, 1"); A(f"s_atomic_add s{sTK}, s[24:25], s{sTKO} glc")
        if WARM & 6:
            A(f"s_cmp_lg_u32 s{sMODE}, 0"); A(f"s_cbranch_scc1 {ln}")
            A(f"s_mov_b32 s{sMODE}, 1")
            if WARM & 2:
                A(f"buffer_load_dword v{vBUF+64}, v2, s[56:59], s52 offen sc1")
                A(f"buffer_load_dword v{vBUF+65}, off, s[56:59], s53 sc1")
            if WARM & 4:
                A(f"v_lshlrev_b32 v{vBUF+66}, 4, v0")
                A("s_lshl_b32 s62, s2, 2"); A("s_add_u32 s62, s62, s3"); A("s_lshl_b32 s62, s62, 10"); A(f"s_add_u32 s62, s62, {OS}")
                A(f"buffer_load_dword v{vBUF+67}, v{vBUF+66}, s[56:59], s62 offen sc1")
                A(f"s_add_u32 s62, s62, {YS-OS}"); A("s_cmp_lt_u32 s2, 112"); A("s_cselect_b32 s62, s62, 0x80000000")
                A(f"buffer_load_dword v{vBUF+68}, v{vBUF+66}, s[56:59], s62 offen sc1")
        A(f"{ln}:")
        A(f"s_lshl_b32 s{sT}, s{sCUR}, 12"); A(f"s_add_u32 s{sT}, s{sT}, s{sHB}")
        A(f"s_cmp_lt_u32 s{sCUR}, {NT}"); A(f"s_cselect_b32 s{dst}, s{sT}, 0x80000000")
        A(f"s_add_u32 s{sCUR}, s{sCUR}, s{sSTR}"); A(f"s_sub_i32 s{sLEFT}, s{sLEFT}, 1")
    def body(st, stream, burst=False):
        o = st ^ 1
        if burst:
            A(f"L_burst{st}:")
            for g in range(8): load(o, g >> 2, g & 3)
        if stream:
            A(f"L_body{st}:")
            A(f"s_cmp_ge_u32 s{sOFF[st]}, 0x80000000"); A("s_cbranch_scc1 L_sdone")
            if diag: A("s_add_u32 s61, s61, 1")
            if LEAD == 4 or FW > 8: newtile(sOFF[st])
            if LEAD == 2 or FW == 8: newtile(sOFF[o])
            if BT: A(f"s_cmp_lg_u32 s{sMODE}, 0"); A(f"s_cbranch_scc1 L_burst{st}")
            if not FW: A(f"s_waitcnt vmcnt({VW})")
            if LEAD == 3:
                for i in range(4): load(o, 1, i)
            if LEAD == 2:
                for i in range(4): load(o, 0, i)
        def step(p):
            if burst: A(f"s_waitcnt vmcnt({15-p})")
            if not (stream and FW): return
            A(f"s_waitcnt vmcnt({FW-1})")
            g = p + FW
            load(o if g < 16 else st, (g >> 2) & 1, g & 3)
        if FW:
            for i in range(4):
                step(i)
                acc, half = (vA, vB)[i >> 1], i & 1
                for d in range(4):
                    c = "0" if (half == 0 and d == 0) else f"v{acc}"
                    A(f"v_dot2_f32_bf16 v{acc}, v{kv(st,0,i)+d}, v{vQ+half*4+d}, {c}")
        else:
          for half in range(2):
            for d in range(4):
                for (acc, i) in ((vA, half), (vB, 2 + half)):
                    c = "0" if (half == 0 and d == 0) else f"v{acc}"
                    A(f"v_dot2_f32_bf16 v{acc}, v{kv(st,0,i)+d}, v{vQ+half*4+d}, {c}")
        if stream and LEAD == 4: load(st, 0, 0); load(st, 0, 1); load(st, 0, 2)
        for k, stp in enumerate(ROWSTEPS):
            A(f"v_add_f32_dpp v{vA}, v{vA}, v{vA} {stp} {DPPM}")
            A(f"v_add_f32_dpp v{vB}, v{vB}, v{vB} {stp} {DPPM}")
            if k == 0 and stream and LEAD == 4: load(st, 0, 3)
        A(f"v_cvt_pk_bf16_f32 v{vT}, v{vA}, v{vB}")
        A(f"v_lshlrev_b32 v{vA}, 16, v{vT}"); A(f"v_and_b32 v{vB}, 0xffff0000, v{vT}")
        A(f"v_max_f32 v{vT}, v{vA}, v{vB}")
        A(f"v_cmp_gt_f32 vcc, v{vT}, v{vM}")
        lr, lb = L("rare"), L("back")
        A(f"s_cbranch_vccnz {lr}")
        A(f"{lb}:")
        rare.append((lr, lb))
        A(f"v_fma_f32 v{vA}, v{vA}, s{sC}, v{vNM}"); A(f"v_fma_f32 v{vB}, v{vB}, s{sC}, v{vNM}")
        A(f"v_exp_f32 v{vA}, v{vA}"); A(f"v_exp_f32 v{vB}, v{vB}")
        if stream:
            if LEAD == 3: newtile(sOFF[st])
            if not FW: A(f"s_waitcnt vmcnt({VW})")
            if LEAD == 3:
                for i in range(4): load(st, 0, i)
            if LEAD == 2:
                for i in range(4): load(o, 1, i)
        A(f"v_cvt_pk_bf16_f32 v{vT}, v{vA}, 0"); A(f"v_cvt_pk_bf16_f32 v{vU1}, 0, v{vA}")
        A(f"v_cvt_pk_bf16_f32 v{vU2}, v{vB}, 0"); A(f"v_cvt_pk_bf16_f32 v{vU3}, 0, v{vB}")
        A(f"v_add_f32 v{vL}, v{vL}, v{vA}"); A(f"v_add_f32 v{vL}, v{vL}, v{vB}")
        for i in range(4):
            lo, hi = (vT, vU1) if i < 2 else (vU2, vU3)
            ab = vACC + (i & 1) * 8
            step(4 + i)
            for d in range(4):
                A(f"v_dot2c_f32_bf16 v{ab+2*d}, v{kv(st,1,i)+d}, v{lo}")
                A(f"v_dot2c_f32_bf16 v{ab+2*d+1}, v{kv(st,1,i)+d}, v{hi}")
            if stream and LEAD == 4: load(st, 1, i)
    if SEP:
        assert FW == 8 and PM and S % 2 == 0 and S // 2 <= 64 and not BT and diag != 2
        H = S // 2 - KP
        assert not (KP and CT)
        sOF2, sSL, vLA, vX, vY = [96, 97], [98, 99], 230, 228, 229
        def dload(st, g):
            b = kv(st, g >> 2, g & 3)
            A(f"buffer_load_dwordx4 v[{b}:{b+3}], v1, s[{88+4*(g>>2)}:{91+4*(g>>2)}], s{(sOFF, sOF2)[g>>2][st]} offen offset:{IOFF[g&3]} {KF}")
        def dstep(st, g, stream):
            if stream: A("s_waitcnt vmcnt(7)"); dload(st ^ 1, g)
        stubs = []
        def head(st, ph):
            o = st ^ 1
            A(f"L_{ph}{st}:")
            if diag: A("s_add_u32 s61, s61, 1")
            A(f"s_sub_u32 s{sLEFT}, s{sLEFT}, 1"); A(f"s_cbranch_scc1 L_{ph}l{st}")
            if ph == "v":
                A(f"s_cmp_lg_u32 s{sLEFT}, 0"); A(f"s_cbranch_scc1 L_vn{st}")
                A(f"s_mov_b32 s{sTK}, 1"); A(f"s_atomic_add s{sTK}, s[24:25], s{sTKO} glc")
                A(f"L_vn{st}:")
                if KP:
                    A(f"s_sub_u32 s62, s101, s{sLEFT}"); A("s_sub_u32 s62, s62, 1"); A("s_and_b32 s62, s62, 63")
                    A("v_readlane_b32 s62, v231, s62")
                    A(f"s_cmp_lt_u32 s{sLEFT}, s101"); A(f"s_cselect_b32 s{sBO}, s62, s{sBO}")
            elif KP:
                A(f"s_cmp_lg_u32 s{sLEFT}, 0"); A(f"s_cbranch_scc1 L_kn{st}")
                A("s_mov_b32 s39, 1"); A("s_atomic_add s39, s[24:25], s87 glc")
                A(f"L_kn{st}:")
            A(f"s_mov_b32 s{sOFF[o]}, s{sBO}"); A(f"s_add_u32 s{sOF2[o]}, s{sBO}, {D2}"); A(f"s_add_u32 s{sBO}, s{sBO}, 32768")
            if ph == "k": A(f"s_mov_b32 s{sSL[o]}, s38"); A("s_add_u32 s38, s38, 32")
            A(f"L_{ph}b{st}:")
        def kbody(st, stream):
            if stream: head(st, "k"); A(f"v_add_u32 v{vX}, s{sSL[st]}, v{vLA}")
            for t in range(2):
                for i in range(4):
                    dstep(st, 4*t + i, stream)
                    acc, half = (vA, vB)[i >> 1], i & 1
                    for d in range(4):
                        c = "0" if (half == 0 and d == 0) else f"v{acc}"
                        A(f"v_dot2_f32_bf16 v{acc}, v{kv(st,t,i)+d}, v{vQ+half*4+d}, {c}")
                row_reduce([vA, vB])
                A(f"v_cvt_pk_bf16_f32 v{vT}, v{vA}, v{vB}")
                if stream: A(f"ds_write_b32 v{vX}, v{vT} offset:{16*t}")
                else: A(f"ds_write_b32 v{vLA}, v{vT} offset:{32*(st-1)+16*t}")
                A(f"v_lshlrev_b32 v{vA}, 16, v{vT}"); A(f"v_and_b32 v{vB}, 0xffff0000, v{vT}")
                A(f"v_max3_f32 v{vM}, v{vA}, v{vB}, v{vM}")
            if stream: A(f"s_cmp_lg_u32 s{sMODE}, 0"); A(f"s_cbranch_scc1 L_k2v{st^1}")
        def vbody(st):
            A(f"L_vt{st}:")
            A(f"ds_read_b32 v{vX}, v{vLA}"); A(f"ds_read_b32 v{vY}, v{vLA} offset:16")
            A(f"v_add_u32 v{vLA}, 32, v{vLA}")
            A("s_waitcnt lgkmcnt(0)")
            head(st, "v")
            for t in range(2):
                sc = (vX, vY)[t]
                A(f"v_lshlrev_b32 v{vA}, 16, v{sc}"); A(f"v_and_b32 v{vB}, 0xffff0000, v{sc}")
                A(f"v_fma_f32 v{vA}, v{vA}, s{sC}, v{vNM}"); A(f"v_fma_f32 v{vB}, v{vB}, s{sC}, v{vNM}")
                A(f"v_exp_f32 v{vA}, v{vA}"); A(f"v_exp_f32 v{vB}, v{vB}")
                A(f"v_cvt_pk_bf16_f32 v{vT}, v{vA}, 0"); A(f"v_cvt_pk_bf16_f32 v{vU1}, 0, v{vA}")
                A(f"v_cvt_pk_bf16_f32 v{vU2}, v{vB}, 0"); A(f"v_cvt_pk_bf16_f32 v{vU3}, 0, v{vB}")
                A(f"v_add_f32 v{vL}, v{vL}, v{vA}"); A(f"v_add_f32 v{vL}, v{vL}, v{vB}")
                for i in range(4):
                    lo, hi = (vT, vU1) if i < 2 else (vU2, vU3)
                    ab = vACC + (i & 1) * 8
                    dstep(st, 4*t + i, True)
                    for d in range(4):
                        A(f"v_dot2c_f32_bf16 v{ab+2*d}, v{kv(st,t,i)+d}, v{lo}")
                        A(f"v_dot2c_f32_bf16 v{ab+2*d+1}, v{kv(st,t,i)+d}, v{hi}")
            A(f"s_cmp_lg_u32 s{sMODE}, 0"); A(f"s_cbranch_scc1 L_body{st^1}")
        A(f"s_sub_u32 s{sLEFT}, {H-1}, s{sNB}"); A(f"s_mov_b32 s{sSL[0]}, 0")
        A(f"s_lshl_b32 s38, s{sNB}, 5"); A("s_add_u32 s38, s38, 32")
        A("s_mov_b64 s[88:89], s[28:29]"); A("s_mov_b64 s[90:91], s[30:31]"); A("s_mov_b64 s[92:93], s[28:29]"); A("s_mov_b64 s[94:95], s[30:31]")
        A(f"s_lshl_b32 s62, s3, {12 if KP else 11}")
        if KP: A(f"s_add_u32 s100, s62, s{sHB}"); A(f"s_add_u32 s100, s100, {H*32768}"); A("s_mov_b32 s101, 0"); A(f"s_add_u32 s87, s{sTKO}, 256")
        A("s_add_u32 s62, s62, 1024")
        A(f"v_lshrrev_b32 v{vLA}, 4, v0"); A(f"v_lshl_add_u32 v{vLA}, v{vLA}, 2, s62")
        A(".p2align 6")
        kbody(0, True); kbody(1, True)
        A(f"s_cmp_eq_u32 s{sNB}, 0"); A("s_cbranch_scc1 L_k0")
        for b in range(NB):
            kbody(2 + b, False)
            if b < NB - 1: A(f"s_cmp_eq_u32 s{sNB}, {b+1}"); A("s_cbranch_scc1 L_kdone")
        A("L_kdone:")
        A(f"s_mov_b32 s{sNB}, 0")
        A("s_branch L_k0")
        for st in range(2):
            o = st ^ 1
            A(f"L_kl{st}:")
            if KP:
                A(f"s_mov_b32 s{sLEFT}, 0")
                A("s_waitcnt lgkmcnt(0)")
                A("s_cmp_lt_u32 s101, 60"); A("s_cselect_b32 s39, s39, -1")
                A(f"s_cmp_ge_u32 s39, {16*KP}"); A(f"s_cbranch_scc1 L_kz{st}")
                A("s_and_b32 s62, s39, 15"); A("s_lshl_b32 s62, s62, 21"); A("s_lshr_b32 s39, s39, 4"); A("s_lshl_b32 s39, s39, 15")
                A("s_add_u32 s62, s62, s39"); A(f"s_add_u32 s{sBO}, s62, s100")
                A("s_mov_b32 m0, s101"); A("s_add_u32 s101, s101, 1")
                A("s_cmp_ge_u32 s101, 60"); A(f"s_cbranch_scc1 L_kc{st}")
                A("s_mov_b32 s39, 1"); A("s_atomic_add s39, s[24:25], s87 glc")
                A(f"L_kc{st}:")
                A(f"v_writelane_b32 v231, s{sBO}, m0")
                A(f"s_branch L_kn{st}")
                A(f"L_kz{st}:")
            A("s_mov_b64 s[88:89], s[32:33]"); A("s_mov_b64 s[92:93], s[32:33]")
            A(f"s_mov_b32 s{sOFF[o]}, s36"); A(f"s_add_u32 s{sOF2[o]}, s36, {D2}"); A(f"s_add_u32 s{sBO}, s36, 32768")
            A(f"s_mov_b32 s{sMODE}, 1"); A(f"s_branch L_kb{st}")
            A(f"L_k2v{st}:")
            A(f"v_mov_b32 v{vT}, v{vM}")
            xrow_allreduce([(vM, vU1)], "v_max_f32")
            A(f"v_mul_f32 v{vNM}, s{sC}, v{vM}"); A(f"v_sub_f32 v{vNM}, 0, v{vNM}")
            A(f"s_mov_b32 s{sMODE}, 0"); A(f"s_add_u32 s{sLEFT}, s101, {H-1}" if KP else f"s_mov_b32 s{sLEFT}, {H-1}")
            A(f"s_branch L_vt{st}")
            A(f"L_vl{st}:")
            A("s_mov_b64 s[88:89], s[28:29]")
            A(f"s_mov_b32 s{sLEFT}, 0")
            newtile(sOFF[o])
            A(f"s_mov_b32 s{sOF2[o]}, s{sOFF[o]}"); A(f"s_mov_b32 s{sMODE}, 1"); A(f"s_branch L_vb{st}")
        A(".p2align 6")
        vbody(0); vbody(1)
        A("s_branch L_vt0")
    A(".p2align 6")
    A("L_loop:")
    if diag == 2:
        A("s_memrealtime s[86:87]"); A("s_lshr_b32 s62, s61, 1"); A("s_min_u32 m0, s62, 63"); A("s_waitcnt lgkmcnt(0)"); A(f"v_writelane_b32 v{vJ-1}, s86, m0")
    body(0, True); body(1, True)
    A(f"s_cmp_eq_u32 s{sNB}, 0"); A("s_cbranch_scc1 L_loop")
    for b in range(0 if SEP else NB):
        body(2 + b, False)
        if b < NB - 1: A(f"s_cmp_eq_u32 s{sNB}, {b+1}"); A("s_cbranch_scc1 L_bdone")
    A("L_bdone:")
    A(f"s_mov_b32 s{sNB}, 0")
    A("s_branch L_loop")
    if BT:
        assert FW == 8 and PM and not (WARM & 6)
        for st in range(2):
            body(st, False, True)
            A(f"s_branch L_body{st^1}")
    for ld, ln, dst in srvs:
        l1 = L("d")
        A(f"{ld}:")
        A(f"s_mov_b32 s{sLEFT}, 0"); A(f"s_mov_b32 s{dst}, 0x80000000")
        A(f"s_cmp_lg_u32 s{sMODE}, 0"); A(f"s_cbranch_scc1 {ln}")
        A("s_mov_b64 exec, 1")
        A(f"v_mov_b32 v{vT}, {LCNT}"); A(f"v_mov_b32 v{vU1}, 1")
        A(f"ds_add_rtn_u32 v{vU1}, v{vT}, v{vU1}")
        A("s_waitcnt lgkmcnt(0)")
        A(f"v_and_b32 v{vT}, -4, v{vU1}")
        A(f"v_readfirstlane_b32 s{sT}, v{vU1}")
        A(f"{l1}:")
        A(f"ds_read_b32 v{vU1}, v{vT} offset:{LROWS}")
        A(f"s_and_b32 s{sT}, s{sT}, 3")
        A("s_waitcnt lgkmcnt(0)")
        A(f"v_readfirstlane_b32 s62, v{vU1}")
        A("s_sub_u32 s63, s63, 1"); A("s_cbranch_scc1 L_end")
        A(f"s_cmp_eq_u32 s62, 0"); A(f"s_cbranch_scc1 {l1}")
        A("s_mov_b64 exec, -1")
        A(f"s_lshl_b32 s{sT}, s{sT}, 12"); A(f"s_or_b32 s{dst}, s62, s{sT}")
        A(f"s_lshr_b32 s{sMODE}, s62, 31")
        A(f"s_branch {ln}")
    for ld, lj, ln, dst in dyns:
        l1, l2, l3 = L("d"), L("d"), L("d")
        A(f"{ld}:")
        A(f"s_mov_b32 s{sLEFT}, 0")
        A(f"s_cmp_lg_u32 s{sMODE}, 0"); A(f"s_cbranch_scc1 {l1}")
        A(f"s_mov_b32 s{sMODE}, 1"); A(f"s_mov_b32 s{sPT}, 1"); A(f"s_atomic_add s{sPT}, s[24:25], s{sTKP} glc")
        A(f"{l3}:")
        A(f"s_mov_b32 s{sTK}, 1"); A(f"s_atomic_add s{sTK}, s[24:25], s{sTKO} glc")
        A(f"s_branch {lj}")
        A(f"{l1}:")
        A("s_waitcnt lgkmcnt(0)")
        A(f"s_cmp_eq_u32 s{sMODE}, 2"); A(f"s_cbranch_scc1 {l2}")
        A(f"s_cmp_lt_u32 s{sTK}, {NPAIR}"); A(f"s_cbranch_scc1 {l3}")
        A(f"s_mov_b32 s{sMODE}, 2"); A(f"s_mov_b32 s{sTK}, s{sPT}")
        A(f"{l2}:")
        A(f"s_mov_b32 s{dst}, 0x80000000")
        A(f"s_cmp_lt_u32 s{sTK}, {NPOOL}"); A(f"s_cbranch_scc0 {ln}")
        lg = PL.bit_length() - 1
        if PORD == 0:
            A(f"s_lshr_b32 s{sT}, s{sTK}, {lg}"); A(f"s_and_b32 s62, s{sTK}, {PL-1}")
        else:
            A(f"s_and_b32 s{sT}, s{sTK}, 7"); A(f"s_lshr_b32 s62, s{sTK}, 3")
        A(f"s_lshl_b32 s{sT}, s{sT}, 8"); A(f"s_add_u32 s{sT}, s{sT}, s62"); A(f"s_sub_u32 s{sT}, s{sT}, {PL//2}"); A(f"s_and_b32 s{sT}, s{sT}, 2047")
        A(f"s_lshl_b32 s{sT}, s{sT}, 14"); A(f"s_add_u32 s{dst}, s{sT}, s{sHB}")
        A(f"s_mov_b32 s{sTK}, 1"); A(f"s_atomic_add s{sTK}, s[24:25], s{sTKP} glc")
        A(f"s_branch {ln}")
    for lr, lb in rare:
        A(f"{lr}:")
        xrow_allreduce([(vT, vU1)], "v_max_f32")
        A(f"v_max_f32 v{vT}, v{vT}, v{vM}")
        A(f"v_mul_f32 v{vNM}, s{sC}, v{vT}"); A(f"v_sub_f32 v{vNM}, 0, v{vNM}")
        A(f"v_fma_f32 v{vU1}, v{vM}, s{sC}, v{vNM}"); A(f"v_exp_f32 v{vU1}, v{vU1}")
        A(f"v_mov_b32 v{vM}, v{vT}")
        A(f"v_mul_f32 v{vL}, v{vL}, v{vU1}")
        for i in range(0, 16, 2): A(f"v_pk_mul_f32 v[{vACC+i}:{vACC+i+1}], v[{vACC+i}:{vACC+i+1}], v[{vT}:{vU1}] op_sel:[0,1] op_sel_hi:[1,1]")
        A(f"s_branch {lb}")
    A("L_sdone:")
    stamp(3)
    if TRIG in (1, 3) and TN == 1: A(f"v_mov_b32 v{vT}, {LCNT}"); A(f"ds_write_b32 v{vT}, v{vT}")
    if TRIG in (1, 3) and TN > 1: A(f"v_mov_b32 v{vT}, {LCNT}"); A(f"v_mov_b32 v{vU1}, 1"); A(f"ds_add_u32 v{vT}, v{vU1}")
    A("s_lshr_b32 s55, s54, 4"); A("s_lshr_b32 s62, s54, 8"); A("s_lshr_b32 s63, s54, 12")
    for i in range(8): A(f"v_permlane32_swap_b32 v{vACC+i}, v{vACC+8+i}")
    A(f"v_mov_b32 v{vT}, v{vL}")
    for i in range(8): A(f"v_add_f32 v{vACC+i}, v{vACC+i}, v{vACC+8+i}")
    A(f"v_permlane16_swap_b32 v{vL}, v{vT}")
    for i in range(4): A(f"v_permlane16_swap_b32 v{vACC+i}, v{vACC+4+i}")
    A(f"v_add_f32 v{vL}, v{vL}, v{vT}")
    for i in range(4): A(f"v_add_f32 v{vACC+i}, v{vACC+i}, v{vACC+4+i}")
    A(f"v_mov_b32 v{vT}, v{vL}")
    for i, t in enumerate((54, 55, 62, 63)): A(f"v_bfi_b32 v{vACC+i}, 15, s{t}, v{vACC+i}")
    A(f"v_permlane32_swap_b32 v{vL}, v{vT}")
    A(f"buffer_store_dwordx4 v[{vACC}:{vACC+3}], v2, s[56:59], s52 offen {STS}")
    A(f"v_add_f32 v{vU1}, v{vL}, v{vT}")
    A(f"v_mov_b32 v{vT}, v{vM}"); A(f"v_mov_b32 v{vU2}, s54"); A(f"v_mov_b32 v{vU3}, s54")
    if MT:
        A(f"v_lshlrev_b32 v{vA}, 4, v0")
        A("s_mov_b64 exec, 0xff")
        A(f"buffer_store_dwordx4 v[{vT}:{vU3}], v{vA}, s[56:59], s53 offen {STS}")
    else:
        A("s_mov_b64 exec, 1")
        A(f"buffer_store_dwordx4 v[{vT}:{vU3}], off, s[56:59], s53 {STS}")
    A("s_barrier")
    stamp(4)
    dump_stamps(6)
    A("s_endpgm")

    if XW:
        A("L_xw:")
        A("s_barrier")
        A("s_waitcnt lgkmcnt(0)")
        srd(28, 12, 4096*896)
        A("v_lshlrev_b32 v1, 4, v0")
        A("s_mul_i32 s40, s26, 229376"); A("s_sub_u32 s41, s3, 5"); A("s_mul_i32 s41, s41, 76800"); A("s_add_u32 s40, s40, s41")
        if XD:
            A(f"s_movk_i32 s42, {XD}")
            A("L_xd:"); A("s_sleep 32"); A("s_sub_u32 s42, s42, 1"); A("s_cbranch_scc0 L_xd")
        for i in range(75):
            if i >= XI: A(f"s_waitcnt vmcnt({XI-1})")
            if XS: A(f"s_sleep {XS}")
            A(f"buffer_load_dwordx4 v[{8+4*(i%48)}:{8+4*(i%48)+3}], v1, s[28:31], s40 offen{XF}")
            A("s_add_u32 s40, s40, 1024")
        A("s_waitcnt vmcnt(0)")
        A("s_endpgm")
    A("L_helper:")
    A("s_setprio 3")
    X = 8
    XLO, XHI = 16, 24
    ACC = 32
    W = 48
    R = 112
    vM1 = 144
    vMean, vYv, vZv, vQv, vL4, vRs, vL16 = 148, 149, 150, 151, 152, 153, 154
    T = [156, 157, 158, 159, 160, 161, 162, 163]
    vF0, vF, vLF = 155, 164, 165
    XA, XAF, XB, XBF = 8, 16, 24, 112
    A(f"v_mov_b32 v{T[4]}, 0"); A(f"v_mov_b32 v{T[5]}, 0"); A(f"v_mov_b32 v{vLF}, 512")
    A(f"v_lshlrev_b32 v{vL16}, 4, v0")
    A(f"v_mov_b32 v{T[6]}, 0"); A(f"v_mov_b32 v{T[7]}, 0")
    A(f"ds_write_b128 v{vLF}, v[{T[4]}:{T[7]}]")
    if SRV:
        for i in range(3): A(f"ds_write_b128 v{vL16}, v[{T[4]}:{T[7]}] offset:{LROWS+1024*i}")
    A(f"v_lshrrev_b32 v{T[0]}, 3, v0")
    A(f"v_mul_u32_u24 v{T[1]}, 28, v{T[0]}")
    A(f"v_mul_u32_u24 v{T[2]}, {14*8192}, v{T[0]}")
    A(f"v_and_b32 v{T[3]}, 7, v0")
    A(f"v_lshl_add_u32 v{T[2]}, v{T[3]}, 4, v{T[2]}")
    A("s_lshr_b32 s61, s27, 2")
    A("s_mul_i32 s60, s61, 224")
    A(f"s_mul_i32 s62, s61, {112*8192}"); A("s_lshl_b32 s63, s26, 9"); A("s_add_u32 s62, s62, s63")
    A("s_and_b32 s63, s27, 3"); A("s_lshl_b32 s63, s63, 7"); A("s_add_u32 s62, s62, s63")
    A("s_lshl_b32 s93, s26, 12")
    lnc = L("noclr")
    A("s_cmp_lg_u32 s27, 0")
    A("s_waitcnt lgkmcnt(0)")
    A(f"s_load_dword s52, s[24:25], {EP}")
    srd(56, 24, WS_BYTES)
    A(f"s_cbranch_scc1 {lnc}")
    A(f"v_lshlrev_b32 v{T[4]}, 8, v0")
    A("s_lshl_b32 s61, s26, 14"); A(f"s_add_u32 s61, s61, {TK}")
    if SRV: A("s_mov_b64 exec, 1")
    A(f"buffer_store_dword v{T[5]}, v{T[4]}, s[56:59], s61 offen sc1")
    A("s_mov_b64 exec, -1")
    A(f"{lnc}:")
    srd(28, 4, 896); srd(32, 10, 448*4096*2)
    A(f"buffer_load_dwordx4 v[{XA}:{XA+3}], v{vL16}, s[28:31], 0 offen")
    A(f"buffer_load_dwordx4 v[{XB}:{XB+3}], v{T[1]}, s[28:31], s60 offen")
    A(f"buffer_load_dwordx3 v[{XB+4}:{XB+6}], v{T[1]}, s[28:31], s60 offen offset:16")
    for i in range(14):
        A(f"buffer_load_dwordx4 v[{W+4*i}:{W+4*i+3}], v{T[2]}, s[32:35], s62 offen{WNT}")
        if i < 13: A("s_add_u32 s62, s62, 8192")
    A("s_barrier")
    vMK, vTa, vTb, vMKY = vM1, vM1 + 1, vM1 + 2, vM1 + 3
    A(f"v_mov_b32 v{vMK}, 15"); A(f"v_mov_b32 v{vMKY}, 0x3ff")
    for i in range(8): A(f"v_mov_b32 v{ACC+i}, 0")
    A(f"v_lshlrev_b32 v{vQv}, 5, v{T[3]}"); A(f"v_lshrrev_b32 v{T[4]}, 5, v0"); A(f"v_lshl_add_u32 v{vQv}, v{T[4]}, 4, v{vQv}")
    A(f"v_and_b32 v{T[4]}, 1, v3"); A(f"v_lshl_add_u32 v{vQv}, v{T[4]}, 3, v{vQv}")
    def qpub(src, so):
        A("s_mov_b32 exec_lo, 0x00ff00ff"); A("s_mov_b32 exec_hi, 0x00ff00ff")
        A(f"buffer_store_dwordx2 v[{src}:{src+1}], v{vQv}, s[56:59], s{so} offen sc1")
        A("s_mov_b64 exec, -1")
    NCL = -2
    A("s_lshl_b32 s60, s2, 8")
    A(f"v_lshlrev_b32 v{vTb}, 3, v{T[4]}")
    A(f"s_mov_b32 s90, 0x05040100"); A(f"s_mov_b32 s91, 0x07060302")
    A(f"s_mov_b32 s62, {f2u(1.0/448.0)}"); A(f"s_mov_b32 s63, {f2u(448.0)}")
    A("s_mov_b32 s88, -1"); A("s_mov_b32 s89, 0x00ffffff")
    A(f"s_mov_b32 s99, {spin}")
    A(f"s_waitcnt vmcnt(14)")
    stamp(1)
    def unpack(dst, src):
        return [f"v_lshlrev_b32 v{dst}, 16, v{src}", f"v_and_b32 v{dst+1}, 0xffff0000, v{src}"]
    def pr(r): return f"v[{r}:{r+1}]"
    def weave(chain, fill, k=2):
        fill = list(fill)
        for c in chain:
            A(c)
            for _ in range(k):
                if fill: A(fill.pop(0))
        for f in fill: A(f)
    def allred(r, t):
        ch = [f"v_add_f32_dpp v{r}, v{r}, v{r} {st} {DPPM}" for st in ROWSTEPS]
        for sw in ("v_permlane16_swap_b32", "v_permlane32_swap_b32"):
            ch += [f"v_mov_b32 v{t}, v{r}", f"{sw} v{r}, v{t}", f"v_add_f32 v{r}, v{r}, v{t}"]
        return ch
    def div448(r, t):
        return [f"v_mul_f32 v{t}, s62, v{r}", f"v_fma_f32 v{r}, -v{t}, s63, v{r}", f"v_fma_f32 v{r}, v{r}, s62, v{t}"]
    def rndl(r): return [f"v_cvt_pk_bf16_f32 v{r}, v{r}, v{r}", f"v_and_b32 v{r}, 0xffff0000, v{r}"]
    s_, t_, q_, u_ = T[0], T[1], T[2], T[3]
    for k in range(4):
        for ins in unpack(XAF+2*k, XA+k): A(ins)
    A(f"v_pk_add_f32 {pr(T[4])}, {pr(XAF)}, {pr(XAF+2)}"); A(f"v_pk_add_f32 {pr(T[6])}, {pr(XAF+4)}, {pr(XAF+6)}")
    A(f"v_pk_add_f32 {pr(T[4])}, {pr(T[4])}, {pr(T[6])}")
    A(f"v_add_f32 v{s_}, v{T[4]}, v{T[5]}")
    fillB = []
    for k in range(7): fillB += unpack(XBF+2*k, XB+k)
    weave(allred(s_, t_) + div448(s_, t_), fillB, 2)
    BCST = "op_sel:[0,0] op_sel_hi:[1,0]"
    for k in range(4): A(f"v_pk_add_f32 {pr(XAF+2*k)}, {pr(XAF+2*k)}, {pr(s_)} {BCST} neg_lo:[0,1] neg_hi:[0,1]")
    A(f"v_cvt_pk_bf16_f32 v{vMean}, v{s_}, v{s_}")
    A(f"v_pk_mul_f32 {pr(T[4])}, {pr(XAF)}, {pr(XAF)}"); A(f"v_pk_mul_f32 {pr(T[6])}, {pr(XAF+2)}, {pr(XAF+2)}")
    A(f"v_and_b32 v{vMean}, 0xffff0000, v{vMean}")
    A(f"v_pk_fma_f32 {pr(T[4])}, {pr(XAF+4)}, {pr(XAF+4)}, {pr(T[4])}"); A(f"v_pk_fma_f32 {pr(T[6])}, {pr(XAF+6)}, {pr(XAF+6)}, {pr(T[6])}")
    A(f"v_pk_add_f32 {pr(T[4])}, {pr(T[4])}, {pr(T[6])}")
    A(f"v_add_f32 v{q_}, v{T[4]}, v{T[5]}")
    A(f"v_cndmask_b32 v{q_}, 0, v{q_}, s[88:89]")
    fillB = []
    for k in range(7): fillB.append(f"v_pk_add_f32 {pr(XBF+2*k)}, {pr(XBF+2*k)}, {pr(vMean)} {BCST} neg_lo:[0,1] neg_hi:[0,1]")
    for k in range(7): fillB.append(f"v_cvt_pk_bf16_f32 v{XB+k}, v{XBF+2*k}, v{XBF+2*k+1}")
    for k in range(7): fillB += unpack(XBF+2*k, XB+k)
    chain = allred(q_, t_) + div448(q_, t_) + rndl(q_) + [f"v_add_f32 v{q_}, {f2u(1e-5)}, v{q_}"] + rndl(q_) + [f"v_sqrt_f32 v{q_}, v{q_}"] + rndl(q_) + [f"v_rcp_f32 v{T[4]}, v{q_}"]
    weave(chain, fillB, 2)
    A(f"v_mov_b32 v{vRs}, v{T[4]}")
    for k in range(7): A(f"v_pk_mul_f32 {pr(XBF+2*k)}, {pr(XBF+2*k)}, {pr(T[4])} {BCST}")
    for k in range(7): A(f"v_cvt_pk_bf16_f32 v{XB+k}, v{XBF+2*k}, v{XBF+2*k+1}")
    def slice_dot(Wb, waits):
        for k in range(7):
            if waits: A(f"s_waitcnt vmcnt({14+NCL-2*k})")
            for c in range(4):
                a, b = Wb + 8*k + c, Wb + 8*k + 4 + c
                A(f"v_perm_b32 v{T[c]}, v{b}, v{a}, s90"); A(f"v_perm_b32 v{b}, v{b}, v{a}, s91")
            for c in range(4):
                A(f"v_dot2c_f32_bf16 v{ACC+2*c}, v{T[c]}, v{XB+k}")
                A(f"v_dot2c_f32_bf16 v{ACC+2*c+1}, v{Wb+8*k+4+c}, v{XB+k}")
        for i in range(4): A(f"v_permlane32_swap_b32 v{ACC+i}, v{ACC+4+i}")
        for i in range(4): A(f"v_add_f32 v{ACC+i}, v{ACC+i}, v{ACC+4+i}")
        for i in range(2): A(f"v_permlane16_swap_b32 v{ACC+i}, v{ACC+2+i}")
        for i in range(2): A(f"v_add_f32 v{ACC+i}, v{ACC+i}, v{ACC+2+i}")
        for i in range(2): A(f"v_add_f32_dpp v{ACC+i}, v{ACC+i}, v{ACC+i} row_ror:8 {DPPM}")
        for i, t in enumerate((vTa, vTb)): A(f"v_bfi_b32 v{ACC+i}, v{vMK}, v{t}, v{ACC+i}")
    A("s_waitcnt lgkmcnt(0)")
    A("s_add_u32 s52, s52, 0x11111111")
    A("s_lshr_b32 s53, s52, 8"); A("s_lshr_b32 s54, s52, 16"); A("s_lshr_b32 s55, s52, 24")
    A("s_lshr_b32 s100, s52, 4"); A("s_lshr_b32 s101, s52, 12")
    A(f"v_lshrrev_b32 v{vTa}, v{vTb}, s52"); A(f"v_lshrrev_b32 v{vTb}, v{vTb}, s100")
    slice_dot(W, True)
    qpub(ACC, 60)
    stamp(2)
    def anyinv(pairs, t, mask, full=()):
        def chain(ps, a0, a1):
            cur = [a0, a1]
            for k, (r, tg) in enumerate(ps):
                if k < 2: A(f"v_xor_b32 v{cur[k]}, {tg}, v{r}")
                else: A(f"v_bitop3_b32 v{cur[k&1]}, v{cur[k&1]}, v{r}, {tg} bitop3:0xf6")
        pairs = list(pairs)
        if len(pairs) == 1:
            A(f"v_xor_b32 v{t}, {pairs[0][1]}, v{pairs[0][0]}"); A(f"v_and_b32 v{t}, v{mask}, v{t}")
        else:
            chain(pairs, t, t + 1)
            if full: chain([(r, "s52") for r in full], t + 2, t + 3)
            A(f"v_bitop3_b32 v{t}, v{t}, v{t+1}, v{mask} bitop3:0xa8")
            if full: A(f"v_or3_b32 v{t}, v{t}, v{t+2}, v{t+3}")
        A(f"v_cmp_ne_u32 vcc, 0, v{t}")
    def quadB(b, n): return [(b + i, f"s{52 + (i & 3)}") for i in range(n)]
    def quad(b, n): return [(b + i, f"s{(52, 100, 53, 101)[i & 3]}") for i in range(n)]
    def pipe_poll(nsets, issue, nld, check, done, sleep, name):
        lp, lo = L(name), L(name + "o")
        ok = [L(name + "k") for _ in range(nsets)]
        for k in range(nsets - 1):
            issue(k)
            if sleep: A(f"s_sleep {sleep}")
        A(f"{lp}:")
        for k in range(nsets):
            issue((k + nsets - 1) % nsets)
            A(f"s_waitcnt vmcnt({nld*(nsets-1)})")
            check(k)
            A(f"s_cbranch_vccz {ok[k]}")
        A("s_sub_u32 s99, s99, 1"); A(f"s_cbranch_scc0 {lp}"); A("s_branch L_end")
        for k in range(nsets):
            A(f"{ok[k]}:")
            done(k)
            if k < nsets - 1: A(f"s_branch {lo}")
        A(f"{lo}:")
    def masked_poll(issue, check, sleep, name, quads=False, side=None, fast=0, thr=0, nl1=0):
        lp, lo = L(name), L(name + "o")
        def iss():
            for i in range(4):
                A(f"s_mov_b64 exec, s[{4+2*i}:{5+2*i}]")
                issue(i)
            A("s_mov_b64 exec, -1")
        def chk():
            for i in range(4):
                prs = check(i)
                A(f"v_xor_b32 v{T[i]}, {prs[0][1]}, v{prs[0][0]}")
            for k in range(1, 4):
                for i in range(4):
                    r, tg = check(i)[k]
                    A(f"v_bitop3_b32 v{T[i]}, v{T[i]}, v{r}, {tg} bitop3:0xf6")
            for i in range(4): A(f"v_and_b32 v{T[i]}, v{check(i)[4]}, v{T[i]}")
            for k in range(5, len(check(0))):
                for i in range(4): A(f"v_bitop3_b32 v{T[i]}, v{T[i]}, v{check(i)[k]}, s52 bitop3:0xf6")
            if quads:
                for st in ROWSTEPS[:2]:
                    for i in range(4): A(f"v_or_b32_dpp v{T[i]}, v{T[i]}, v{T[i]} {st} {DPPM}")
            for i in range(4): A(f"v_cmp_ne_u32 s[{4+2*i}:{5+2*i}], 0, v{T[i]}")
        for i in range(4): A(f"s_mov_b64 s[{4+2*i}:{5+2*i}], -1")
        if side:
            l2 = L(name + "s")
            loads, nl, npoll, work = side
            iss()
            if loads:
                loads()
                A(f"s_waitcnt vmcnt({nl})")
                chk(); iss()
            A(f"s_waitcnt vmcnt({npoll})")
            work()
            A(f"s_branch {l2}")
        A(f"{lp}:")
        iss()
        if side: A(f"{l2}:")
        A("s_waitcnt vmcnt(0)")
        chk()
        A("s_or_b64 vcc, s[4:5], s[6:7]"); A("s_or_b64 vcc, vcc, s[8:9]"); A("s_or_b64 vcc, vcc, s[10:11]")
        A(f"s_cbranch_scc0 {lo}")
        if fast:
            lf = L(name + "f")
            for i in range(4): A(f"s_bcnt1_i32_b64 s{12+i}, s[{4+2*i}:{5+2*i}]")
            A("s_add_u32 s12, s12, s13"); A("s_add_u32 s14, s14, s15"); A("s_add_u32 s12, s12, s14")
            A(f"s_cmp_le_u32 s12, {thr}"); A(f"s_cbranch_scc1 {lf}")
        if sleep: A(f"s_sleep {sleep}")
        A("s_sub_u32 s99, s99, 1"); A(f"s_cbranch_scc0 {lp}"); A("s_branch L_end")
        if fast:
            l3 = L(name + "g")
            A(f"{lf}:")
            for d in range(fast - 1):
                iss()
                A(f"s_sleep {FGAP}")
            A(f"{l3}:")
            iss()
            A(f"s_waitcnt vmcnt({nl1*(fast-1)})")
            chk()
            A("s_or_b64 vcc, s[4:5], s[6:7]"); A("s_or_b64 vcc, vcc, s[8:9]"); A("s_or_b64 vcc, vcc, s[10:11]")
            A(f"s_cbranch_scc0 {lo}")
            A("s_sub_u32 s99, s99, 1"); A(f"s_cbranch_scc0 {l3}"); A("s_branch L_end")
        A(f"{lo}:")
    def q_issue(k):
        for i in range(4): A(f"buffer_load_dwordx4 v[{W+16*k+4*i}:{W+16*k+4*i+3}], v{vL16}, s[56:59], s93 offen offset:{1024*i} sc1")
    def q_done(kk):
        B = W + 16*kk
        for k in range(0, 4, 2):
            A(f"v_pk_add_f32 {pr(R+k)}, {pr(B+k)}, {pr(B+4+k)}"); A(f"v_pk_add_f32 {pr(R+8+k)}, {pr(B+8+k)}, {pr(B+12+k)}")
    A(f"v_lshlrev_b32 v{vF}, 3, v0")
    A(f"v_mov_b32 v{T[4]}, 1"); A(f"v_mov_b32 v{T[5]}, s52")
    if MQ:
        masked_poll(lambda i: A(f"buffer_load_dwordx4 v[{W+4*i}:{W+4*i+3}], v{vL16}, s[56:59], s93 offen offset:{1024*i} sc1"),
                    lambda i: quad(W + 4*i, 4) + [vMK], slq, "pq", True)
        q_done(0)
    else: pipe_poll(NP, q_issue, 4, lambda k: anyinv(quad(W + 16*k, 16), T[0], vMK), q_done, slq, "pq")
    for k in range(0, 4, 2): A(f"v_pk_add_f32 {pr(R+k)}, {pr(R+k)}, {pr(R+8+k)}")
    A(f"v_cvt_pk_bf16_f32 v{T[0]}, v{R}, v{R+1}"); A(f"v_cvt_pk_bf16_f32 v{T[1]}, v{R+2}, v{R+3}")
    A(f"ds_write_b64 v{vF}, v[{T[0]}:{T[1]}]")
    A(f"ds_write_b64 v{vLF}, v[{T[4]}:{T[5]}]")
    stamp(10)
    stamp(3)
    A("s_setprio 0")
    if noprep:
        for k in range(4, 10): stamp(k)
        A("s_barrier"); A("s_branch L_hend")
    W2 = 168
    srd(36, 12, 4096*448*2); srd(48, 20, 896)
    A(f"v_lshlrev_b32 v{vYv}, 13, v0")
    A(f"v_lshlrev_b32 v{vL4}, 2, v0")
    A("s_lshl_b32 s62, s2, 12"); A(f"s_add_u32 s86, s62, {YS}"); A(f"s_add_u32 s87, s62, {OS}")
    A("s_lshr_b32 s61, s27, 2")
    A("s_lshl_b32 s62, s26, 2"); A("s_and_b32 s63, s27, 3"); A("s_add_u32 s62, s62, s63")
    A(f"s_mul_i32 s44, s61, {112*3584}"); A("s_lshl_b32 s63, s62, 7"); A("s_add_u32 s44, s44, s63")
    A("s_mul_i32 s45, s61, 7168"); A("s_lshl_b32 s63, s62, 8"); A("s_add_u32 s45, s45, s63"); A(f"s_add_u32 s45, s45, {HS}")
    A("s_sub_u32 s62, s26, 7")
    A(f"s_mul_i32 s60, s27, {112*896}"); A("s_lshl_b32 s63, s62, 7"); A("s_add_u32 s60, s60, s63")
    A("s_mul_i32 s61, s27, 1792"); A("s_lshl_b32 s63, s62, 8"); A("s_add_u32 s61, s61, s63"); A(f"s_add_u32 s61, s61, {ZS}")
    A("s_cmp_lt_u32 s2, 112")
    A("s_cselect_b32 s40, s16, s18"); A("s_cselect_b32 s41, s17, s19")
    A("s_cselect_b32 s44, s44, s60"); A("s_cselect_b32 s45, s45, s61")
    A("s_movk_i32 s46, 896"); A("s_cselect_b32 s46, 3584, s46")
    NR = 0 if skip & 4 else 224
    A(f"s_cmp_lt_u32 s2, {NR}")
    A(f"s_cselect_b32 s42, {448*1792*2}, 0"); A("s_mov_b32 s43, 0x20000")
    A("s_cselect_b32 s45, s45, 0x80000000")
    A(f"v_lshrrev_b32 v{T[0]}, 3, v0"); A(f"v_mul_u32_u24 v{T[1]}, 14, v{T[0]}"); A(f"v_mul_u32_u24 v{T[2]}, s46, v{T[1]}")
    A(f"v_and_b32 v{T[3]}, 7, v0"); A(f"v_lshl_add_u32 v{T[2]}, v{T[3]}, 4, v{T[2]}")
    for i in range(14):
        A(f"buffer_load_dwordx4 v[{W2+4*i}:{W2+4*i+3}], v{T[2]}, s[40:43], s44 offen{WNT}")
        if i < 13: A("s_add_u32 s44, s44, s46")
    if skip & 8: A("s_mov_b32 s38, 0")
    def wo_loads():
        A(f"s_mul_i32 s60, s2, {16*896}")
        A("s_mov_b32 exec_hi, 0x00ffffff")
        for r in range(16):
            A(f"buffer_load_dwordx4 v[{W+4*r}:{W+4*r+3}], v{vL16}, s[36:39], s60 offen offset:{(r%4)*896}{WNT}")
            if r % 4 == 3 and r < 15: A(f"s_add_u32 s60, s60, {4*896}")
        A("s_mov_b32 exec_hi, -1")
    def wo_perm():
        for k in range(8):
            for c in range(4):
                a, b = W + 8*k + c, W + 8*k + 4 + c
                A(f"v_perm_b32 v{T[6]}, v{b}, v{a}, s90"); A(f"v_perm_b32 v{b}, v{b}, v{a}, s91"); A(f"v_mov_b32 v{a}, v{T[6]}")
    if not WOL: wo_loads()
    A("s_lshl_b32 s96, s2, 4"); A(f"s_add_u32 s97, s96, {YS+4096}"); A(f"s_add_u32 s96, s96, {YS}")
    for i in range(8): A(f"v_mov_b32 v{ACC+i}, 0")
    A("s_waitcnt vmcnt(0)")
    if not WOL: wo_perm()
    A(f"v_lshlrev_b32 v{T[6]}, 1, v{T[1]}")
    def spin_or_end(lp, sleep):
        if sleep: A(f"s_sleep {sleep}")
        A("s_sub_u32 s99, s99, 1"); A(f"s_cbranch_scc0 {lp}"); A("s_branch L_end")
    SP = 4
    def row_dot():
        for k in range(8):
            for c in range(4):
                cc = ["0", "0"] if k == 0 else [f"v{ACC+2*c}", f"v{ACC+2*c+1}"]
                A(f"v_dot2_f32_bf16 v{ACC+2*c}, v{W+8*k+c}, s{SP+k}, {cc[0]}")
                A(f"v_dot2_f32_bf16 v{ACC+2*c+1}, v{W+8*k+4+c}, s{SP+k}, {cc[1]}")
        for i in range(8): A(f"v_bfi_b32 v{ACC+i}, v{vMKY}, s{52+(i&3)}, v{ACC+i}")
    def silu(regs, tmps):
        A(f"s_mov_b32 s62, {f2u(-LOG2E)}")
        for r, t in zip(regs, tmps): A(f"v_mul_f32 v{t}, s62, v{r}")
        for r, t in zip(regs, tmps): A(f"v_exp_f32 v{t}, v{t}")
        for r, t in zip(regs, tmps): A(f"v_add_f32 v{t}, 1.0, v{t}")
        for r, t in zip(regs, tmps): A(f"v_rcp_f32 v{t}, v{t}")
        for r, t in zip(regs, tmps): A(f"v_mul_f32 v{r}, v{r}, v{t}")
    vG, vXo = 8, 9
    def reduce4(a):
        A(f"v_permlane32_swap_b32 v{a}, v{a+2}"); A(f"v_permlane32_swap_b32 v{a+1}, v{a+3}")
        A(f"v_add_f32 v{a}, v{a}, v{a+2}"); A(f"v_add_f32 v{a+1}, v{a+1}, v{a+3}")
        A(f"v_permlane16_swap_b32 v{a}, v{a+1}")
        A(f"v_add_f32 v{a}, v{a}, v{a+1}")
    lz3, lr1 = L("noz"), L("r1")
    A(f"v_lshlrev_b32 v{T[4]}, 1, v3")
    A("s_lshl_b32 s89, s2, 3")
    A(f"s_cmp_ge_u32 s2, {NR}"); A(f"s_cbranch_scc1 {lz3}")
    A("s_cmp_lt_u32 s2, 112"); A(f"s_cbranch_scc1 {lr1}")
    A("s_mul_i32 s62, s27, 448"); A(f"s_add_u32 s62, s62, {HS}"); A("s_add_u32 s63, s62, 14336")
    A(f"v_min_u32 v{T[5]}, 55, v0"); A(f"v_lshlrev_b32 v{T[5]}, 3, v{T[5]}"); A(f"v_add_u32 v{T[7]}, 7168, v{T[5]}")
    A(f"v_and_b32 v{vF0}, 8, v{T[5]}")
    A(f"v_lshrrev_b32 v{vF}, v{vF0}, s100"); A(f"v_lshrrev_b32 v{vF0}, v{vF0}, s52")
    lp, lo = L("ph"), L("pho")
    A(f"{lp}:")
    A(f"buffer_load_dwordx2 v[{R}:{R+1}], v{T[5]}, s[56:59], s62 offen sc1")
    A(f"buffer_load_dwordx2 v[{R+2}:{R+3}], v{T[7]}, s[56:59], s62 offen sc1")
    A(f"buffer_load_dwordx2 v[{R+4}:{R+5}], v{T[5]}, s[56:59], s63 offen sc1")
    A(f"buffer_load_dwordx2 v[{R+6}:{R+7}], v{T[7]}, s[56:59], s63 offen sc1")
    A("s_waitcnt vmcnt(0)")
    anyinv([(R + i, f"v{vF if i & 1 else vF0}") for i in range(8)], T[0], vMK)
    A(f"s_cbranch_vccz {lo}")
    spin_or_end(lp, sl2)
    A(f"{lo}:")
    A(f"v_pk_add_f32 {pr(R)}, {pr(R)}, {pr(R+2)}"); A(f"v_pk_add_f32 {pr(R+4)}, {pr(R+4)}, {pr(R+6)}")
    A(f"v_pk_add_f32 {pr(R)}, {pr(R)}, {pr(R+4)}")
    rnd(R); rnd(R+1)
    silu([R, R+1], T[:2])
    A(f"v_cvt_pk_bf16_f32 v{R}, v{R}, v{R+1}")
    for k in range(7): A(f"ds_bpermute_b32 v{XB+k}, v{T[6]}, v{R} offset:{4*k}")
    A(f"v_and_b32 v{vTb}, 1, v3"); A(f"v_lshlrev_b32 v{vTb}, 4, v{vTb}"); A(f"v_mov_b32 v{vMK}, 0xff")
    A(f"v_lshrrev_b32 v{vTa}, v{vTb}, s52"); A(f"v_lshrrev_b32 v{vTb}, v{vTb}, s53")
    A("s_waitcnt lgkmcnt(0)")
    A(f"{lr1}:")
    slice_dot(W2, False)
    qpub(ACC, 45)
    A(f"v_mov_b32 v{vMK}, 0xff")
    A("s_cmp_ge_u32 s2, 112"); A(f"s_cbranch_scc1 {lz3}")
    A(f"buffer_load_ushort v{vXo}, v{T[4]}, s[28:31], s89 offen")
    A(f"v_mul_u32_u24 v{T[5]}, 1792, v4"); A(f"v_lshl_add_u32 v{T[5]}, v3, 2, v{T[5]}")
    A("s_lshl_b32 s62, s2, 4"); A(f"s_add_u32 s62, s62, {ZS}")
    A(f"v_lshlrev_b32 v{vF0}, 3, v3"); A(f"v_lshrrev_b32 v{vF0}, v{vF0}, s52")
    lp, lo = L("pz"), L("pzo")
    A(f"s_sleep {sl1}")
    A(f"{lp}:")
    A(f"buffer_load_dword v{R}, v{T[5]}, s[56:59], s62 offen sc1")
    A("s_waitcnt vmcnt(0)")
    anyinv([(R, f"v{vF0}")], T[0], vMK)
    A(f"s_cbranch_vccz {lo}")
    spin_or_end(lp, sl1)
    A(f"{lo}:")
    A("s_movk_i32 s62, 0x80"); A(f"v_bfi_b32 v{R}, v{vMK}, s62, v{R}")
    row_reduce([R])
    rnd(R); silu([R], [T[0]]); rnd(R)
    A(f"v_mov_b32 v{vG}, v{R}")
    A(f"v_lshlrev_b32 v{vXo}, 16, v{vXo}")
    A(f"{lz3}:")
    A(f"v_mov_b32 v{vMK}, 15")
    if SRV:
        assert 2048 - 16*S + 16 <= 768
        lp, lo = L("sv"), L("svo")
        A("s_mov_b32 s60, 0")
        A("s_lshl_b32 s61, s26, 14"); A(f"s_add_u32 s61, s61, {TK}")
        A("s_lshl_b32 s47, s26, 11"); A(f"s_add_u32 s47, s47, {S if PM else 16*S}")
        A(f"s_mov_b32 s92, {2048-16*S}")
        A(f"{lp}:")
        A(f"ds_read_b32 v{T[0]}, v{vLF} offset:{LCNT-512}")
        A("s_waitcnt lgkmcnt(0)")
        A(f"v_readfirstlane_b32 s62, v{T[0]}")
        if sls0:
            lz = L("svz")
            A("s_cmp_lg_u32 s62, 0"); A(f"s_cbranch_scc1 {lz}"); A("s_cmp_eq_u32 s60, 0"); A(f"s_cbranch_scc1 {lz}")
            A(f"s_sleep {sls0}")
            A(f"{lz}:")
        A("s_lshr_b32 s62, s62, 2"); A(f"s_add_u32 s62, s62, {AH}")
        A("s_sub_i32 s62, s62, s60"); A("s_min_i32 s62, s62, 8")
        A(f"s_cmp_gt_i32 s62, 0"); A(f"s_cbranch_scc1 {lo}")
        spin_or_end(lp, sls)
        A(f"{lo}:")
        A("s_mov_b32 s63, s62"); A("s_atomic_add s63, s[24:25], s61 glc")
        A(f"v_add_u32 v{T[1]}, s60, v0"); A(f"v_lshlrev_b32 v{T[1]}, 2, v{T[1]}")
        A("s_add_u32 s60, s60, s62")
        A("s_bfm_b64 s[4:5], s62, 0")
        A(f"v_bfrev_b32 v{T[3]}, 1")
        A("s_waitcnt lgkmcnt(0)")
        A(f"v_add_u32 v{T[0]}, s63, v0")
        if PM:
            A(f"v_and_b32 v{T[2]}, 15, v{T[0]}"); A(f"v_lshrrev_b32 v{T[5]}, 4, v{T[0]}"); A(f"v_lshl_add_u32 v{T[2]}, v{T[2]}, 7, v{T[5]}")
            A(f"v_add_u32 v{T[2]}, s47, v{T[2]}")
        else: A(f"v_add_u32 v{T[2]}, s47, v{T[0]}")
        A(f"v_lshlrev_b32 v{T[2]}, 14, v{T[2]}")
        A(f"v_cmp_gt_u32 vcc, s92, v{T[0]}")
        A(f"v_cndmask_b32 v{T[2]}, v{T[3]}, v{T[2]}, vcc")
        A("s_mov_b64 exec, s[4:5]")
        A(f"ds_write_b32 v{T[1]}, v{T[2]} offset:{LROWS}")
        A("s_mov_b64 exec, -1")
        A("s_add_u32 s63, s63, s62"); A("s_cmp_le_u32 s63, s92"); A(f"s_cbranch_scc1 {lp}")
    A("s_mov_b32 s62, s87")
    A("s_lshl_b32 s63, s26, 10"); A(f"s_add_u32 s63, s63, {ML}")
    A(f"v_lshrrev_b32 v{T[5]}, 2, v0"); A(f"v_lshlrev_b32 v{T[5]}, 4, v{T[5]}")
    A(f"s_mov_b32 s61, {CSC}")
    if OT:
        A("s_lshl_b32 s16, s26, 16"); A("s_lshl_b32 s17, s27, 6"); A("s_add_u32 s16, s16, s17"); A(f"s_add_u32 s16, s16, {OS}")
        for i in range(1, 4): A(f"s_add_u32 s{16+i}, s16, {16384*i}")
        A("v_lshrrev_b32 v20, 2, v0"); A("v_and_b32 v21, 3, v0"); A("v_lshlrev_b32 v20, 10, v20"); A("v_lshl_add_u32 v20, v21, 4, v20")
    if MT:
        A("s_lshl_b32 s63, s26, 13"); A(f"s_add_u32 s63, s63, {0x280000}"); A("s_add_u32 s47, s63, 4096")
        A(f"v_lshlrev_b32 v{T[5]}, 3, v{T[5]}")
    if YT:
        A("s_and_b32 s12, s2, 1"); A("s_lshl_b32 s12, s12, 10"); A("s_lshr_b32 s13, s2, 1"); A("s_lshl_b32 s13, s13, 4")
        A("s_add_u32 s12, s12, s13"); A(f"s_add_u32 s12, s12, {YS}")
        for i in range(1, 4): A(f"s_add_u32 s{12+i}, s12, {131072*i}")
        A("v_lshlrev_b32 v21, 11, v0")
        A(f"s_lshl_b32 s96, s2, 11"); A(f"s_add_u32 s96, s96, {YS}"); A("s_add_u32 s97, s96, 1024")
        A(f"v_mov_b32 v{vYv}, v{vL16}")
    if WARM & 1:
        for i in range(4): A(f"buffer_load_dword v{R+i}, v{vL16}, s[56:59], s62 offen offset:{1024*i} {WF}")
        A(f"buffer_load_dword v{R+4}, v{vL16}, s[56:59], s63 offen {WF}")
        A("s_cmp_lt_u32 s2, 112"); A("s_cselect_b32 s60, s86, 0x80000000")
        for i in range(4): A(f"buffer_load_dword v{R+8+i}, v{vL16}, s[56:59], s60 offen offset:{1024*i} {WF}")
    if WARM & 8:
        lw = L("w")
        A("s_add_u32 s6, s24, s87"); A("s_addc_u32 s7, s25, 0")
        for i in range(32): A(f"s_load_dword s4, s[6:7], {128*i}")
        A("s_lshl_b32 s60, s27, 6"); A("s_add_u32 s60, s60, s63")
        A("s_load_dword s4, s[24:25], s60")
        A("s_cmp_ge_u32 s2, 112"); A(f"s_cbranch_scc1 {lw}")
        A("s_add_u32 s6, s24, s86"); A("s_addc_u32 s7, s25, 0")
        for i in range(32): A(f"s_load_dword s4, s[6:7], {128*i}")
        A(f"{lw}:")
        A("s_waitcnt lgkmcnt(0)")
    if TRIG:
        lp, lo = L("tw"), L("two")
        A(f"{lp}:")
        A(f"ds_read_b32 v{T[0]}, v{vLF} offset:{LCNT-512}")
        A("s_waitcnt lgkmcnt(0)")
        A(f"v_cmp_eq_u32 vcc, 0, v{T[0]}" if TN == 1 else f"v_cmp_ge_u32 vcc, {64*(TN-1)}, v{T[0]}")
        A(f"s_cbranch_vccz {lo}")
        spin_or_end(lp, slw)
        A(f"{lo}:")
        wo_loads()
        if TRIG != 3:
            A("s_waitcnt vmcnt(0)")
            wo_perm()
    A("s_setprio 3")
    stamp(4)
    A("s_barrier")
    stamp(5)
    PSET = [R, W2]
    def o_issue(k):
        B = PSET[k]
        for i in range(4): A(f"buffer_load_dwordx4 v[{B+16+4*i}:{B+16+4*i+3}], v{T[5]}, s[56:59], s63 offen offset:{256*i} {LDS_}")
        for i in range(4): A(f"buffer_load_dwordx4 v[{B+4*i}:{B+4*i+3}], v{vL16}, s[56:59], s62 offen offset:{1024*i} {LDS_}")
    GSTEPS = ["row_ror:4", "row_ror:8"]
    mx, tt, ls = T[0], T[1], T[2]
    def o_done(kk):
        B = PSET[kk]; MLr = B + 16
        E = [MLr + 4*i for i in range(4)] if not FPO else [16, 17, 18, 19]
        A(f"v_max3_f32 v{mx}, v{MLr}, v{MLr+4}, v{MLr+8}"); A(f"v_max_f32 v{mx}, v{mx}, v{MLr+12}")
        row_reduce([mx], "v_max_f32", GSTEPS); xrow_allreduce([(mx, tt)], "v_max_f32")
        A(f"v_mul_f32 v{mx}, s61, v{mx}")
        for i in range(4): A(f"v_fma_f32 v{E[i]}, v{MLr+4*i}, s61, -v{mx}")
        for i in range(4): A(f"v_exp_f32 v{E[i]}, v{E[i]}")
        A(f"v_mul_f32 v{ls}, v{E[0]}, v{MLr+1}")
        for k in range(4): A(f"v_mul_f32 v{O+k}, v{E[0]}, v{B+k}")
        for i in range(1, 4):
            A(f"v_fmac_f32 v{ls}, v{E[i]}, v{MLr+4*i+1}")
            for k in range(4): A(f"v_fmac_f32 v{O+k}, v{E[i]}, v{B+4*i+k}")
    O = 12
    def o_issue1(i):
        if MT: A(f"buffer_load_dwordx4 v[{R+16+4*i}:{R+16+4*i+3}], v{T[5]}, s[56:59], s{63 if i < 2 else 47} offen offset:{2048*(i&1)} {LDS_}")
        else: A(f"buffer_load_dwordx4 v[{R+16+4*i}:{R+16+4*i+3}], v{T[5]}, s[56:59], s63 offen offset:{256*i} {LDS_}")
        if OT: A(f"buffer_load_dwordx4 v[{R+4*i}:{R+4*i+3}], v20, s[56:59], s{16+i} offen {LDS_}")
        else: A(f"buffer_load_dwordx4 v[{R+4*i}:{R+4*i+3}], v{vL16}, s[56:59], s62 offen offset:{1024*i} {LDS_}")
    if MO:
        masked_poll(o_issue1, lambda i: quad(R + 4*i, 4) + [vMK, R + 16 + 4*i + 2, R + 16 + 4*i + 3], slt, "po", True, (None, 0, 8, wo_perm) if TRIG == 3 else (wo_loads, 16, 8, wo_perm) if WOL and not TRIG else None, FPO, THO, 8)
        o_done(0)
    else: pipe_poll(NPT, o_issue, 8, lambda k: anyinv(quad(PSET[k], 16), T[0], vMK, [PSET[k] + 16 + 4*i + kk for i in range(4) for kk in (2, 3)]), o_done, slt, "po")
    stamp(6)
    Rs, R = R, O
    A(f"v_permlane32_swap_b32 v{R}, v{R+2}"); A(f"v_permlane32_swap_b32 v{R+1}, v{R+3}")
    A(f"v_add_f32_dpp v{ls}, v{ls}, v{ls} row_ror:4 {DPPM}")
    A(f"v_add_f32 v{R}, v{R}, v{R+2}"); A(f"v_add_f32 v{R+1}, v{R+1}, v{R+3}")
    A(f"v_add_f32_dpp v{ls}, v{ls}, v{ls} row_ror:8 {DPPM}")
    A(f"v_permlane16_swap_b32 v{R}, v{R+1}")
    A(f"v_mov_b32 v{tt}, v{ls}")
    A(f"v_add_f32 v{R}, v{R}, v{R+1}")
    A(f"v_permlane16_swap_b32 v{ls}, v{tt}")
    A(f"v_add_f32_dpp v{R}, v{R}, v{R} row_ror:4 {DPPM}")
    A(f"v_add_f32 v{ls}, v{ls}, v{tt}")
    A(f"v_mov_b32 v{tt}, v{ls}")
    A(f"v_add_f32_dpp v{R}, v{R}, v{R} row_ror:8 {DPPM}")
    A(f"v_permlane32_swap_b32 v{ls}, v{tt}")
    A(f"v_add_f32 v{ls}, v{ls}, v{tt}")
    A(f"v_rcp_f32 v{ls}, v{ls}")
    A(f"v_mul_f32 v{R}, v{R}, v{ls}")
    A(f"v_mov_b32 v{R+1}, v{R}")
    A(f"v_permlane16_swap_b32 v{R}, v{R+1}")
    A(f"v_cvt_pk_bf16_f32 v{R}, v{R}, v{R+1}")
    for t in range(4):
        A(f"v_readlane_b32 s{SP+2*t}, v{R}, {t}"); A(f"v_readlane_b32 s{SP+2*t+1}, v{R}, {32+t}")
    row_dot()
    A("s_mov_b32 exec_hi, 0x00ffffff")
    A(f"buffer_store_dwordx4 v[{ACC}:{ACC+3}], v{vYv}, s[56:59], s96 offen {STS}")
    A(f"buffer_store_dwordx4 v[{ACC+4}:{ACC+7}], v{vYv}, s[56:59], s97 offen {STS}")
    A("s_mov_b64 exec, -1")
    stamp(7)
    A("s_cmp_ge_u32 s2, 112"); A("s_cbranch_scc1 L_hend")
    YSET = [W, W + 16, W + 32, W + 48]
    def y_issue(k):
        for i in range(4): A(f"buffer_load_dwordx4 v[{YSET[k]+4*i}:{YSET[k]+4*i+3}], v{vL16}, s[56:59], s86 offen offset:{1024*i} {LDS_}")
    R = ACC + 4
    def y_done(kk):
        B = YSET[kk]; D = B + 16 if FPY else B
        A("s_movk_i32 s62, 0x200")
        for k in range(16): A(f"v_bfi_b32 v{D+k}, v{vMKY}, s62, v{B+k}")
        for k in range(4): A(f"v_add_f32 v{R+k}, v{D+k}, v{D+4+k}"); A(f"v_add_f32 v{R+8+k}, v{D+8+k}, v{D+12+k}")
    if MY:
        masked_poll(lambda i: A(f"buffer_load_dwordx4 v[{W+4*i}:{W+4*i+3}], v21, s[56:59], s{12+i} offen {LDS_}" if YT else f"buffer_load_dwordx4 v[{W+4*i}:{W+4*i+3}], v{vL16}, s[56:59], s86 offen offset:{1024*i} {LDS_}"),
                    lambda i: quadB(W + 4*i, 4) + [vMKY], sly, "py", False, None, FPY, THY, 4)
        y_done(0)
    else: pipe_poll(NPY, y_issue, 4, lambda k: anyinv(quadB(YSET[k], 16), T[0], vMKY), y_done, sly, "py")
    stamp(8)
    for k in range(4): A(f"v_add_f32 v{R+k}, v{R+k}, v{R+8+k}")
    reduce4(R); row_reduce([R])
    rnd(R)
    A(f"v_mul_f32 v{R}, v{R}, v{vG}"); rnd(R)
    A(f"v_add_f32 v{R}, v{R}, v{vXo}")
    A(f"v_cvt_pk_bf16_f32 v{R}, v{R}, v{R}")
    if probe:
        A("s_getreg_b32 s62, hwreg(HW_REG_XCC_ID)"); A("s_and_b32 s62, s62, 7"); A("s_and_b32 s63, s2, 7")
        A("s_cmp_eq_u32 s62, s63"); A("s_cbranch_scc1 L_pr1")
        A("s_movk_i32 s62, 20")
        A("L_pr0:"); A("s_sleep 100"); A("s_sub_u32 s62, s62, 1"); A("s_cbranch_scc0 L_pr0")
        A("L_pr1:")
    A("s_mov_b32 exec_lo, 0x00010001"); A("s_mov_b32 exec_hi, 0x00010001")
    A(f"buffer_store_short v{R}, v{T[4]}, s[48:51], s89 offen {OF}")
    A("s_cmp_eq_u32 s2, 0"); A(f"s_mov_b32 s62, {EP}"); A("s_cselect_b32 s62, s62, 0x80000000"); A(f"v_mov_b32 v{T[0]}, s52")
    A("s_mov_b64 exec, 1")
    A(f"buffer_store_dword v{T[0]}, off, s[56:59], s62 {OF}")
    A("L_hend:")
    stamp(9)
    dump_stamps(11)
    A("L_end:")
    A("s_endpgm")
    body = A.finish()
    nv = NV
    out = HEADER + "; @launch grid=(256,1,1) block=(%d,1,1) lds=%d\n" % (512 if XW else 320, 17408 if KP else 9216 if SEP else 4096 if SRV else 1024) + body
    out += f""".section .rodata,"a"
.p2align 6
.amdhsa_kernel {KN}
  .amdhsa_next_free_vgpr {nv}
  .amdhsa_next_free_sgpr 102
  .amdhsa_accum_offset {nv}
  .amdhsa_group_segment_fixed_size 0
  .amdhsa_kernarg_size 88
  .amdhsa_user_sgpr_count 2
  .amdhsa_user_sgpr_kernarg_segment_ptr 1
  .amdhsa_system_sgpr_workgroup_id_x 1
  .amdhsa_float_denorm_mode_32 3
.end_amdhsa_kernel
"""
    return out

if __name__ == "__main__":
    import json
    kw = json.loads(sys.argv[2]) if len(sys.argv) > 2 else {}
    open(sys.argv[1], "w").write(gen(**kw))
```
